```python
import torch

def _softmax(x, axis=-1):
    return torch.softmax(x, dim=axis)
def _gelu(x):
    return torch.nn.functional.gelu(x, approximate="tanh")
def _silu(x):
    return torch.nn.functional.silu(x)
def _sigmoid(x):
    return torch.sigmoid(x)
def _layernorm(x, axis=-1, eps=1e-5):
    m = x.mean(dim=axis, keepdim=True)
    v = x.var(dim=axis, keepdim=True, unbiased=False)
    return (x - m) / torch.sqrt(v + eps)
def _scatter_add(tgt, idx, src, axis=0):
    return tgt.clone().index_add_(axis, idx, src)
def _segment_sum(src, seg, n):
    out = torch.zeros((n,) + src.shape[1:], dtype=src.dtype)
    return out.index_add_(0, seg, src)
def _pad(x, pw):
    flat = tuple(v for pair in reversed(pw) for v in pair)
    return torch.nn.functional.pad(x, flat)

kernel_name = 'standalone__mha_block_cached__near_ridge'

def setup_inputs():

    _w = (lambda a: (lambda t: t.to(torch.bfloat16) if t.is_floating_point() else t)(torch.as_tensor(a)))
    B, Sq, D = 8, 128, 1024
    H, Sk, Dh = 32, 2048, 128
    return {
        "x": _w((lambda *s: torch.randn(*s, dtype=torch.bfloat16) * 0.8)(B, Sq, D)),
        "k_cache": _w((lambda *s: torch.randn(*s, dtype=torch.bfloat16) * 0.8)(B, H, Sk, Dh)),
        "v_cache": _w((lambda *s: torch.randn(*s, dtype=torch.bfloat16) * 0.05)(B, H, Sk, Dh)),
        "wq": _w((lambda *s: torch.randn(*s, dtype=torch.bfloat16) * 0.8)(D, H * Dh) * (D ** -0.5)),
        "wo": _w((lambda *s: torch.randn(*s, dtype=torch.bfloat16) * 0.05)(H * Dh, D) * ((H * Dh) ** -0.5)),
    }

def reference(x, k_cache, v_cache, wq, wo):
    B, Sq, D = x.shape
    H, Dh = 32, 128
    q = (lambda x, *d: x.permute(*d))((x @ wq).reshape(B, Sq, H, Dh), 0, 2, 1, 3)
    scores = torch.einsum("bhqd,bhkd->bhqk", q, k_cache) * (Dh ** -0.5)
    p = _softmax(scores, axis=-1)
    o = torch.einsum("bhqk,bhkd->bhqd", p, v_cache)
    return (lambda x, *d: x.permute(*d))(o, 0, 2, 1, 3).reshape(B, Sq, H * Dh) @ wo
```

```python
import re

REG_RE = re.compile(r'\b([vas])(?:(\d+)|\[(\d+):(\d+)\])')

def regs_of(tok):
    out = set()
    t = tok.strip()
    for m in REG_RE.finditer(t):
        k = m.group(1)
        if m.group(2) is not None:
            out.add((k, int(m.group(2))))
        else:
            for i in range(int(m.group(3)), int(m.group(4)) + 1):
                out.add((k, i))
    if re.search(r'\bvcc(_lo|_hi)?\b', t): out.add(('vcc', 0))
    if re.search(r'\bm0\b', t): out.add(('m0', 0))
    if re.search(r'\bexec\b', t): out.add(('exec', 0))
    return out

TRANS = ('v_exp_f32', 'v_log_f32', 'v_rcp_f32', 'v_rsq_f32', 'v_sqrt_f32', 'v_sin_f32', 'v_cos_f32')

class Ins:
    def __init__(self, text):
        self.text = text
        t = text.split(';')[0].strip()
        self.label = t.endswith(':')
        self.op = ''
        self.w = set(); self.r = set()
        self.kind = 'other'
        self.states = 0
        if not t or self.label or t.startswith('.'):
            self.kind = 'none'
            return
        parts = t.split(None, 1)
        op = parts[0]; self.op = op
        rest = parts[1] if len(parts) > 1 else ''
        ops = [o.strip() for o in rest.split(',')] if rest else []
        self.states = 1
        if op == 's_nop':
            self.states = int(ops[0], 0) + 1; self.kind = 'salu'; return
        if op.startswith('v_mfma'):
            self.kind = 'mfma'
            self.d = regs_of(ops[0]); self.a = regs_of(ops[1]); self.b = regs_of(ops[2]); self.c = regs_of(ops[3])
            self.w = set(self.d); self.r = self.a | self.b | self.c
            self.passes = 8 if '32x32x16' in op else 4
            return
        if op.startswith('v_'):
            self.kind = 'valu'
            if op.startswith('v_cmp'):
                self.w = regs_of(ops[0]); self.r = set().union(*[regs_of(o) for o in ops[1:]])
            elif op.startswith('v_permlane'):
                self.w = regs_of(ops[0]) | regs_of(ops[1]); self.r = set(self.w)
            elif op.startswith(('v_add_co', 'v_sub_co', 'v_addc_co', 'v_subb_co')):
                self.w = regs_of(ops[0]) | regs_of(ops[1]); self.r = set().union(*[regs_of(o) for o in ops[2:]])
            else:
                self.w = regs_of(ops[0]); self.r = set().union(*[regs_of(o) for o in ops[1:]]) if len(ops) > 1 else set()
                if op.startswith(('v_fmac', 'v_pk_fmac', 'v_dot2c')): self.r |= self.w
            return
        if op.startswith('ds_'):
            self.kind = 'ds'
            if op.startswith(('ds_read', 'ds_bpermute', 'ds_permute', 'ds_swizzle')):
                self.w = regs_of(ops[0]); self.r = set().union(*[regs_of(o) for o in ops[1:]])
            else:
                self.r = set().union(*[regs_of(o) for o in ops])
            return
        if op.startswith(('buffer_', 'global_')):
            self.kind = 'vmem'
            self.lds = bool(re.search(r'\blds\b', rest)) or 'load_lds' in op
            allr = [regs_of(o) for o in ops]
            if 'load' in op and not self.lds:
                self.w = allr[0]; self.r = set().union(*allr[1:])
            elif 'atomic' in op and re.search(r'\bsc0\b', rest):
                self.w = allr[0]; self.r = set().union(*allr)
            else:
                self.r = set().union(*allr) if allr else set()
            if self.lds: self.r.add(('m0', 0))
            self.wide_store = ('store' in op and ('x4' in op or 'x3' in op))
            if self.wide_store:
                self.sdata = allr[0] if op.startswith('buffer_') else allr[1]
            return
        if op.startswith('s_'):
            self.kind = 'salu'
            if op.startswith(('s_cmp', 's_cbranch', 's_branch', 's_waitcnt', 's_barrier', 's_endpgm', 's_setprio', 's_sleep', 's_bitcmp')):
                self.r = set().union(*[regs_of(o) for o in ops]) if ops else set()
            else:
                self.w = regs_of(ops[0]); self.r = set().union(*[regs_of(o) for o in ops[1:]]) if len(ops) > 1 else set()
            return
        raise ValueError('unknown instr ' + text)

def need_states(p, c):
    n = 0
    vg = lambda s: {x for x in s if x[0] in 'va' and x[0] != 'vcc'}
    sg = lambda s: {x for x in s if x[0] in ('s', 'vcc')}
    if p.kind == 'valu':
        pw = vg(p.w)
        if c.kind == 'mfma' and pw & c.r: n = max(n, 2)
        if c.kind == 'valu':
            if p.op.replace('_e32', '').replace('_e64', '') in TRANS and (pw & c.r) and c.op.replace('_e32', '').replace('_e64', '') not in TRANS: n = max(n, 1)
            if c.op.startswith(('v_readfirstlane', 'v_readlane')) and pw & c.r: n = max(n, 1)
            if c.op.startswith('v_permlane') and pw & c.r: n = max(n, 2)
            if 'dpp' in c.text and pw & c.r: n = max(n, 2)
            if sg(p.w) & c.r: n = max(n, 2)
            if c.op.startswith(('v_readlane', 'v_writelane')) and sg(p.w) & c.r: n = max(n, 4)
        if c.kind == 'vmem' and sg(p.w) & c.r: n = max(n, 5)
        if c.kind == 'salu' and sg(p.w) & c.r and not c.op.startswith('s_cbranch'): n = max(n, 1)
        if ('exec', 0) in p.w: n = max(n, 5)
    if p.kind == 'mfma':
        big = {8: 12, 4: 8}[p.passes]
        if c.kind == 'mfma':
            if p.d & (c.a | c.b): n = max(n, big)
            if p.d & c.c and (p.d != c.c or p.passes != c.passes): n = max(n, big - 2)
            if p.d & c.d and p.d != c.c: n = max(n, big)
        elif c.kind in ('valu', 'ds', 'vmem'):
            if p.d & (c.r | c.w): n = max(n, big)
            if c.kind == 'valu' and p.c & c.w: n = max(n, {8: 7, 4: 3}[p.passes])
            if c.kind in ('ds', 'vmem') and p.c & c.w: n = max(n, {8: 7, 4: 3}[p.passes])
    if p.kind == 'salu':
        if ('m0', 0) in p.w and c.kind == 'vmem' and getattr(c, 'lds', False): n = max(n, 1)
    if p.kind == 'vmem' and getattr(p, 'wide_store', False):
        if p.sdata & c.w: n = max(n, 2)
    return n

class Asm:
    def __init__(self):
        self.ins = []
    def __call__(self, s):
        for l in s.split('\n'):
            l = l.strip()
            if l: self.ins.append(Ins(l))
    def label(self, l):
        self.ins.append(Ins(l + ':'))
    def raw(self, s):
        i = Ins(''); i.text = s; self.ins.append(i)
    def text(self):
        out = []
        for i in self.ins:
            if i.kind == 'none': out.append(i.text)
            else: out.append('  ' + i.text)
        return '\n'.join(out) + '\n'

def check_seq(seq, fix=False, what=''):
    probs = []
    W = 24
    for j, c in enumerate(seq):
        if c.kind == 'none': continue
        dist = 0
        i = j - 1
        worst = 0; wp = None
        while i >= 0 and dist < W:
            p = seq[i]
            if p.kind != 'none':
                n = need_states(p, c)
                if n > dist and n - dist > worst:
                    worst = n - dist; wp = p
                dist += p.states
            i -= 1
        if worst: probs.append((j, worst, wp.text, c.text))
    return probs

def check_program(a, autofix=True, verbose=True):
    if autofix:
        while True:
            probs = check_seq(a.ins)
            if not probs: break
            j, n, pt, ct = probs[0]
            if verbose: print('; autofix: +%d states before [%s] (producer [%s])' % (n, ct, pt))
            while n > 0:
                k = min(n, 16)
                a.ins.insert(j, Ins('s_nop %d' % (k - 1))); n -= k
    labels = {i.text.strip()[:-1]: k for k, i in enumerate(a.ins) if i.label}
    bad = []
    for k, i in enumerate(a.ins):
        if i.op.startswith(('s_cbranch', 's_branch')):
            tgt = i.text.split(';')[0].split()[-1]
            t = labels[tgt]
            seq = a.ins[max(0, k - 40):k + 1] + a.ins[t:t + 40]
            base = min(40, k) + 1
            for (j, n, pt, ct) in check_seq(seq):
                if j >= base:
                    bad.append((tgt, n, pt, ct))
    return bad
```

```python
import sys, math, struct
from asmlib import *

OPT = dict(kvpol='nt', xwpol='', opol='', k2pol='', stamps=0)
for a_ in sys.argv[1:]:
    k, v = a_.split('=')
    OPT[k] = v if not v.lstrip('-').isdigit() else int(v)
def pol(k): return str(OPT[k]).replace('+', ' ').replace('-', '')

def f32bits(x): return struct.unpack('<I', struct.pack('<f', x))[0]
QSCALE = f32bits(math.log2(math.e) / math.sqrt(128.0))
THRESH = f32bits(8.0)

def vr(b, n=1): return 'v%d' % b if n == 1 else 'v[%d:%d]' % (b, b + n - 1)
def ar(b, n=1): return 'a%d' % b if n == 1 else 'a[%d:%d]' % (b, b + n - 1)
def sr(b, n=1): return 's%d' % b if n == 1 else 's[%d:%d]' % (b, b + n - 1)

MFMA = 'v_mfma_f32_32x32x16_bf16'

class Sched:
    def __init__(self, a, pool, la=6, pair=2):
        self.a = a; self.pool = pool; self.la = la; self.pair = pair
    def run(self, mf, reads, pre, fill, npre_reads=None):
        a = self.a
        nbuf = len(self.pool)
        buf_free_after = [-1] * nbuf
        rbuf = {}
        issued = []
        done_upto = 0
        nxt = 0
        def issue(cur):
            nonlocal nxt
            while nxt < len(reads):
                rd = reads[nxt]
                if rd['first'] > cur + self.la: break
                b = nxt % nbuf
                if buf_free_after[b] > cur: break
                if len(issued) - done_upto + len(rd['ins']) > 15: break
                base = self.pool[b]
                for f in rd['ins']:
                    a(f.format(d=vr(base, 4), d0=vr(base, 2), d1=vr(base + 2, 2)))
                    issued.append(nxt)
                rbuf[nxt] = base
                buf_free_after[b] = rd['last']
                nxt += 1
        issue(-1)
        for x in pre: a(x)
        for i, m in enumerate(mf):
            need = set(m['uses'])
            mustpos = max(k for k, r in enumerate(issued) if r in need) + 1 if need else 0
            assert all(u in rbuf for u in m['uses']), ('read not issued', i, m)
            if mustpos > done_upto:
                pos = mustpos
                for j in range(i + 1, min(i + self.pair, len(mf))):
                    if all(u in rbuf for u in mf[j]['uses']):
                        pos = max(pos, max(k for k, r in enumerate(issued) if r in set(mf[j]['uses'])) + 1)
                a('s_waitcnt lgkmcnt(%d)' % (len(issued) - pos))
                done_upto = pos
            a(m['fmt'].format(**{'r%d' % k: vr(rbuf[u], 4) for k, u in enumerate(m['uses'])}))
            issue(i)
            for x in fill.get(i, []): a(x)
        assert nxt == len(reads)

def header(a, name):
    a.raw('.globl %s' % name)
    a.raw('.p2align 8')
    a.raw('.type %s,@function' % name)
    a.label(name)

def descriptor(name, nv, acc, ns=96):
    return '''.p2align 6
.amdhsa_kernel %s
  .amdhsa_next_free_vgpr %d
  .amdhsa_next_free_sgpr %d
  .amdhsa_accum_offset %d
  .amdhsa_group_segment_fixed_size 0
  .amdhsa_kernarg_size 64
  .amdhsa_user_sgpr_count 2
  .amdhsa_user_sgpr_kernarg_segment_ptr 1
  .amdhsa_system_sgpr_workgroup_id_x 1
.end_amdhsa_kernel
''' % (name, nv, ns, acc)

STAMP_OFF = 496 * 1024 * 1024
def stamp(a, idx, n, srd, wsreg):
    if not OPT['stamps']: return
    lab = 'L_st%d_%d' % (idx, len(a.ins))
    a('s_cmp_lg_u32 s29, 0')
    a('s_cbranch_scc1 %s' % lab)
    a('s_memrealtime s[60:61]')
    a('s_waitcnt lgkmcnt(0)')
    a('v_mov_b32 v2, s60')
    a('v_mov_b32 v3, s61')
    a('v_mov_b32 v4, 0')
    a('s_mul_i32 s62, s2, %d' % (n * 8))
    a('s_add_u32 s62, s62, %d' % (idx * 8))
    a('buffer_store_dwordx2 v[2:3], v4, %s, s62 offen' % sr(srd, 4))
    a.label(lab)

def k1(a):
    NAME = 'attn_kernel'
    header(a, NAME)
    SX, SW, SK, SV, SO, SST = 8, 12, 16, 20, 24, 64
    sWave, sLdsW, sAoff, sBoff, sCnt, sH, sB, sT0, sT1, sOb, sKoff, sVoff, sSlot = 29, 30, 31, 32, 33, 34, 35, 46, 47, 48, 49, 50, 51
    sQs, sThr = 52, 53
    vLane = 1
    vXoff, vWoff, vKoff, vVoff = 10, 14, 18, 22
    vKaddr, vTaddr, vXaddr = 24, 32, 36
    vL, vMax, vTmp, vOoff, vDelta, vAlpha = 40, 41, 42, 43, 44, 45
    vQ, vNegM, vP, vS = 48, 80, 96, [112, 144]
    POOL = [176 + 4 * i for i in range(16)]
    vTc, vXc = 240, 244
    BB = 65536
    NST = 8

    a('s_cmp_ge_u32 s2, 256')
    a('s_cbranch_scc1 L_k1_end')
    a('s_load_dwordx8 s[36:43], s[0:1], 0')
    a('s_load_dwordx2 s[44:45], s[0:1], 56')
    a('v_lshrrev_b32 v2, 6, v0')
    a('v_and_b32 v1, 63, v0')
    a('v_readfirstlane_b32 s%d, v2' % sWave)
    a('s_and_b32 s3, s2, 3')
    a('s_lshl_b32 s3, s3, 3')
    a('s_lshr_b32 s4, s2, 3')
    a('s_and_b32 s5, s4, 7')
    a('s_add_u32 s%d, s3, s5' % sH)
    a('s_and_b32 s3, s2, 4')
    a('s_lshr_b32 s4, s4, 3')
    a('s_add_u32 s%d, s3, s4' % sB)
    a('s_lshl_b32 s%d, s%d, 12' % (sLdsW, sWave))
    a('v_lshrrev_b32 v2, 4, v1')
    a('v_and_b32 v3, 15, v1')
    a('v_lshrrev_b32 v4, 3, v1')
    a('v_and_b32 v5, 7, v1')
    a('v_lshlrev_b32 v6, 2, v2')
    a('v_xor_b32 v6, v6, v3')
    a('v_lshlrev_b32 v6, 4, v6')
    a('v_lshl_add_u32 v7, v2, 8, v6')
    a('v_add_u32 v%d, s%d, v7' % (vVoff, sLdsW))
    a('s_lshl_b32 s3, s%d, 17' % sWave)
    a('v_lshl_add_u32 v7, v2, 13, v6')
    a('v_add_u32 v%d, s3, v7' % vWoff)
    for i in range(1, 4):
        a('v_add_u32 v%d, %d, v%d' % (vWoff + i, i * (32768 - 1024), vWoff))
    a('v_xor_b32 v6, v2, v3')
    for i in range(4):
        a('v_xor_b32 v7, %d, v6' % (4 * i))
        a('v_lshlrev_b32 v7, 4, v7')
        a('v_lshl_add_u32 v7, v2, 8, v7')
        a('v_add_u32 v%d, s%d, v7' % (vKoff + i, sLdsW))
    a('s_lshl_b32 s3, s%d, 16' % sWave)
    for i in range(4):
        a('v_xor_b32 v7, v2, v5')
        if i & 1: a('v_xor_b32 v7, 4, v7')
        a('v_lshlrev_b32 v7, 4, v7')
        a('v_lshl_add_u32 v7, v4, 11, v7')
        a('v_add_u32 v7, s3, v7')
        a('v_add_u32 v%d, %d, v7' % (vXoff + i, i * (16384 - 1024)))
    a('s_waitcnt lgkmcnt(0)')
    a('s_lshl_b32 s3, s%d, 18' % sB)
    a('s_add_u32 s%d, s36, s3' % SX); a('s_addc_u32 s%d, s37, 0' % (SX + 1))
    a('s_mov_b32 s%d, 0x40000' % (SX + 2)); a('s_mov_b32 s%d, 0x00020000' % (SX + 3))
    a('s_lshl_b32 s3, s%d, 8' % sH)
    a('s_add_u32 s%d, s42, s3' % SW); a('s_addc_u32 s%d, s43, 0' % (SW + 1))
    a('s_sub_u32 s%d, 0x800000, s3' % (SW + 2)); a('s_mov_b32 s%d, 0x00020000' % (SW + 3))
    a('s_lshl_b32 s3, s%d, 5' % sB)
    a('s_add_u32 s3, s3, s%d' % sH)
    a('s_lshl_b32 s3, s3, 19')
    a('s_add_u32 s%d, s38, s3' % SK); a('s_addc_u32 s%d, s39, 0' % (SK + 1))
    a('s_mov_b32 s%d, 0x80000' % (SK + 2)); a('s_mov_b32 s%d, 0x00020000' % (SK + 3))
    a('s_add_u32 s%d, s40, s3' % SV); a('s_addc_u32 s%d, s41, 0' % (SV + 1))
    a('s_mov_b32 s%d, 0x80000' % (SV + 2)); a('s_mov_b32 s%d, 0x00020000' % (SV + 3))
    a('s_mov_b32 s%d, s44' % SO); a('s_mov_b32 s%d, s45' % (SO + 1))
    a('s_mov_b32 s%d, 0x800000' % (SO + 2)); a('s_mov_b32 s%d, 0x00020000' % (SO + 3))
    if OPT['stamps']:
        a('s_add_u32 s%d, s44, %d' % (SST, STAMP_OFF)); a('s_addc_u32 s%d, s45, 0' % (SST + 1))
        a('s_mov_b32 s%d, 0x100000' % (SST + 2)); a('s_mov_b32 s%d, 0x00020000' % (SST + 3))

    def dma_xw(slot_expr_s):
        out = []
        out.append('s_mov_b32 m0, s%d' % slot_expr_s)
        out.append('s_add_u32 s%d, s%d, %d' % (sT0, slot_expr_s, BB))
        for i in range(4):
            out.append('buffer_load_dwordx4 v%d, %s, s%d offen offset:%d %s lds' % (vXoff + i, sr(SX, 4), sAoff, i * 1024, pol('xwpol')))
        out.append('s_mov_b32 m0, s%d' % sT0)
        out.append('s_add_u32 s%d, s%d, 128' % (sAoff, sAoff))
        for i in range(4):
            out.append('buffer_load_dwordx4 v%d, %s, s%d offen offset:%d %s lds' % (vWoff + i, sr(SW, 4), sBoff, i * 1024, pol('xwpol')))
        out.append('s_add_u32 s%d, s%d, 0x80000' % (sBoff, sBoff))
        return out
    def dma_k(m0src):
        out = [m0src]
        out.append('s_cmp_lt_u32 s%d, 0x80000' % sKoff)
        out.append('s_cselect_b32 s%d, 0x80000, 0' % (SK + 2))
        for i in range(4):
            out.append('buffer_load_dwordx4 v%d, %s, s%d offen offset:%d %s lds' % (vKoff + i, sr(SK, 4), sKoff, i * 1024, pol('kvpol')))
        out.append('s_add_u32 s%d, s%d, 0x4000' % (sKoff, sKoff))
        return out
    def dma_v(m0src):
        out = [m0src]
        out.append('s_cmp_lt_u32 s%d, 0x80000' % sVoff)
        out.append('s_cselect_b32 s%d, 0x80000, 0' % (SV + 2))
        for i in range(4):
            out.append('buffer_load_dwordx4 v%d, %s, s%d offen offset:%d %s lds' % (vVoff, sr(SV, 4), sVoff, i * 1024, pol('kvpol')))
        out.append('s_add_u32 s%d, s%d, 0x4000' % (sVoff, sVoff))
        return out

    a('s_mov_b32 s%d, 0' % sAoff); a('s_mov_b32 s%d, 0' % sBoff)
    a('s_mov_b32 s%d, 0' % sKoff); a('s_mov_b32 s%d, 0' % sVoff)
    for c in range(3):
        a('s_add_u32 s%d, s%d, %d' % (sT1, sLdsW, c * 16384))
        for x in dma_xw(sT1): a(x)
    stamp(a, 0, NST, SST, 44)
    a('v_and_b32 v2, 31, v1')
    a('v_lshrrev_b32 v3, 5, v1')
    a('v_and_b32 v4, 19, v2')
    a('v_and_b32 v5, 4, v2')
    a('v_lshlrev_b32 v5, 1, v5')
    a('v_or_b32 v4, v4, v5')
    a('v_and_b32 v5, 8, v2')
    a('v_lshrrev_b32 v5, 1, v5')
    a('v_or_b32 v4, v4, v5')
    a('v_and_b32 v5, 15, v4')
    a('v_xor_b32 v5, v5, v3')
    for m in range(8):
        a('v_xor_b32 v6, %d, v5' % (2 * m))
        a('v_lshlrev_b32 v6, 4, v6')
        a('v_lshl_add_u32 v%d, v4, 8, v6' % (vKaddr + m))
    a('v_lshrrev_b32 v5, 1, v2')
    a('v_and_b32 v5, 7, v5')
    a('v_xor_b32 v5, v5, v3')
    for ks in range(4):
        a('v_xor_b32 v6, %d, v5' % (2 * ks))
        a('v_lshlrev_b32 v6, 4, v6')
        a('v_lshl_add_u32 v6, v2, 7, v6')
        a('v_add_u32 v%d, s%d, v6' % (vXaddr + ks, sLdsW))
    a('v_lshrrev_b32 v4, 2, v1')
    a('v_and_b32 v4, 3, v4')
    a('v_lshl_add_u32 v5, v3, 3, v4')
    a('v_lshlrev_b32 v5, 8, v5')
    a('v_and_b32 v6, 2, v1')
    a('v_lshl_add_u32 v5, v6, 2, v5')
    a('v_add_u32 v5, %d, v5' % BB)
    a('v_lshrrev_b32 v6, 3, v1')
    a('v_and_b32 v6, 2, v6')
    a('v_and_b32 v7, 1, v1')
    a('v_or_b32 v6, v6, v7')
    a('v_lshl_add_u32 v6, v4, 2, v6')
    for db in range(4):
        a('v_xor_b32 v7, %d, v6' % (4 * db))
        a('v_lshl_add_u32 v%d, v7, 4, v5' % (vTaddr + db))
    a('v_lshlrev_b32 v%d, 4, v1' % vOoff)
    for i in range(64): a('v_mov_b32 v%d, 0' % (vS[0] + i))
    for i in range(64): a('v_accvgpr_write_b32 a%d, 0' % i)
    a('s_mov_b32 s%d, 0x%08x' % (sQs, QSCALE))
    a('s_mov_b32 s%d, 0x%08x' % (sThr, THRESH))
    a('v_mov_b32 v%d, 0' % vL)
    a('s_mov_b32 s%d, 0' % sCnt)
    a('s_mov_b32 s%d, 0' % sSlot)
    a.label('L_qp')
    for k in range(4):
        a('v_add_u32 v%d, s%d, v%d' % (vTc + k, sSlot, vTaddr + k))
        a('v_add_u32 v%d, s%d, v%d' % (vXc + k, sSlot, vXaddr + k))
    a('s_add_u32 s%d, s%d, 0xc000' % (sT1, sSlot))
    a('s_and_b32 s%d, s%d, 0xffff' % (sT1, sT1))
    a('s_add_u32 s%d, s%d, s%d' % (sT1, sT1, sLdsW))
    a('s_waitcnt vmcnt(16)')
    a('s_barrier')
    reads = []; mf = []
    for ks in range(4):
        xi = len(reads)
        reads.append(dict(ins=['ds_read_b128 {d}, v%d' % (vXc + ks)], first=4 * ks, last=4 * ks + 3))
        for db in range(4):
            wi = len(reads)
            reads.append(dict(ins=['ds_read_b64_tr_b16 {d0}, v%d offset:%d' % (vTc + db, ks * 4096),
                                   'ds_read_b64_tr_b16 {d1}, v%d offset:%d' % (vTc + db, ks * 4096 + 1024)], first=4 * ks + db, last=4 * ks + db))
            acc = vr(vS[0] + 16 * db, 16)
            mf.append(dict(fmt='%s %s, {r0}, {r1}, %s' % (MFMA, acc, acc), uses=[wi, xi]))
    pre = ['s_cmp_ge_u32 s%d, 13' % sCnt, 's_cbranch_scc1 L_qp_kv'] + dma_xw(sT1) + ['s_branch L_qp_go', 'L_qp_kv:'] + \
          dma_k('s_mov_b32 m0, s%d' % sT1) + dma_v('s_add_u32 m0, s%d, %d' % (sT1, BB)) + ['L_qp_go:']
    fill = {14: ['s_add_u32 s%d, s%d, 0x4000' % (sSlot, sSlot), 's_and_b32 s%d, s%d, 0xffff' % (sSlot, sSlot),
                 's_add_u32 s%d, s%d, 1' % (sCnt, sCnt), 's_cmp_lt_u32 s%d, 16' % sCnt]}
    Sched(a, POOL, la=7).run(mf, reads, pre, fill)
    a('s_cbranch_scc1 L_qp')
    stamp(a, 1, NST, SST, 44)
    a('s_nop 7')
    for db in range(4):
        for r in range(16):
            a('v_mul_f32 v%d, s%d, v%d' % (vS[0] + 16 * db + r, sQs, vS[0] + 16 * db + r))
        for r in range(0, 16, 2):
            a('v_cvt_pk_bf16_f32 v%d, v%d, v%d' % (vQ + 8 * db + r // 2, vS[0] + 16 * db + r, vS[0] + 16 * db + r + 1))

    def qk_parts(slot, S, first):
        reads = []; mf = []
        for kb in range(2):
            for m in range(8):
                i = len(mf)
                reads.append(dict(ins=['ds_read_b128 {d}, v%d offset:%d' % (vKaddr + m, slot * 16384 + kb * 8192)], first=i, last=i))
                acc = vr(S + 16 * kb, 16)
                c = acc if m else ('0' if first else vr(vNegM, 16))
                mf.append(dict(fmt='%s %s, {r0}, %s, %s' % (MFMA, acc, vr(vQ + 4 * m, 4), c), uses=[i]))
        return reads, mf
    def pv_parts(slot, base):
        reads = []; mf = []
        for u in range(4):
            for db in range(4):
                i = base + len(mf)
                reads.append(dict(ins=['ds_read_b64_tr_b16 {d0}, v%d offset:%d' % (vTaddr + db, slot * 16384 + u * 4096),
                                       'ds_read_b64_tr_b16 {d1}, v%d offset:%d' % (vTaddr + db, slot * 16384 + u * 4096 + 1024)], first=i, last=i))
                acc = ar(16 * db, 16)
                mf.append(dict(fmt='%s %s, {r0}, %s, %s' % (MFMA, acc, vr(vP + 4 * u, 4), acc), uses=[i]))
        return reads, mf
    def softmax_ops(S):
        ops = []
        for u in range(4):
            b = S + 8 * u
            for h4 in range(2):
                q = b + 4 * h4
                for j in range(4): ops.append(('v_exp_f32 v%d, v%d' % (q + j, q + j), 2, u))
                ops.append(('v_add_f32 v%d, v%d, v%d' % (vL, vL, q), 1, u))
                ops.append(('v_cvt_pk_bf16_f32 v%d, v%d, v%d' % (vP + 4 * u + 2 * h4, q, q + 1), 1, u))
                ops.append(('v_add_f32 v%d, v%d, v%d' % (vL, vL, q + 1), 1, u))
                ops.append(('v_add_f32 v%d, v%d, v%d' % (vL, vL, q + 2), 1, u))
                ops.append(('v_cvt_pk_bf16_f32 v%d, v%d, v%d' % (vP + 4 * u + 2 * h4 + 1, q + 2, q + 3), 1, u))
                ops.append(('v_add_f32 v%d, v%d, v%d' % (vL, vL, q + 3), 1, u))
        return ops
    def max_ops(S):
        ops = ['v_max3_f32 v%d, v%d, v%d, v%d' % (vMax, S, S + 1, S + 2)]
        for j in range(3, 31, 2):
            ops.append('v_max3_f32 v%d, v%d, v%d, v%d' % (vMax, vMax, S + j, S + j + 1))
        ops.append('v_max_f32 v%d, v%d, v%d' % (vMax, vMax, S + 31))
        return ops
    def rowmax():
        a('v_mov_b32 v%d, v%d' % (vTmp, vMax))
        a('s_nop 1')
        a('v_permlane32_swap_b32 v%d, v%d' % (vMax, vTmp))
        a('s_nop 1')
        a('v_max_f32 v%d, v%d, v%d' % (vMax, vMax, vTmp))

    a('s_waitcnt vmcnt(20)')
    a('s_barrier')
    reads, mf = qk_parts(0, vS[0], True)
    Sched(a, POOL, la=7).run(mf, reads, dma_k('s_add_u32 m0, s%d, %d' % (sLdsW, 3 * 16384)), {})
    a('s_nop 7')
    for x in max_ops(vS[0]): a(x)
    rowmax()
    for j in range(32): a('v_sub_f32 v%d, v%d, v%d' % (vS[0] + j, vS[0] + j, vMax))
    for j in range(16): a('v_sub_f32 v%d, 0, v%d' % (vNegM + j, vMax))
    stamp(a, 2, NST, SST, 44)

    rare = []
    def iteration(j, last=False):
        cur, nxt = vS[j & 1], vS[(j + 1) & 1]
        a('s_waitcnt vmcnt(16)')
        a('s_barrier')
        sm = softmax_ops(cur)
        if not last:
            r1, m1 = qk_parts((j + 1) & 3, nxt, False)
            r2, m2 = pv_parts(j, 16)
            reads, mf = r1 + r2, m1 + m2
            dma = dma_k('s_add_u32 m0, s%d, %d' % (sLdsW, j * 16384)) + dma_v('s_add_u32 m0, s%d, %d' % (sLdsW, BB + ((j + 3) & 3) * 16384))
            dma = [x for x in dma if x != 's_nop 0']
            fill = {i: [] for i in range(32)}
            pre = []
            g = 0
            for x in dma:
                fill[g].append(x)
                if x.startswith('buffer') or 'm0' in x: g += 1
            k = 0
            budget = 16
            while k < len(sm) and budget > 0:
                pre.append(sm[k][0]); budget -= sm[k][1]; k += 1
            for g in range(32):
                budget = (4 if g < 10 else 5) if g < 16 else 3
                while k < len(sm) and (budget >= sm[k][1] or g >= 14 + 4 * sm[k][2]):
                    fill[g].append(sm[k][0]); budget -= sm[k][1]; k += 1
            assert k == len(sm)
            mx = max_ops(nxt)
            gs = [24, 24, 25, 25, 26, 26, 27, 27, 28, 28, 29, 29, 30, 30, 30, 31]
            for x, g in zip(mx, gs): fill[g].append(x)
            fill[31].append('v_cmp_lt_f32 vcc, s%d, v%d' % (sThr, vMax))
            Sched(a, POOL, la=6).run(mf, reads, pre, fill)
            lab = 'L_rare%d' % j
            a('s_cbranch_vccnz %s' % lab)
            a.label(lab + '_ret')
            rare.append((lab, nxt))
        else:
            reads, mf = pv_parts(j, 0)
            fill = {i: [] for i in range(16)}
            pre = [x[0] for x in sm if x[2] == 0]
            k = len(pre)
            for g in range(16):
                budget = 8
                while k < len(sm) and (budget >= sm[k][1] or g >= 4 * sm[k][2] - 2):
                    fill[g].append(sm[k][0]); budget -= sm[k][1]; k += 1
            Sched(a, POOL, la=6).run(mf, reads, pre, fill)

    a('s_mov_b32 s%d, 0' % sCnt)
    a.label('L_at')
    iteration(0); iteration(1); iteration(2)
    a('s_cmp_eq_u32 s%d, 7' % sCnt)
    a('s_cbranch_scc1 L_at_last')
    iteration(3)
    a('s_add_u32 s%d, s%d, 1' % (sCnt, sCnt))
    a('s_branch L_at')
    a.label('L_at_last')
    iteration(3, last=True)
    stamp(a, 3, NST, SST, 44)
    a('v_mov_b32 v%d, v%d' % (vTmp, vL))
    a('s_nop 1')
    a('v_permlane32_swap_b32 v%d, v%d' % (vL, vTmp))
    a('s_nop 1')
    a('v_add_f32 v%d, v%d, v%d' % (vL, vL, vTmp))
    a('v_rcp_f32 v%d, v%d' % (vAlpha, vL))
    a('s_lshl_b32 s3, s%d, 2' % sB)
    a('s_add_u32 s3, s3, s%d' % sWave)
    a('s_lshl_b32 s3, s3, 18')
    a('s_lshl_b32 s4, s%d, 13' % sH)
    a('s_add_u32 s%d, s3, s4' % sOb)
    a('s_add_u32 s%d, s%d, 4096' % (sT0, sOb))
    a('s_nop 7')
    for db in range(4):
        t = vS[0] + 16 * db
        for r in range(16): a('v_accvgpr_read_b32 v%d, a%d' % (t + r, 16 * db + r))
        for r in range(16): a('v_mul_f32 v%d, v%d, v%d' % (t + r, vAlpha, t + r))
        for r in range(0, 16, 2):
            a('v_cvt_pk_bf16_f32 v%d, v%d, v%d' % (vQ + 8 * db + r // 2, t + r, t + r + 1))
        for hm in range(2):
            m = 2 * db + hm
            a('buffer_store_dwordx4 %s, v%d, %s, s%d offen offset:%d %s' % (vr(vQ + 4 * m, 4), vOoff, sr(SO, 4), sOb if m < 4 else sT0, (m & 3) * 1024, pol('opol')))
    if OPT['stamps']:
        a('s_waitcnt vmcnt(0)')
        stamp(a, 4, NST, SST, 44)
    a.label('L_k1_end')
    a('s_endpgm')
    for lab, S in rare:
        a.label(lab)
        a('s_nop 15')
        rowmax()
        a('v_max_f32 v%d, 0, v%d' % (vDelta, vMax))
        a('v_sub_f32 v%d, 0, v%d' % (vTmp, vDelta))
        a('v_exp_f32 v%d, v%d' % (vAlpha, vTmp))
        for j in range(32): a('v_sub_f32 v%d, v%d, v%d' % (S + j, S + j, vDelta))
        for j in range(16): a('v_sub_f32 v%d, v%d, v%d' % (vNegM + j, vNegM + j, vDelta))
        a('v_mul_f32 v%d, v%d, v%d' % (vL, vL, vAlpha))
        for j in range(0, 64, 4):
            for k in range(4): a('v_accvgpr_read_b32 v%d, a%d' % (2 + k, j + k))
            for k in range(4): a('v_mul_f32 v%d, v%d, v%d' % (2 + k, 2 + k, vAlpha))
            for k in range(4): a('v_accvgpr_write_b32 a%d, v%d' % (j + k, 2 + k))
        a('s_nop 3')
        a('s_branch %s_ret' % lab)
    return NAME, descriptor(NAME, 320, 256)

def k2(a):
    NAME = 'oproj_kernel'
    header(a, NAME)
    SOa, SWo, SOut, SST = 8, 12, 16, 64
    sWave, sLdsW, sWoff, sO0, sO1, sCnt, sMt, sNt, sT0 = 29, 30, 31, 32, 33, 34, 35, 36, 37
    vWoff, vOoff, vTaddr = 10, 14, 16
    vB = 32
    POOL = [160 + 4 * i for i in range(8)]
    ACC = 192
    DEPTH = 7
    NST = 8
    a('s_cmp_ge_u32 s2, 256')
    a('s_cbranch_scc1 L_k2_end')
    a('s_load_dwordx4 s[40:43], s[0:1], 32')
    a('s_load_dwordx2 s[44:45], s[0:1], 56')
    a('v_lshrrev_b32 v2, 6, v0')
    a('v_and_b32 v1, 63, v0')
    a('v_readfirstlane_b32 s%d, v2' % sWave)
    a('s_and_b32 s3, s2, 4')
    a('s_lshl_b32 s3, s3, 1')
    a('s_lshr_b32 s4, s2, 3')
    a('s_and_b32 s5, s4, 7')
    a('s_add_u32 s%d, s3, s5' % sMt)
    a('s_and_b32 s3, s2, 3')
    a('s_lshl_b32 s3, s3, 2')
    a('s_lshr_b32 s4, s4, 3')
    a('s_add_u32 s%d, s3, s4' % sNt)
    a('s_lshl_b32 s%d, s%d, 15' % (sLdsW, sWave))
    a('v_lshrrev_b32 v2, 3, v1')
    a('v_and_b32 v3, 7, v1')
    a('v_lshrrev_b32 v4, 2, v1')
    a('v_and_b32 v4, 4, v4')
    a('v_xor_b32 v3, v3, v4')
    a('v_lshlrev_b32 v3, 4, v3')
    a('v_lshl_add_u32 v%d, v2, 11, v3' % vWoff)
    for i in range(1, 4): a('v_add_u32 v%d, %d, v%d' % (vWoff + i, i * (16384 - 1024), vWoff))
    a('v_lshlrev_b32 v%d, 4, v1' % vOoff)
    a('s_lshl_b32 s3, s%d, 21' % sWave)
    a('s_lshl_b32 s4, s%d, 7' % sNt)
    a('s_add_u32 s%d, s3, s4' % sWoff)
    a('s_lshl_b32 s3, s%d, 19' % sMt)
    a('s_lshl_b32 s4, s%d, 16' % sWave)
    a('s_add_u32 s%d, s3, s4' % sO0)
    a('s_add_u32 s%d, s%d, 0x40000' % (sO1, sO0))
    a('s_waitcnt lgkmcnt(0)')
    a('s_mov_b32 s%d, s44' % SOa); a('s_mov_b32 s%d, s45' % (SOa + 1))
    a('s_mov_b32 s%d, 0x800000' % (SOa + 2)); a('s_mov_b32 s%d, 0x00020000' % (SOa + 3))
    a('s_mov_b32 s%d, s40' % SWo); a('s_mov_b32 s%d, s41' % (SWo + 1))
    a('s_mov_b32 s%d, 0x800000' % (SWo + 2)); a('s_mov_b32 s%d, 0x00020000' % (SWo + 3))
    a('s_mov_b32 s%d, s42' % SOut); a('s_mov_b32 s%d, s43' % (SOut + 1))
    a('s_mov_b32 s%d, 0x200000' % (SOut + 2)); a('s_mov_b32 s%d, 0x00020000' % (SOut + 3))
    if OPT['stamps']:
        a('s_add_u32 s%d, s44, %d' % (SST, STAMP_OFF)); a('s_addc_u32 s%d, s45, 0' % (SST + 1))
        a('s_mov_b32 s%d, 0x100000' % (SST + 2)); a('s_mov_b32 s%d, 0x00020000' % (SST + 3))
    def loads(slot):
        out = ['s_add_u32 m0, s%d, %d' % (sLdsW, slot * 4096)]
        for ks in range(2):
            for qb in range(2):
                out.append('buffer_load_dwordx4 %s, v%d, %s, s%d offen offset:%d %s' % (vr(vB + 16 * slot + 8 * ks + 4 * qb, 4), vOoff, sr(SOa, 4), sO1 if qb else sO0, ks * 1024, pol('k2pol')))
        for i in range(4):
            out.append('buffer_load_dwordx4 v%d, %s, s%d offen offset:%d %s lds' % (vWoff + i, sr(SWo, 4), sWoff, i * 1024, pol('k2pol')))
        out.append('s_add_u32 s%d, s%d, 2048' % (sO0, sO0))
        out.append('s_add_u32 s%d, s%d, 2048' % (sO1, sO1))
        out.append('s_add_u32 s%d, s%d, 0x10000' % (sWoff, sWoff))
        return out
    stamp(a, 5, NST, SST, 44)
    for c in range(DEPTH):
        for x in loads(c): a(x)
    a('v_lshrrev_b32 v3, 5, v1')
    a('v_lshrrev_b32 v4, 2, v1')
    a('v_and_b32 v4, 3, v4')
    a('v_lshl_add_u32 v5, v3, 3, v4')
    a('v_lshlrev_b32 v5, 7, v5')
    a('v_and_b32 v6, 1, v1')
    a('v_lshl_add_u32 v5, v6, 3, v5')
    a('v_add_u32 v5, s%d, v5' % sLdsW)
    a('v_lshrrev_b32 v6, 3, v1')
    a('v_and_b32 v6, 2, v6')
    a('v_lshrrev_b32 v7, 1, v1')
    a('v_and_b32 v7, 1, v7')
    a('v_or_b32 v6, v6, v7')
    a('v_and_b32 v7, 2, v4')
    a('v_lshl_add_u32 v6, v7, 1, v6')
    for nb in range(2):
        a('v_xor_b32 v7, %d, v6' % (4 * nb))
        a('v_lshl_add_u32 v%d, v7, 4, v5' % (vTaddr + nb))
    for i in range(64): a('v_mov_b32 v%d, 0' % (ACC + i))
    a('s_mov_b32 s%d, 0' % sCnt)
    a.label('L_k2')
    def chunk(slot, issue_next, vm):
        a('s_waitcnt vmcnt(%d)' % vm)
        reads = []; mf = []
        for ks in range(2):
            for nb in range(2):
                i = len(mf)
                ri = len(reads)
                reads.append(dict(ins=['ds_read_b64_tr_b16 {d0}, v%d offset:%d' % (vTaddr + nb, slot * 4096 + ks * 2048),
                                       'ds_read_b64_tr_b16 {d1}, v%d offset:%d' % (vTaddr + nb, slot * 4096 + ks * 2048 + 512)], first=i, last=i + 1))
                for qb in range(2):
                    acc = vr(ACC + 32 * nb + 16 * qb, 16)
                    mf.append(dict(fmt='%s %s, {r0}, %s, %s' % (MFMA, acc, vr(vB + 16 * slot + 8 * ks + 4 * qb, 4), acc), uses=[ri]))
        pool = POOL[4 * (slot & 1): 4 * (slot & 1) + 4]
        pre = loads((slot + DEPTH) & 7) if issue_next else []
        Sched(a, pool, la=8, pair=1).run(mf, reads, pre, {})
    for s in range(8):
        chunk(s, True, 8 * (DEPTH - 1))
    a('s_add_u32 s%d, s%d, 1' % (sCnt, sCnt))
    a('s_cmp_lt_u32 s%d, 3' % sCnt)
    a('s_cbranch_scc1 L_k2')
    chunk(0, True, 8 * (DEPTH - 1))
    for s in range(1, 8):
        chunk(s, False, 8 * (7 - s))
    stamp(a, 6, NST, SST, 44)
    RS = 272
    a('s_barrier')
    a('v_and_b32 v2, 31, v1')
    a('v_lshrrev_b32 v3, 5, v1')
    a('v_mul_u32_u24 v2, %d, v2' % RS)
    a('v_lshl_add_u32 v2, v3, 4, v2')
    a('s_mul_i32 s3, s%d, %d' % (sWave, 64 * RS))
    a('v_add_u32 v2, s3, v2')
    a('s_nop 7')
    for nb in range(2):
        for qb in range(2):
            for g in range(4):
                a('ds_write_b128 v2, %s offset:%d' % (vr(ACC + 32 * nb + 16 * qb + 4 * g, 4), qb * 32 * RS + nb * 128 + g * 32))
    a('s_waitcnt lgkmcnt(0)')
    a('s_barrier')
    a('v_lshrrev_b32 v2, 2, v0')
    a('v_and_b32 v3, 3, v0')
    a('v_mul_u32_u24 v4, %d, v2' % RS)
    a('v_lshl_add_u32 v4, v3, 6, v4')
    for w in range(4):
        for g in range(4):
            a('ds_read_b128 %s, v4 offset:%d' % (vr(32 + 16 * w + 4 * g, 4), w * 64 * RS + g * 16))
    a('v_lshlrev_b32 v2, 11, v2')
    a('v_lshl_add_u32 v2, v3, 5, v2')
    a('s_lshl_b32 s3, s%d, 17' % sMt)
    a('s_lshl_b32 s4, s%d, 7' % sNt)
    a('s_add_u32 s3, s3, s4')
    a('s_waitcnt lgkmcnt(0)')
    for j in range(16):
        a('v_add_f32 v%d, v%d, v%d' % (32 + j, 32 + j, 48 + j))
        a('v_add_f32 v%d, v%d, v%d' % (64 + j, 64 + j, 80 + j))
    for j in range(16):
        a('v_add_f32 v%d, v%d, v%d' % (32 + j, 32 + j, 64 + j))
    for j in range(8):
        a('v_cvt_pk_bf16_f32 v%d, v%d, v%d' % (96 + j, 32 + 2 * j, 33 + 2 * j))
    a('buffer_store_dwordx4 v[96:99], v2, %s, s3 offen' % sr(SOut, 4))
    a('buffer_store_dwordx4 v[100:103], v2, %s, s3 offen offset:16' % sr(SOut, 4))
    if OPT['stamps']:
        a('s_waitcnt vmcnt(0)')
        stamp(a, 7, NST, SST, 44)
    a.label('L_k2_end')
    a('s_endpgm')
    return NAME, descriptor(NAME, 256, 256)

def main():
    a = Asm()
    n1, d1 = k1(a)
    n2, d2 = k2(a)
    import io, contextlib
    buf = io.StringIO()
    with contextlib.redirect_stdout(buf):
        bad = check_program(a)
    sys.stderr.write(buf.getvalue())
    for b in bad: sys.stderr.write('BRANCH HAZARD %s\n' % (b,))
    print('; @launch kernel=%s grid=(256,1,1) block=(256,1,1) lds=131072' % n1)
    print('; @launch kernel=%s grid=(256,1,1) block=(256,1,1) lds=131072' % n2)
    print('.amdgcn_target "amdgcn-amd-amdhsa--gfx950"')
    print('.text')
    print(a.text())
    print('.section .rodata,"a"')
    print(d1); print(d2)
main()
```

```python
import sys, math, struct
from asmlib import *

OPT = dict(kvpol='nt', xwpol='nt', wopol='nt', stamps=0, stag=1, la=7, qla=7, spin=0x8000, nokv=0, psleep=1, sigat=13, stagb=5, nowo=0, jx=0, touch=0, tat=2, tpol='nt', qpm=0, split=1, atm=0, pair=3, cap=6, kv0at=9, fc=0)
for a_ in sys.argv[1:]:
    k, v = a_.split('=')
    OPT[k] = v if not v.lstrip('-').isdigit() else int(v)
def pol(k): return str(OPT[k]).replace('+', ' ').replace('-', '')

def f32bits(x): return struct.unpack('<I', struct.pack('<f', x))[0]
QSCALE = f32bits(math.log2(math.e) / math.sqrt(128.0))
THRESH = f32bits(8.0)
def vr(b, n=1): return 'v%d' % b if n == 1 else 'v[%d:%d]' % (b, b + n - 1)
def ar(b, n=1): return 'a%d' % b if n == 1 else 'a[%d:%d]' % (b, b + n - 1)
def sr(b, n=1): return 's%d' % b if n == 1 else 's[%d:%d]' % (b, b + n - 1)
MFMA = 'v_mfma_f32_32x32x16_bf16'
NAME = 'standalone__mha_block_cached__near_ridge_kernel'

def is_valu(x): return x.startswith('v_') and not x.startswith('v_mfma')
def cost(x):
    if x.endswith(':'): return 0
    return 2 if x.startswith('v_exp') else 1

def sched(a, mf, reads, la, npre=0, pre=(), fill=None, events=None, pair=2, small=None, raw=False, evrange=None):
    fill = fill or {}; events = events or {}; small = small or {}
    issued = []
    for k in range(npre): issued += [k] * len(reads[k]['ins'])
    st = dict(done=0, nxt=npre)
    def issue(cur):
        while st['nxt'] < len(reads):
            k = st['nxt']; rd = reads[k]
            if rd['first'] > cur + la or rd.get('free', -1) > cur: break
            if len(issued) - st['done'] + len(rd['ins']) > 15: break
            if k in events and evrange is not None and any('s_barrier' in x for x in events[k]): assert evrange[0] <= cur <= evrange[1], ('event gap', cur, evrange)
            for x in events.get(k, []): a(x)
            b = rd['buf']
            for f in rd['ins']:
                a(f.format(d=vr(b, 4), d0=vr(b, 2), d1=vr(b + 2, 2))); issued.append(k)
            st['nxt'] += 1
    lastpos = lambda us: max(k for k, r in enumerate(issued) if r in us) + 1
    def wait_for(i):
        m = mf[i]
        assert all(u < st['nxt'] for u in m['uses']), ('read not issued', i, m, st)
        if m['uses'] and lastpos(set(m['uses'])) > st['done']:
            pos = lastpos(set(m['uses']))
            for j in range(i + 1, min(i + pair, len(mf))):
                if all(u < st['nxt'] for u in mf[j]['uses']): pos = max(pos, lastpos(set(mf[j]['uses'])))
            a('s_waitcnt lgkmcnt(%d)' % (len(issued) - pos)); st['done'] = pos
    def fillers(lst, cur):
        if raw or any(x.endswith(':') for x in lst):
            issue(cur)
            for x in lst: a(x)
            return
        evgap = any(k in events for k in range(st['nxt'], len(reads)) if reads[k]['first'] <= cur + la)
        if evgap: issue(cur)
        for x in lst:
            if not is_valu(x): a(x)
        issue(cur)
        for x in lst:
            if x.startswith('v_exp'): a(x)
        for x in lst:
            if is_valu(x) and not x.startswith('v_exp'): a(x)
    fillers(fill.get(-1, []), -1)
    for x in pre: a(x)
    wait_for(0)
    for i, m in enumerate(mf):
        a(m['fmt'].format(**{'r%d' % k: vr(reads[u]['buf'], 4) for k, u in enumerate(m['uses'])}))
        if i + 1 < len(mf):
            if not all(u < st['nxt'] for u in mf[i + 1]['uses']): issue(i)
            wait_for(i + 1)
        fillers(fill.get(i, []), i)
        if i in small:
            a(small[i][0])
            for x in small[i][1]: a(x)
    assert st['nxt'] == len(reads), (st, len(reads))

def bsched(a, mf, reads, la, npre=0, events=None, fixed=None, streams=(), pair=2, small=None, cap=6, scap=2, evrange=None):
    fixed = {k: list(v) for k, v in (fixed or {}).items()}
    small = small or {}
    n = len(mf)
    t = Asm(); sched(t, mf, reads, la, npre=npre, fill=fixed, events=events, pair=pair)
    load = {g: 0 for g in range(-1, n)}; g = -1
    for i in t.ins:
        if i.kind == 'mfma': g += 1
        elif i.kind != 'none': load[g] += cost(i.text)
    load[n - 1] += load[-1] + 1
    slots = []
    for g in range(n):
        slots.append([g, False, cap - load[g]])
        if g in small: slots.append([g, True, scap])
    need = sum(cost(o[0]) for st in streams for o in st)
    have = sum(max(0, s_[2]) for s_ in slots)
    extra = max(0, need - have)
    fill = {g: list(fixed.get(g, [])) for g in range(-1, n)}
    sfill = {g: [] for g in small}
    pos = [0] * len(streams)
    lastgap = [-1] * len(streams)
    for si, (g, sm_, room) in enumerate(slots):
        while True:
            cand = []
            for k in range(len(streams)):
                if pos[k] >= len(streams[k]): continue
                op = streams[k][pos[k]]
                if op[1] > g: continue
                cand.append((op[2], k))
            if not cand: break
            cand.sort()
            ok = False
            for dl, k in cand:
                op = streams[k][pos[k]]
                forced = dl <= g and (sm_ or g not in small)
                if cost(op[0]) <= room or forced:
                    (sfill[g] if sm_ else fill[g]).append(op[0]); room -= cost(op[0]); pos[k] += 1; ok = True
                    break
            if not ok: break
    assert all(pos[k] == len(streams[k]) for k in range(len(streams))), pos
    sched(a, mf, reads, la, npre=npre, fill=fill, events=events, pair=pair, small={g: (small[g], sfill[g]) for g in small}, evrange=evrange)

STAMP_OFF = 496 * 1024 * 1024
NST = 24

def gen():
    a = Asm()
    a.raw('.globl %s\n.p2align 8\n.type %s,@function' % (NAME, NAME)); a.label(NAME)
    SX, SW, SK, SV, SWS, SWO, SOUT, SDBG, SST = 8, 12, 16, 20, 24, 56, 60, 64, 68
    sWave, sLdsW, sAoff, sBoff, sCnt, sH, sB, sT0, sT1, sOb, sKoff, sVoff, sSlot = 29, 30, 31, 32, 33, 34, 35, 46, 47, 48, 49, 50, 51
    sQs, sThr, sJ, sKg = 52, 51, 54, 55
    sWoP, sWoB, sF1, sF2, sSpin, sEx, sT2, sPb, sTch, sBlk = 72, 73, 74, 75, 76, 78, 80, 81, 82, 83
    vTch = 9
    vLs, vOnes = 248, 252
    sPA, sPB = 44, 45
    vKoff, vVoff, vWoOff = 10, 14, 15
    vKaddr, vTaddr, vWoAddr = 16, 24, 28
    vL, vMax, vTmp, vOoff, vDelta, vAlpha, vFl = 29, 30, 31, 32, 33, 34, 35
    vQ, vNegM, vS, vO = 40, 72, [88, 120], 152
    POOL = [216 + 4 * i for i in range(8)]
    vXoff, vWoff, vXaddr, vTw = vQ, vQ + 4, vQ + 24, vQ + 28
    vOaddr = vNegM
    AUX, BB = 65536, 98304
    vs = lambda t: (t + 3) & 3
    WS_O, WS_P, WS_F1, WS_F2, WS_C = 0, 0x800000, 0x1800000, 0x1810000, 0x1820000
    SC, sCo, sTgt, vCoff, vOne, PRE, FC = 40, 28, 77, 29, 35, 8, OPT['fc']
    sG1, sG2, vPst, vPrg = 6, 7, 35, 5

    def stamp(idx, dyn=None):
        if not OPT['stamps']: return
        lab = 'L_st%d' % idx
        a('s_cmp_lg_u32 s%d, 0' % sWave); a('s_cbranch_scc1 %s' % lab)
        a('s_memtime s[84:85]' if OPT['stamps'] == 2 else 's_memrealtime s[84:85]')
        a('s_waitcnt lgkmcnt(0)')
        t = 244 if idx == 0 else 6
        a('v_mov_b32 v%d, s84' % t); a('v_mov_b32 v%d, s85' % (t + 1)); a('v_mov_b32 v%d, 0' % (t + 2))
        a('s_mul_i32 s86, s2, %d' % (NST * 8)); a('s_add_u32 s86, s86, %d' % (idx * 8))
        if dyn is not None:
            a('s_lshl_b32 s87, s%d, 3' % dyn); a('s_add_u32 s86, s86, s87')
        a('buffer_store_dwordx2 %s, v%d, %s, s86 offen' % (vr(t, 2), t + 2, sr(SST, 4)))
        a.label(lab)
    def srd(d, lo, hi, off, size):
        if off is None:
            a('s_mov_b32 s%d, s%d' % (d, lo)); a('s_mov_b32 s%d, s%d' % (d + 1, hi))
        else:
            a('s_add_u32 s%d, s%d, %s' % (d, lo, off)); a('s_addc_u32 s%d, s%d, 0' % (d + 1, hi))
        if size is not None: a('s_mov_b32 s%d, %s' % (d + 2, size))
        a('s_mov_b32 s%d, 0x00020000' % (d + 3))

    a('s_cmp_ge_u32 s2, 256')
    a('s_cbranch_scc1 L_end')
    a('s_load_dwordx8 s[36:43], s[0:1], 0')
    a('s_load_dwordx8 s[88:95], s[0:1], 32')
    a('v_lshrrev_b32 v2, 6, v0')
    a('v_and_b32 v1, 63, v0')
    a('v_readfirstlane_b32 s%d, v2' % sWave)
    a('s_and_b32 s%d, s2, 3' % sKg)
    a('s_lshl_b32 s3, s%d, 3' % sKg)
    a('s_lshr_b32 s4, s2, 3')
    a('s_and_b32 s%d, s4, 7' % sJ)
    if OPT['jx']: a('s_xor_b32 s%d, s%d, %d' % (sJ, sJ, OPT['jx']))
    a('s_add_u32 s%d, s3, s%d' % (sH, sJ))
    a('s_and_b32 s3, s2, 4')
    a('s_lshr_b32 s4, s4, 3')
    a('s_add_u32 s%d, s3, s4' % sB)
    a('s_lshl_b32 s%d, s%d, 12' % (sLdsW, sWave))
    a('v_lshrrev_b32 v2, 4, v1')
    a('v_and_b32 v3, 15, v1')
    a('v_lshrrev_b32 v4, 3, v1')
    a('v_and_b32 v5, 7, v1')
    a('v_lshlrev_b32 v6, 2, v2')
    a('v_xor_b32 v6, v6, v3')
    a('v_lshlrev_b32 v6, 4, v6')
    a('s_lshl_b32 s3, s%d, 17' % sWave)
    a('v_lshl_add_u32 v7, v2, 13, v6')
    a('v_add_u32 v%d, s3, v7' % vWoff)
    for i in range(1, 4): a('v_add_u32 v%d, %d, v%d' % (vWoff + i, i * (32768 - 1024), vWoff))
    a('s_lshl_b32 s3, s%d, 16' % sWave)
    a('v_xor_b32 v7, v2, v5')
    a('v_xor_b32 v8, 4, v7')
    a('v_lshlrev_b32 v7, 4, v7'); a('v_lshlrev_b32 v8, 4, v8')
    a('v_lshl_add_u32 v7, v4, 11, v7'); a('v_lshl_add_u32 v8, v4, 11, v8')
    a('v_add_u32 v%d, s3, v7' % vXoff); a('v_add_u32 v8, s3, v8')
    a('v_add_u32 v%d, %d, v8' % (vXoff + 1, 1 * (16384 - 1024)))
    a('v_add_u32 v%d, %d, v%d' % (vXoff + 2, 2 * (16384 - 1024), vXoff))
    a('v_add_u32 v%d, %d, v8' % (vXoff + 3, 3 * (16384 - 1024)))
    if OPT['stag']:
        a('s_lshl_b32 s3, s%d, 1' % sH); a('s_mul_i32 s4, s%d, %d' % (sB, OPT['stagb'])); a('s_add_u32 s3, s3, s4'); a('s_and_b32 s3, s3, 15')
        a('s_lshl_b32 s%d, s3, 7' % sAoff); a('s_lshl_b32 s%d, s3, 19' % sBoff)
    else:
        a('s_mov_b32 s%d, 0' % sAoff); a('s_mov_b32 s%d, 0' % sBoff)
    a('s_lshl_b32 s5, s%d, 18' % sB)
    a('s_lshl_b32 s6, s%d, 8' % sH)
    a('s_sub_u32 s%d, 0x800000, s6' % (SW + 2))
    a('s_waitcnt lgkmcnt(0)')
    srd(SX, 36, 37, 's5', '0x40000')
    srd(SW, 42, 43, 's6', None)

    XST = [16384, 32768, 49152, 65536]
    WST = [BB, BB + 16384, BB + 32768, BB - 16384]
    def dma_xw(st):
        out = ['s_add_u32 m0, s%d, %d' % (sLdsW, XST[st]), 's_lshl_b32 s%d, s%d, 12' % (sBoff, sAoff)]
        for i in range(4):
            out.append('buffer_load_dwordx4 v%d, %s, s%d offen offset:%d %s lds' % (vXoff + i, sr(SX, 4), sAoff, i * 1024, pol('xwpol')))
        out += ['s_add_u32 m0, s%d, %d' % (sLdsW, WST[st]), 's_add_u32 s%d, s%d, 128' % (sAoff, sAoff)]
        for i in range(4):
            out.append('buffer_load_dwordx4 v%d, %s, s%d offen offset:%d %s lds' % (vWoff + i, sr(SW, 4), sBoff, i * 1024, pol('xwpol')))
            if i == 0: out.append('s_and_b32 s%d, s%d, 0x7ff' % (sAoff, sAoff))
        return out
    def dma_k(m0src):
        out = [m0src, 's_cmp_lt_u32 s%d, 0x80000' % sKoff, 's_cselect_b32 s%d, %s, 0' % (SK + 2, '0' if OPT['nokv'] else '0x80000')]
        for i in range(4):
            out.append('buffer_load_dwordx4 v%d, %s, s%d offen offset:%d %s lds' % (vKoff + i, sr(SK, 4), sKoff, i * 1024, pol('kvpol')))
        out.append('s_add_u32 s%d, s%d, 0x4000' % (sKoff, sKoff))
        return out
    def dma_v(m0src):
        out = [m0src, 's_cmp_lt_u32 s%d, 0x80000' % sVoff, 's_cselect_b32 s%d, %s, 0' % (SV + 2, '0' if OPT['nokv'] else '0x80000')]
        for i in range(4):
            out.append('buffer_load_dwordx4 v%d, %s, s%d offen offset:%d %s lds' % (vVoff, sr(SV, 4), sVoff, i * 1024, pol('kvpol')))
        out.append('s_add_u32 s%d, s%d, 0x4000' % (sVoff, sVoff))
        return out
    def dma_wo():
        out = ['s_lshl_b32 s%d, s%d, 18' % (sT2, sWoP),
               's_add_u32 s%d, s%d, s%d' % (sT2, sT2, sWoB),
               's_cmp_lt_u32 s%d, 8' % sWoP, 's_cselect_b32 s%d, %s, 0' % (SWO + 2, '0' if OPT['nowo'] else '0x800000'),
               's_lshl_b32 m0, s%d, 1' % sLdsW, 's_add_u32 m0, m0, %d' % AUX, 's_add_u32 s%d, s%d, 1' % (sWoP, sWoP)]
        for i in range(8):
            if i == 4: out.append('s_add_u32 m0, m0, 4096')
            if i: out.append('s_add_u32 s%d, s%d, %d' % (sT2, sT2, 8192 - 1024 + (4096 if i == 4 else 0)))
            out.append('buffer_load_dwordx4 v%d, %s, s%d offen offset:%d %s lds' % (vWoOff, sr(SWO, 4), sT2, (i & 3) * 1024, pol('wopol')))
        return out
    def touch_wo():
        if not OPT['touch']: return []
        return ['s_lshl_b32 s%d, s%d, 18' % (sT2, sWoP), 's_add_u32 s%d, s%d, s%d' % (sT2, sT2, sTch),
                's_cmp_lt_u32 s%d, 8' % sWoP, 's_cselect_b32 s%d, 0x800000, 0' % (SWO + 2),
                'buffer_load_dword v35, v%d, %s, s%d offen %s' % (vTch, sr(SWO, 4), sT2, pol('tpol'))]
    def groups(lst):
        gs = [[]]
        for x in lst:
            gs[-1].append(x)
            if x.startswith('buffer'): gs.append([])
        if gs[-1]: gs[-2] += gs[-1]
        return gs[:-1]

    for c in range(3):
        for g in groups(dma_xw(c))[:8 if c < 2 else 3]:
            for x in g: a(x)
    a('s_lshl_b32 s3, s%d, 5' % sB); a('s_add_u32 s3, s3, s%d' % sH); a('s_lshl_b32 s3, s3, 19')
    srd(SK, 38, 39, 's3', '0x80000'); srd(SV, 40, 41, 's3', '0x80000')
    srd(SWS, 94, 95, None, '0x2000000'); srd(SWO, 88, 89, None, '0x800000'); srd(SOUT, 90, 91, None, '0x200000'); srd(SDBG, 92, 93, None, '256')
    if OPT['stamps']: srd(SST, 94, 95, str(STAMP_OFF), '0x100000')
    stamp(0)
    if OPT['stamps']:
        a('s_getreg_b32 s84, hwreg(HW_REG_HW_ID)'); a('s_getreg_b32 s85, hwreg(HW_REG_XCC_ID)')
        a('v_mov_b32 v240, s84'); a('v_mov_b32 v241, s85'); a('v_mov_b32 v242, 0')
        a('s_mul_i32 s86, s2, %d' % (NST * 8)); a('s_add_u32 s86, s86, %d' % (20 * 8)); a('s_lshl_b32 s87, s%d, 3' % sWave); a('s_add_u32 s86, s86, s87')
        a('buffer_store_dwordx2 v[240:241], v242, %s, s86 offen' % sr(SST, 4))
    a('s_lshl_b32 s3, s%d, 2' % sB); a('s_add_u32 s3, s3, s%d' % sKg); a('s_lshl_b32 s3, s3, 10'); a('s_lshl_b32 s4, s%d, 8' % sWave)
    a('s_add_u32 s3, s3, s4'); a('s_add_u32 s%d, s3, 0x%x' % (sF1, WS_F1))
    a('s_lshl_b32 s3, s%d, 3' % sB); a('s_add_u32 s3, s3, s%d' % sJ); a('s_lshl_b32 s3, s3, 10'); a('s_lshl_b32 s4, s%d, 8' % sWave)
    a('s_add_u32 s3, s3, s4'); a('s_add_u32 s%d, s3, 0x%x' % (sF2, WS_F2))
    a('s_lshl_b32 s3, s%d, 2' % sJ); a('s_lshl_b32 s4, s%d, 2' % sKg)
    a('v_mov_b32 v36, s3'); a('v_mov_b32 v37, s4'); a('v_mov_b32 v38, 0'); a('v_mov_b32 v39, 0')
    a('s_mov_b64 %s, exec' % sr(sEx, 2)); a('s_mov_b64 exec, 1')
    a('buffer_atomic_swap v38, v36, %s, s%d offen sc0 sc1' % (sr(SWS, 4), sF1))
    a('buffer_atomic_swap v39, v37, %s, s%d offen sc0 sc1' % (sr(SWS, 4), sF2))
    if FC:
        a('s_lshl_b32 s3, s%d, 2' % sB); a('s_add_u32 s3, s3, s%d' % sKg); a('s_lshl_b32 s%d, s3, 8' % sG1)
        a('s_lshl_b32 s3, s%d, 3' % sB); a('s_add_u32 s3, s3, s%d' % sJ); a('s_lshl_b32 s3, s3, 8'); a('s_add_u32 s%d, s3, 0x4000' % sG2)
        a('v_mov_b32 v35, 0'); a('v_mov_b32 v29, 0')
        a('s_add_u32 s3, s%d, 0x%x' % (sG1, WS_C)); a('s_add_u32 s4, s%d, 0x%x' % (sG2, WS_C))
        a('s_cmp_lg_u32 s%d, 0' % sWave); a('s_cbranch_scc1 L_noc')
        a('buffer_atomic_swap v35, v36, %s, s3 offen sc0 sc1' % sr(SWS, 4))
        a('buffer_atomic_swap v29, v37, %s, s4 offen sc0 sc1' % sr(SWS, 4))
        a.label('L_noc')
    a('s_mov_b64 exec, %s' % sr(sEx, 2))
    a('s_mov_b32 s%d, 0' % sKoff); a('s_mov_b32 s%d, 0' % sVoff); a('s_mov_b32 s%d, 0' % sWoP)
    a('s_lshl_b32 s3, s%d, 21' % sKg); a('s_lshl_b32 s4, s%d, 16' % sWave); a('s_add_u32 s%d, s3, s4' % sWoB)
    if OPT['split']:
        a('s_lshr_b32 s3, s%d, 1' % sJ); a('s_and_b32 s4, s%d, 1' % sJ); a('s_lshl_b32 s4, s4, 2'); a('s_add_u32 s3, s3, s4')
        a('s_lshl_b32 s%d, s3, 7' % sPA)
        a('s_add_u32 s3, s3, 2'); a('s_and_b32 s3, s3, 7'); a('s_add_u32 s3, s3, 7'); a('s_lshl_b32 s%d, s3, 7' % sPB)
    else:
        a('s_lshl_b32 s%d, s%d, 8' % (sPA, sJ)); a('s_mov_b32 s%d, s%d' % (sPB, sPA))
    a('s_lshr_b32 s3, s2, 3'); a('s_lshl_b32 s3, s3, 2'); a('s_add_u32 s3, s3, s%d' % sWave); a('s_lshl_b32 s3, s3, 11')
    a('s_lshl_b32 s4, s%d, 21' % sKg); a('s_add_u32 s%d, s3, s4' % sTch)
    a('v_lshlrev_b32 v%d, 5, v1' % vTch)
    a('v_lshl_add_u32 v7, v2, 8, v6'); a('v_add_u32 v%d, s%d, v7' % (vVoff, sLdsW))
    a('v_lshl_add_u32 v%d, v2, 11, v6' % vWoOff)
    a('v_mov_b32 v7, s%d' % sPA); a('v_mov_b32 v8, s%d' % sPB)
    a('v_cmp_gt_u32 vcc, 128, v6')
    a('v_cndmask_b32 v7, v8, v7, vcc')
    a('v_add_u32 v%d, v7, v%d' % (vWoOff, vWoOff))
    a('v_xor_b32 v6, v2, v3')
    for i in range(4):
        a('v_xor_b32 v7, %d, v6' % (4 * i)); a('v_lshlrev_b32 v7, 4, v7'); a('v_lshl_add_u32 v7, v2, 8, v7')
        a('v_add_u32 v%d, s%d, v7' % (vKoff + i, sLdsW))
    a('v_and_b32 v2, 31, v1')
    a('v_lshrrev_b32 v3, 5, v1')
    a('v_and_b32 v4, 19, v2'); a('v_and_b32 v5, 4, v2'); a('v_lshlrev_b32 v5, 1, v5'); a('v_or_b32 v4, v4, v5')
    a('v_and_b32 v5, 8, v2'); a('v_lshrrev_b32 v5, 1, v5'); a('v_or_b32 v4, v4, v5')
    a('v_and_b32 v5, 15, v4'); a('v_xor_b32 v5, v5, v3')
    for m in range(8):
        a('v_xor_b32 v6, %d, v5' % (2 * m)); a('v_lshlrev_b32 v6, 4, v6'); a('v_lshl_add_u32 v%d, v4, 8, v6' % (vKaddr + m))
    a('v_lshrrev_b32 v5, 1, v2'); a('v_and_b32 v5, 7, v5'); a('v_xor_b32 v5, v5, v3')
    for ks in range(4):
        a('v_xor_b32 v6, %d, v5' % (2 * ks)); a('v_lshlrev_b32 v6, 4, v6'); a('v_lshl_add_u32 v6, v2, 7, v6')
        a('v_add_u32 v6, s%d, v6' % sLdsW); a('v_add_u32 v%d, 0x4000, v6' % (vXaddr + ks))
    a('v_lshrrev_b32 v4, 2, v1'); a('v_and_b32 v4, 3, v4')
    a('v_lshl_add_u32 v5, v3, 3, v4'); a('v_lshlrev_b32 v5, 8, v5')
    a('v_and_b32 v6, 2, v1'); a('v_lshl_add_u32 v5, v6, 2, v5')
    a('v_lshrrev_b32 v6, 3, v1'); a('v_and_b32 v6, 2, v6'); a('v_and_b32 v7, 1, v1'); a('v_or_b32 v6, v6, v7')
    a('v_lshl_add_u32 v6, v4, 2, v6')
    a('v_add_u32 v8, %d, v5' % BB)
    for db in range(4):
        a('v_xor_b32 v7, %d, v6' % (4 * db)); a('v_lshl_add_u32 v%d, v7, 4, v8' % (vTaddr + db))
    a('v_and_b32 v6, 1, v1'); a('v_lshlrev_b32 v6, 1, v6'); a('v_lshrrev_b32 v7, 4, v1'); a('v_and_b32 v7, 1, v7'); a('v_or_b32 v6, v6, v7')
    a('v_lshl_add_u32 v6, v4, 2, v6')
    a('s_lshl_b32 s3, s%d, 2' % sWave)
    a('v_xor_b32 v6, s3, v6')
    a('v_add_u32 v8, 0x%x, v5' % AUX)
    a('v_lshl_add_u32 v%d, v6, 4, v8' % vWoAddr)
    a('v_lshlrev_b32 v%d, 4, v1' % vOoff)
    for i in range(64): a('v_mov_b32 v%d, 0' % (vS[0] + i))
    for k in range(4): a('v_add_u32 v%d, -16384, v%d' % (vTw + k, vTaddr + k))
    a('s_mov_b32 s%d, 0x%08x' % (sQs, QSCALE)); a('s_mov_b32 s%d, 0x%08x' % (sQs + 1, QSCALE)); a('s_mov_b32 s%d, 0x%08x' % (sThr, THRESH))
    for k in range(4): a('v_mov_b32 v%d, 0' % (vLs + k))
    a('v_lshrrev_b32 v6, 2, v1'); a('v_lshrrev_b32 v7, 4, v1'); a('v_xor_b32 v6, v6, v7'); a('v_and_b32 v6, 1, v6')
    a('v_add_u32 v6, -1, v6'); a('v_and_b32 v%d, 0x3f803f80, v6' % vOnes)
    for k in range(1, 4): a('v_mov_b32 v%d, v%d' % (vOnes + k, vOnes))
    a('s_mov_b32 s%d, 0' % sCnt)

    LA = OPT['la']
    def qk_parts(slot, S, first, base=0):
        reads = []; mf = []
        for kb in range(2):
            for m in range(8):
                i = len(mf)
                reads.append(dict(ins=['ds_read_b128 {d}, v%d offset:%d' % (vKaddr + m, slot * 16384 + kb * 8192)], buf=POOL[i & 7], first=base + i, free=base + i - 8))
                acc = vr(S + 16 * kb, 16)
                c = acc if m else ('0' if first else vr(vNegM, 16))
                mf.append(dict(fmt='%s %s, {r0}, %s, %s' % (MFMA, acc, vr(vQ + 4 * m, 4), c), uses=[base + i]))
        return reads, mf
    def pv_parts(slot, S, base):
        reads = []; mf = []
        slot = vs(slot)
        for u in range(4):
            for db in range(4):
                i = len(mf)
                reads.append(dict(ins=['ds_read_b64_tr_b16 {d0}, v%d offset:%d' % (vTaddr + db, slot * 16384 + u * 4096),
                                       'ds_read_b64_tr_b16 {d1}, v%d offset:%d' % (vTaddr + db, slot * 16384 + u * 4096 + 1024)], buf=POOL[i & 7], first=base + i, free=base + i - 8))
                acc = vr(vO + 16 * db, 16)
                mf.append(dict(fmt='%s %s, {r0}, %s, %s' % (MFMA, acc, vr(S + 8 * u, 4), acc), uses=[base + i]))
        return reads, mf
    def softmax_ops(S):
        ops = []
        for u in range(4):
            b = S + 8 * u
            for h4 in range(2):
                q = b + 4 * h4
                for j in range(4): ops.append(('v_exp_f32 v%d, v%d' % (q + j, q + j), 2, u))
                for j in range(2):
                    ops.append(('v_cvt_pk_bf16_f32 v%d, v%d, v%d' % (b + 2 * h4 + j, q + 2 * j, q + 2 * j + 1), 1, u))
        return ops
    def lsum(S, u):
        return 'v_mfma_f32_16x16x32_bf16 %s, %s, %s, %s' % (vr(vLs, 4), vr(vOnes, 4), vr(S + 8 * u, 4), vr(vLs, 4))
    def max_ops(S):
        ops = ['v_max3_f32 v%d, v%d, v%d, v%d' % (vMax, S, S + 1, S + 2)]
        for j in range(3, 31, 2): ops.append('v_max3_f32 v%d, v%d, v%d, v%d' % (vMax, vMax, S + j, S + j + 1))
        ops.append('v_max_f32 v%d, v%d, v%d' % (vMax, vMax, S + 31))
        return ops
    def rowmax():
        a('v_mov_b32 v%d, v%d' % (vTmp, vMax)); a('s_nop 1')
        a('v_permlane32_swap_b32 v%d, v%d' % (vMax, vTmp)); a('s_nop 1')
        a('v_max_f32 v%d, v%d, v%d' % (vMax, vMax, vTmp))
    def emit_reads(rs):
        for rd in rs:
            for f in rd['ins']: a(f.format(d=vr(rd['buf'], 4), d0=vr(rd['buf'], 2), d1=vr(rd['buf'] + 2, 2)))

    WP = [vO + 4 * i for i in range(16)]
    QLA = OPT['qla']
    def qp_reads(st, base, dbmajor=False):
        reads = []; mf = []; xi = {}
        XP = [vNegM + 4 * k for k in range(4)] if dbmajor else POOL[4 * (st & 1): 4 * (st & 1) + 4]
        order = [(ks, db) for db in range(4) for ks in range(4)] if dbmajor else [(ks, db) for ks in range(4) for db in range(4)]
        for i, (ks, db) in enumerate(order):
            if ks not in xi:
                xi[ks] = len(reads)
                reads.append(dict(ins=['ds_read_b128 {d}, v%d offset:%d' % (vXaddr + ks, XST[st] - 16384)], buf=XP[ks], first=base + i))
            wo_ = WST[st] - (BB - 16384) + ks * 4096
            reads.append(dict(ins=['ds_read_b64_tr_b16 {d0}, v%d offset:%d' % (vTw + db, wo_),
                                   'ds_read_b64_tr_b16 {d1}, v%d offset:%d' % (vTw + db, wo_ + 1024)], buf=WP[i], first=base + i, free=base + i - 16))
            acc = vr(vS[0] + 16 * db, 16)
            mf.append(dict(fmt='%s %s, {r0}, {r1}, %s' % (MFMA, acc, acc), uses=[len(reads) - 1, xi[ks]]))
        return reads, mf
    def npre_of(r, base):
        n = len([x for x in r if x['first'] - base <= QLA - 2])
        while sum(len(x['ins']) for x in r[:n]) > 12: n -= 1
        return n
    gkv = lambda t: groups(dma_k('s_add_u32 m0, s%d, %d' % (sLdsW, (t & 3) * 16384)) + dma_v('s_add_u32 m0, s%d, %d' % (sLdsW, BB + vs(t) * 16384)))
    gxw = lambda c: groups(dma_xw(c & 3))
    def qp_body(c, early, late, tail=(), vm=8, extra=None):
        r0, mf = qp_reads(c & 3, 0); r1, _ = qp_reads((c + 1) & 3, 16, dbmajor=(c == 14))
        fill = {}
        for k, g in enumerate(early): fill[2 * k] = list(g)
        for k, g in enumerate(late): fill[11 + 2 * k] = list(g)
        fill.setdefault(15, []); fill[15] += list(tail)
        ev = ['s_waitcnt vmcnt(%d)' % vm, 's_barrier']
        k1 = OPT['kv0at'] + 1
        if c == k1 and c >= 12: ev = ['s_waitcnt vmcnt(16)', 's_barrier']
        elif c < 4 and k1 < 12 and c == (k1 & 3):
            ev = ['s_cmp_eq_u32 s%d, %d' % (sCnt, k1 >> 2), 's_cbranch_scc1 L_kvw', 's_waitcnt vmcnt(8)', 'L_kvw:', 's_waitcnt vmcnt(16)', 's_barrier']
        sched(a, mf, r0 + r1[:npre_of(r1, 16)], QLA, npre=npre_of(r0, 0), fill=fill, events={len(r0): ev}, evrange=(9, 11))
    r0, _ = qp_reads(0, 0)
    a('s_waitcnt vmcnt(11)')
    a('s_barrier')
    stamp(10)
    emit_reads(r0[:npre_of(r0, 0)])
    a.label('L_qp')
    if OPT['stamps']:
        a('s_cmp_lg_u32 s%d, 2' % sCnt); a('s_cbranch_scc1 L_st11')
        stamp(11)
    for c in range(4):
        qp_body(c, gxw(c + 2)[3:], gxw(c + 3)[:3], ['s_add_u32 s%d, s%d, 1' % (sCnt, sCnt), 's_cmp_lt_u32 s%d, 3' % sCnt] if c == 3 else [])
        if c == 2:
            a('s_or_b32 s3, s%d, s%d' % (sWave, sCnt)); a('s_cbranch_scc1 L_noinit')
            a('v_mov_b32 v38, 1'); a('v_mov_b32 v39, 0')
            a('s_mov_b64 exec, 1')
            a('buffer_atomic_add v38, v39, %s, 0 offen sc1' % sr(SDBG, 4))
            a('s_mov_b64 exec, %s' % sr(sEx, 2))
            a.label('L_noinit')
        if c == OPT['kv0at'] & 3:
            a('s_cmp_lg_u32 s%d, %d' % (sCnt, (OPT['kv0at'] >> 2) + (1 if c == 3 else 0))); a('s_cbranch_scc1 L_nokv0')
            for g in gkv(0):
                for x in g: a(x)
            a('s_add_u32 m0, s%d, %d' % (sLdsW, XST[(c + 3) & 3]))
            a.label('L_nokv0')
            if c == 3: a('s_cmp_lt_u32 s%d, 3' % sCnt)
    a('s_cbranch_scc1 L_qp')
    qp_body(12, gxw(14)[3:], gxw(15)[:3])
    qp_body(13, gxw(15)[3:], gkv(1)[:3])
    qp_body(14, gkv(1)[3:], gkv(2)[:3])
    def pack(db):
        t = vS[0] + 16 * db
        out = []
        for r in range(0, 16, 2):
            out.append('v_pk_mul_f32 %s, %s, %s' % (vr(t + r, 2), vr(t + r, 2), sr(sQs, 2)))
        for r in range(0, 16, 2): out.append('v_cvt_pk_bf16_f32 v%d, v%d, v%d' % (vQ + 8 * db + r // 2, t + r, t + r + 1))
        return out
    r0, mf = qp_reads(3, 0, dbmajor=True)
    rq, mq = qk_parts(0, vS[0], True)
    rq16, _ = qk_parts(0, vS[0], True, base=16)
    for x in rq16: x['free'] = -1
    gk3 = groups(dma_k('s_add_u32 m0, s%d, %d' % (sLdsW, 3 * 16384)))
    fill = {}
    for k, g in enumerate(gkv(2)[3:]): fill[2 * k] = list(g)
    for k in range(3): fill[11 + 2 * k] = list(gk3[k])
    pk = pack(0) + pack(1)
    for g in range(7, 16):
        fill.setdefault(g, []); n = 4 if g < 11 or g & 1 else 5
        if g < 11: n = min(n, max(0, 16 - (32 - len(pk))))
        fill[g] += pk[:n]; pk = pk[n:]
    sched(a, mf, r0 + rq16[:LA], QLA, npre=npre_of(r0, 0), fill=fill, events={len(r0): ['s_barrier']}, evrange=(9, 11))
    stamp(1)
    for x in gk3[3]: a(x)
    for x in pk + pack(2) + pack(3): a(x)
    rn, _ = qk_parts(1, vS[1], False, base=16)
    zero = ['v_mov_b32 v%d, 0' % (vO + i) for i in range(64)]
    fill = {i: zero[4 * i: 4 * i + 4] for i in range(16)}
    mx = max_ops(vS[0])
    for k, g in enumerate((11, 12, 12, 13, 14, 14, 15)): fill[g].append(mx[k])
    sched(a, mq, rq + rn[:LA], LA, npre=LA, fill=fill, events={16: ['s_waitcnt vmcnt(16)', 's_barrier']}, evrange=(0, 12))
    a('s_barrier')
    for x in mx[7:]: a(x)
    rowmax()
    for j in range(16): a('v_sub_f32 v%d, 0, v%d' % (vNegM + j, vMax))
    for j in range(32): a('v_sub_f32 v%d, v%d, v%d' % (vS[0] + j, vS[0] + j, vMax))
    if FC:
        srd(SC, 94, 95, '0x%x' % WS_C, None)
        a('s_cmp_eq_u32 s%d, 0' % sWave); a('s_cselect_b32 s%d, 0x8000, 0' % (SC + 2)); a('s_cselect_b32 s%d, 0xfff, 0' % sTgt)
        a('v_lshlrev_b32 v2, 2, v1'); a('v_add_u32 v3, s%d, v2' % sG1); a('v_add_u32 v4, s%d, v2' % sG2); a('v_add_u32 v4, -32, v4')
        a('v_cmp_gt_u32 vcc, 8, v1'); a('v_cndmask_b32 v%d, v4, v3, vcc' % vCoff)
        a('v_mov_b32 v4, 0x100000'); a('v_cmp_gt_u32 vcc, 12, v1'); a('v_cndmask_b32 v%d, v4, v%d, vcc' % (vCoff, vCoff))
        a('v_add_u32 v2, s%d, v36' % sG1); a('v_add_u32 v3, s%d, v37' % sG2)
        a('v_cmp_eq_u32 vcc, 0, v1'); a('v_cndmask_b32 v%d, v3, v2, vcc' % vPst)
        a('v_cmp_gt_u32 vcc, 2, v1'); a('v_cndmask_b32 v%d, v4, v%d, vcc' % (vPst, vPst))
        a('v_mov_b32 v%d, 0' % vPrg); a('v_mov_b32 v2, 0'); a('v_mov_b32 v3, 0'); a('s_mov_b32 s%d, %d' % (sCo, 1 - FC))
    stamp(2)

    rare = []
    def iteration(j, vm, kind='mid', tag=''):
        cur, nxt = vS[j & 1], vS[(j + 1) & 1]
        sm = softmax_ops(cur)
        if kind != 'last':
            r1, m1 = qk_parts((j + 1) & 3, nxt, False)
            r2, m2 = pv_parts(j, cur, 16)
            if kind == 'mid': r3, _ = qk_parts((j + 2) & 3, cur, False, base=32)
            else: r3, _ = pv_parts((j + 1) & 3, nxt, 32)
            reads, mf = r1 + r2 + r3[:LA], m1 + m2
            st1 = []; ne = 0
            for x, c, u in sm:
                if c == 2: ne += 1
                st1.append((x, 0, min(14 + 4 * u, (ne * 26) // 32 + (0 if c == 2 else 1))))
            mx = max_ops(nxt) + ['v_cmp_lt_f32 vcc, s%d, v%d' % (sThr, vMax)]
            st2 = [(x, 10 if k < 7 else 18, 31) for k, x in enumerate(mx)]
            fixed = {}
            if kind == 'mid':
                gk = groups(dma_k('s_add_u32 m0, s%d, %d' % (sLdsW, j * 16384)))
                gv = groups(dma_v('s_add_u32 m0, s%d, %d' % (sLdsW, BB + vs(j + 3) * 16384)))
                for k in range(4): fixed[1 + 2 * k] = gk[k]
                for k, g in enumerate((27, 28, 30, 31)): fixed[g] = gv[k]
                if j == 0:
                    gw = groups(dma_wo())
                    for k in range(8): fixed[9 + 2 * k] = gw[k]
                if j == OPT['tat']: fixed[25] = touch_wo()
            ev = ['s_waitcnt vmcnt(%d)' % vm, 's_barrier']
            if FC and kind == 'mid':
                fixed[0] = ['buffer_load_dword v%d, v%d, %s, 0 offen sc1' % (2 + (j & 1), vCoff, sr(SC, 4)), 'v_add_u32 v%d, 1, v%d' % (vPrg, vPrg)]
                fixed[29] = ['buffer_store_dword v%d, v%d, %s, 0 offen sc1' % (vPrg, vPst, sr(SC, 4)), 's_add_u32 s%d, s%d, 1' % (sCo, sCo)]
                ev = ['s_waitcnt vmcnt(%d)' % (vm + 1), 'v_cmp_gt_i32 s[4:5], s%d, v%d' % (sCo, 2 + ((j + 1) & 1)), 's_nop 0', 's_and_b32 s4, s4, s%d' % sTgt,
                      's_cbranch_scc1 L_fc%d' % j, 'L_fc%d_ret:' % j, 's_barrier']
            bsched(a, mf, reads, LA, npre=LA, events={32: ev}, fixed=fixed, streams=[st1, st2], pair=OPT['pair'],
                   small={16 + 4 * u: lsum(cur, u) for u in range(4)}, cap=OPT['cap'], evrange=(24, 27))
            lab = 'L_rare%d%s' % (j, tag)
            a('s_cbranch_vccnz %s' % lab)
            a.label(lab + '_ret')
            rare.append((lab, nxt))
        else:
            reads, mf = pv_parts(j, cur, 0)
            fill = {i: [] for i in range(-1, 16)}
            fill[-1] = [x[0] for x in sm if x[2] == 0]
            k = len(fill[-1])
            for g in range(16):
                budget = 8
                while k < len(sm) and (budget >= sm[k][1] or g >= 4 * sm[k][2] - 2):
                    fill[g].append(sm[k][0]); budget -= sm[k][1]; k += 1
            sched(a, mf, reads, LA, npre=LA, fill=fill, small={4 * u: (lsum(cur, u), []) for u in range(4)})

    def wo_block(p):
        for ks in range(8):
            a('ds_read_b64_tr_b16 %s, v%d offset:%d' % (ar(32 * p + 4 * ks, 2), vWoAddr, ks * 4096))
            a('ds_read_b64_tr_b16 %s, v%d offset:%d' % (ar(32 * p + 4 * ks + 2, 2), vWoAddr, ks * 4096 + 1024))
        a('s_waitcnt lgkmcnt(0)')

    def wo_chain(tag):
        a('s_sub_u32 s%d, s%d, s%d' % (sBlk, sCnt, sJ)); a('s_and_b32 s%d, s%d, 7' % (sBlk, sBlk))
        for p in range(8):
            if p < 7:
                a('s_cmp_lg_u32 s%d, %d' % (sBlk, p)); a('s_cbranch_scc1 L_wb%s%d' % (tag, p + 1))
            wo_block(p)
            if p < 7: a('s_branch L_wbdone%s' % tag)
            a.label('L_wb%s%d' % (tag, p + 1) if p < 7 else 'L_wbdone%s' % tag)
    a('s_mov_b32 s%d, 0' % sCnt)
    a.label('L_at')
    stamp(12, sCnt)
    iteration(0, 20)
    iteration(1, 20)
    a('s_cmp_eq_u32 s%d, 7' % sCnt)
    a('s_cbranch_scc1 L_at_last')
    iteration(2, 12)
    wo_chain('a')
    iteration(3, 12)
    a('s_add_u32 s%d, s%d, 1' % (sCnt, sCnt))
    a('s_branch L_at')
    if OPT['atm']:
        n0 = [k for k, i in enumerate(a.ins) if i.text.startswith('L_at:')][0]
        keep = []
        m = OPT['atm']
        for i in a.ins[n0:]:
            if (m & 1) and i.op == 'v_exp_f32': continue
            if (m & 2) and i.kind == 'ds': continue
            if (m & 4) and i.kind == 'vmem' and 'lds' in i.text: continue
            if (m & 8) and i.op == 's_barrier': continue
            if (m & 16) and i.op == 'v_add_f32': continue
            if (m & 32) and i.op.startswith('v_max'): continue
            if (m & 64) and i.op.startswith('v_cvt'): continue
            if (m & 128) and i.op == 's_waitcnt' and 'lgkm' in i.text and 'lgkmcnt(0)' not in i.text: continue
            keep.append(i)
        a.ins[n0:] = keep
    a.label('L_at_last')
    iteration(2, 8, kind='pen', tag='p')
    wo_chain('b')
    iteration(3, 0, kind='last')
    stamp(3)

    a('v_rcp_f32 v%d, v%d' % (vAlpha, vLs))
    a('s_lshl_b32 s3, s%d, 2' % sB); a('s_add_u32 s3, s3, s%d' % sWave); a('s_lshl_b32 s3, s3, 18')
    a('s_lshl_b32 s4, s%d, 16' % sKg); a('s_add_u32 s%d, s3, s4' % sOb)
    a('s_lshl_b32 s4, s%d, 13' % sJ); a('s_add_u32 s%d, s%d, s4' % (sT0, sOb)); a('s_add_u32 s%d, s%d, 4096' % (sT1, sT0))
    a('s_lshl_b32 s5, s%d, 1' % sLdsW)
    a('v_add_u32 v2, s5, v%d' % vOoff); a('v_add_u32 v2, 0x8000, v2')
    a('v_mov_b32 v39, 0')
    a('s_waitcnt vmcnt(0)')
    a('buffer_load_dword v38, v39, %s, 0 offen sc1' % sr(SDBG, 4))
    for db in range(4):
        t = vO + 16 * db
        for r in range(16): a('v_mul_f32 v%d, v%d, v%d' % (t + r, vAlpha, t + r))
        for r in range(0, 16, 2): a('v_cvt_pk_bf16_f32 v%d, v%d, v%d' % (vQ + 8 * db + r // 2, t + r, t + r + 1))
        for hm in range(2):
            m = 2 * db + hm
            a('buffer_store_dwordx4 %s, v%d, %s, s%d offen offset:%d sc1' % (vr(vQ + 4 * m, 4), vOoff, sr(SWS, 4), sT0 if m < 4 else sT1, (m & 3) * 1024))
            a('ds_write_b128 v2, %s offset:%d' % (vr(vQ + 4 * m, 4), m * 1024))
    for i in range(4):
        a('s_add_u32 s3, s%d, %d' % (sKg, i)); a('s_and_b32 s3, s3, 3'); a('s_lshl_b32 s3, s3, 13')
        a('v_add_u32 v%d, s3, v%d' % (vOaddr + i, vOoff))
        a('v_add_u32 v%d, 0x10000, v%d' % (vOaddr + 4 + i, vOaddr + i))
        a('v_add_u32 v%d, 0x20000, v%d' % (vOaddr + 8 + i, vOaddr + i))
    a('s_waitcnt lgkmcnt(0)')
    a('s_barrier')
    ACC = vS[0]
    OSLOT = [1, 0, 2, 3, 4, 1, 0, 2]
    OP = POOL
    def op_parts(p, base):
        slot = OSLOT[p]
        reads = []; mf = []
        order = [(m, i) for m in range(8) for i in range(4)] if p < 7 else [(m, i) for i in (1, 2, 3, 0) for m in range(8)]
        for m, i in order:
            if True:
                n = len(mf)
                reads.append(dict(ins=['ds_read_b128 {d}, v%d offset:%d' % (vOaddr + 4 * (slot >> 1) + i, (slot & 1) * 32768 + m * 1024)], buf=OP[n & 7], first=base + n, free=base + n - 8))
                acc = vr(ACC + 16 * i, 16)
                mf.append(dict(fmt='%s %s, %s, {r0}, %s' % (MFMA, acc, ar(32 * p + 4 * m, 4), '0' if (p == 0 and m == 0) else acc), uses=[base + n]))
        return reads, mf
    def dma_o(p):
        out = ['s_add_u32 s3, s%d, %d' % (sJ, p), 's_and_b32 s3, s3, 7', 's_lshl_b32 s3, s3, 13', 's_add_u32 s%d, s3, s%d' % (sT0, sOb),
               's_add_u32 m0, s5, %d' % (OSLOT[p] * 32768), 's_add_u32 s%d, s%d, 4096' % (sT1, sT0)]
        for m in range(4): out.append('buffer_load_dwordx4 v%d, %s, s%d offen offset:%d sc1 lds' % (vOoff, sr(SWS, 4), sT0, m * 1024))
        out += ['s_add_u32 m0, m0, 4096', 's_nop 0']
        for m in range(4): out.append('buffer_load_dwordx4 v%d, %s, s%d offen offset:%d sc1 lds' % (vOoff, sr(SWS, 4), sT1, m * 1024))
        return out
    def signal(sF, vown, vpoll, cnt):
        return ['v_mov_b32 v38, 1', 's_mov_b64 exec, 1',
                'buffer_store_dword v38, v%d, %s, s%d offen sc1' % (vown, sr(SWS, 4), sF),
                's_mov_b64 exec, %d' % ((1 << cnt) - 2),
                'buffer_load_dword v39, v%d, %s, s%d offen sc1' % (vpoll, sr(SWS, 4), sF),
                's_mov_b64 exec, %s' % sr(sEx, 2)]
    def poll(n, sF, vpoll, cnt):
        a('s_mov_b64 exec, %d' % ((1 << cnt) - 2))
        a('s_mov_b32 s%d, 0' % sSpin)
        a.label('L_poll%d' % n)
        a('s_waitcnt vmcnt(0)')
        a('v_cmp_ne_u32 vcc, 1, v39')
        a('s_cbranch_vccz L_poll%d_out' % n)
        a('s_add_u32 s%d, s%d, 1' % (sSpin, sSpin)); a('s_cmp_ge_u32 s%d, %d' % (sSpin, OPT['spin'])); a('s_cbranch_scc1 L_poll%d_out' % n)
        if OPT['psleep']: a('s_sleep %d' % OPT['psleep'])
        a('buffer_load_dword v39, v%d, %s, s%d offen sc1' % (vpoll, sr(SWS, 4), sF))
        a('s_branch L_poll%d' % n)
        a.label('L_poll%d_out' % n)
        a('s_mov_b64 exec, %s' % sr(sEx, 2))
    a('v_add_u32 v3, s%d, v1' % sJ); a('v_and_b32 v3, 7, v3'); a('v_lshlrev_b32 v3, 2, v3')
    a('v_add_u32 v4, s%d, v1' % sKg); a('v_and_b32 v4, 3, v4'); a('v_lshlrev_b32 v4, 2, v4')
    r, m = op_parts(0, 0)
    mid = ['s_waitcnt vmcnt(0)', 's_mov_b32 s%d, 0' % sSpin, 'L_init:', 'v_readfirstlane_b32 s3, v38', 's_add_u32 s%d, s%d, 1' % (sSpin, sSpin),
           's_cmp_ge_u32 s3, 256', 's_cbranch_scc1 L_init_ok', 's_cmp_ge_u32 s%d, %d' % (sSpin, OPT['spin']), 's_cbranch_scc1 L_init_ok',
           'v_mov_b32 v39, 0', 'buffer_load_dword v38, v39, %s, 0 offen sc1' % sr(SDBG, 4), 's_waitcnt vmcnt(0)', 's_branch L_init', 'L_init_ok:'] + signal(sF1, 36, 3, 8)
    sched(a, m, r, LA, fill={OPT['sigat']: mid})
    stamp(4)
    poll(1, sF1, 3, 8)
    stamp(5)
    for p in range(1, 3):
        for x in dma_o(p): a(x)
    a('s_waitcnt vmcnt(8)'); a('s_barrier')
    r, _ = op_parts(1, 0)
    emit_reads(r[:LA])
    a('s_lshl_b32 s3, s%d, 3' % sB); a('s_add_u32 s3, s3, s%d' % sJ); a('s_lshl_b32 s3, s3, 18'); a('s_add_u32 s3, s3, s%d' % sLdsW)
    a('s_add_u32 s%d, s3, 0x%x' % (sPb, WS_P))
    a('s_lshl_b32 s6, s%d, 14' % sKg); a('s_add_u32 s6, s6, s%d' % sPb)
    def send(i):
        out = ['s_add_u32 s3, s%d, %d' % (sKg, i), 's_and_b32 s3, s3, 3', 's_lshl_b32 s3, s3, 16', 's_add_u32 s%d, s3, s6' % sT0]
        for g in range(4):
            out.append('buffer_store_dwordx4 %s, v%d, %s, s%d offen offset:%d sc1' % (vr(ACC + 16 * i + 4 * g, 4), vOoff, sr(SWS, 4), sT0, g * 1024))
        return out
    for p in range(1, 8):
        r, m = op_parts(p, 0)
        if p < 7:
            rn, _ = op_parts(p + 1, 32)
            fill = {}
            if p + 2 <= 7:
                for k, g in enumerate(groups(dma_o(p + 2))): fill[3 * k] = g
            sched(a, m, r + rn[:LA], LA, npre=LA, fill=fill, events={32: ['s_waitcnt vmcnt(%d)' % (8 if p + 2 <= 7 else 0), 's_barrier']}, evrange=(22, 31))
        else:
            fill = {}
            for i in (1, 2):
                for k, g in enumerate(groups(send(i))): fill[8 * i + 4 + k] = g
            for k, g in enumerate(groups(send(3))): fill[28 + k] = g
            sched(a, m, r, LA, npre=LA, fill=fill)
    stamp(6)
    a('s_waitcnt vmcnt(0)')
    stamp(7)
    for x in signal(sF2, 37, 4, 4): a(x)
    poll(2, sF2, 4, 4)
    stamp(8)
    a('s_lshl_b32 s4, s%d, 16' % sKg); a('s_add_u32 s4, s4, s%d' % sPb)
    for i in range(1, 4):
        a('s_add_u32 s3, s%d, %d' % (sKg, i)); a('s_and_b32 s3, s3, 3'); a('s_lshl_b32 s3, s3, 14'); a('s_add_u32 s%d, s3, s4' % sT0)
        for g in range(4):
            a('buffer_load_dwordx4 %s, v%d, %s, s%d offen offset:%d sc1' % (vr(vO + 16 * i + 4 * g, 4), vOoff, sr(SWS, 4), sT0, g * 1024))
    a('v_and_b32 v2, 31, v1'); a('v_lshrrev_b32 v3, 5, v1'); a('v_lshlrev_b32 v2, 11, v2'); a('v_lshl_add_u32 v2, v3, 5, v2')
    a('s_lshl_b32 s3, s%d, 18' % sB); a('s_lshl_b32 s4, s%d, 16' % sKg); a('s_add_u32 s3, s3, s4')
    a('s_cmp_lt_u32 s%d, 2' % sWave); a('s_cselect_b32 s4, s%d, s%d' % (sPA, sPB))
    a('s_add_u32 s3, s3, s4'); a('s_lshl_b32 s4, s%d, 6' % sWave); a('s_add_u32 s3, s3, s4')
    for i in range(1, 4):
        a('s_waitcnt vmcnt(%d)' % (4 * (3 - i)))
        for r in range(16): a('v_add_f32 v%d, v%d, v%d' % (ACC + r, ACC + r, vO + 16 * i + r))
    for r in range(0, 16, 2): a('v_cvt_pk_bf16_f32 v%d, v%d, v%d' % (vQ + r // 2, ACC + r, ACC + r + 1))
    a('buffer_store_dwordx4 %s, v2, %s, s3 offen' % (vr(vQ, 4), sr(SOUT, 4)))
    a('buffer_store_dwordx4 %s, v2, %s, s3 offen offset:16' % (vr(vQ + 4, 4), sr(SOUT, 4)))
    if OPT['stamps']:
        a('s_waitcnt vmcnt(0)'); stamp(9)
    a.label('L_end')
    a('s_endpgm')
    if FC:
        for j in range(4):
            a.label('L_fc%d' % j)
            a('s_mov_b32 s%d, 0' % sSpin)
            a.label('L_fc%d_l' % j)
            a('buffer_load_dword v4, v%d, %s, 0 offen sc1' % (vCoff, sr(SC, 4)))
            a('s_add_u32 s%d, s%d, 1' % (sSpin, sSpin)); a('s_cmp_ge_u32 s%d, %d' % (sSpin, OPT['spin'])); a('s_cbranch_scc1 L_fc%d_ret' % j)
            a('s_waitcnt vmcnt(0)')
            a('v_cmp_gt_i32 s[4:5], s%d, v4' % sCo); a('s_nop 0'); a('s_and_b32 s4, s4, s%d' % sTgt); a('s_cbranch_scc0 L_fc%d_ret' % j)
            a('s_sleep 2')
            a('s_branch L_fc%d_l' % j)
    for lab, S in rare:
        a.label(lab)
        a('s_nop 15')
        rowmax()
        a('v_max_f32 v%d, 0, v%d' % (vDelta, vMax))
        a('v_sub_f32 v%d, 0, v%d' % (vTmp, vDelta))
        a('v_exp_f32 v%d, v%d' % (vAlpha, vTmp))
        for j in range(32): a('v_sub_f32 v%d, v%d, v%d' % (S + j, S + j, vDelta))
        for j in range(16): a('v_sub_f32 v%d, v%d, v%d' % (vNegM + j, vNegM + j, vDelta))
        a('v_mul_f32 v%d, v%d, v%d' % (vLs, vLs, vAlpha))
        for j in range(64): a('v_mul_f32 v%d, v%d, v%d' % (vO + j, vO + j, vAlpha))
        a('s_nop 3')
        a('s_branch %s_ret' % lab)
    return a

def main():
    a = gen()
    import io, contextlib
    buf = io.StringIO()
    with contextlib.redirect_stdout(buf):
        bad = check_program(a)
    sys.stderr.write(buf.getvalue())
    for b in bad: sys.stderr.write('BRANCH HAZARD %s\n' % (b,))
    print('; @launch grid=(256,1,1) block=(256,1,1) lds=163840')
    print('.amdgcn_target "amdgcn-amd-amdhsa--gfx950"\n.text')
    print(a.text())
    print('''.section .rodata,"a"
.p2align 6
.amdhsa_kernel %s
  .amdhsa_next_free_vgpr 512
  .amdhsa_next_free_sgpr 96
  .amdhsa_accum_offset 256
  .amdhsa_group_segment_fixed_size 0
  .amdhsa_kernarg_size 64
  .amdhsa_user_sgpr_count 2
  .amdhsa_user_sgpr_kernarg_segment_ptr 1
  .amdhsa_system_sgpr_workgroup_id_x 1
.end_amdhsa_kernel''' % NAME)
main()
```

```python
import sys, math, struct
from asmlib import *

OPT = dict(kpol='nt', vpol='nt', xwpol='-', wopol='-', stamps=0, stag=1, la=7, qla=7, spin=0x8000, nokv=0, psleep=1, sigat=13, stagb=5, nowo=0, jx=0, touch=0, tat=2, tpol='nt', qpm=0, split=1, atm=0, pair=3, cap=6, kv0at=9, fc=0, dwg=0)
for a_ in sys.argv[1:]:
    k, v = a_.split('=')
    OPT[k] = v if not v.lstrip('-').isdigit() else int(v)
def pol(k): return str(OPT[k]).replace('+', ' ').replace('-', '')

def f32bits(x): return struct.unpack('<I', struct.pack('<f', x))[0]
QSCALE = f32bits(math.log2(math.e) / math.sqrt(128.0))
THRESH = f32bits(8.0)
def vr(b, n=1): return 'v%d' % b if n == 1 else 'v[%d:%d]' % (b, b + n - 1)
def ar(b, n=1): return 'a%d' % b if n == 1 else 'a[%d:%d]' % (b, b + n - 1)
def sr(b, n=1): return 's%d' % b if n == 1 else 's[%d:%d]' % (b, b + n - 1)
MFMA = 'v_mfma_f32_32x32x16_bf16'
NAME = 'standalone__mha_block_cached__near_ridge_kernel'

def is_valu(x): return x.startswith('v_') and not x.startswith('v_mfma')
def cost(x):
    if x.endswith(':'): return 0
    return 2 if x.startswith('v_exp') else 1

def sched(a, mf, reads, la, npre=0, pre=(), fill=None, events=None, pair=2, small=None, raw=False, evrange=None):
    fill = fill or {}; events = events or {}; small = small or {}
    issued = []
    for k in range(npre): issued += [k] * len(reads[k]['ins'])
    st = dict(done=0, nxt=npre)
    def issue(cur):
        while st['nxt'] < len(reads):
            k = st['nxt']; rd = reads[k]
            if rd['first'] > cur + la or rd.get('free', -1) > cur: break
            if len(issued) - st['done'] + len(rd['ins']) > 15: break
            if k in events and evrange is not None and any('s_barrier' in x for x in events[k]): assert evrange[0] <= cur <= evrange[1], ('event gap', cur, evrange)
            for x in events.get(k, []): a(x)
            b = rd['buf']
            for f in rd['ins']:
                a(f.format(d=vr(b, 4), d0=vr(b, 2), d1=vr(b + 2, 2))); issued.append(k)
            st['nxt'] += 1
    lastpos = lambda us: max(k for k, r in enumerate(issued) if r in us) + 1
    def wait_for(i):
        m = mf[i]
        assert all(u < st['nxt'] for u in m['uses']), ('read not issued', i, m, st)
        if m['uses'] and lastpos(set(m['uses'])) > st['done']:
            pos = lastpos(set(m['uses']))
            for j in range(i + 1, min(i + pair, len(mf))):
                if all(u < st['nxt'] for u in mf[j]['uses']): pos = max(pos, lastpos(set(mf[j]['uses'])))
            a('s_waitcnt lgkmcnt(%d)' % (len(issued) - pos)); st['done'] = pos
    def fillers(lst, cur):
        if raw or any(x.endswith(':') for x in lst):
            issue(cur)
            for x in lst: a(x)
            return
        evgap = any(k in events for k in range(st['nxt'], len(reads)) if reads[k]['first'] <= cur + la)
        if evgap: issue(cur)
        for x in lst:
            if not is_valu(x): a(x)
        issue(cur)
        for x in lst:
            if x.startswith('v_exp'): a(x)
        for x in lst:
            if is_valu(x) and not x.startswith('v_exp'): a(x)
    fillers(fill.get(-1, []), -1)
    for x in pre: a(x)
    wait_for(0)
    for i, m in enumerate(mf):
        a(m['fmt'].format(**{'r%d' % k: vr(reads[u]['buf'], 4) for k, u in enumerate(m['uses'])}))
        if i + 1 < len(mf):
            if not all(u < st['nxt'] for u in mf[i + 1]['uses']): issue(i)
            wait_for(i + 1)
        fillers(fill.get(i, []), i)
        if i in small:
            a(small[i][0])
            for x in small[i][1]: a(x)
    assert st['nxt'] == len(reads), (st, len(reads))

def bsched(a, mf, reads, la, npre=0, events=None, fixed=None, streams=(), pair=2, small=None, cap=6, scap=2, evrange=None):
    fixed = {k: list(v) for k, v in (fixed or {}).items()}
    small = small or {}
    n = len(mf)
    t = Asm(); sched(t, mf, reads, la, npre=npre, fill=fixed, events=events, pair=pair)
    load = {g: 0 for g in range(-1, n)}; g = -1
    for i in t.ins:
        if i.kind == 'mfma': g += 1
        elif i.kind != 'none': load[g] += cost(i.text)
    load[n - 1] += load[-1] + 1
    slots = []
    for g in range(n):
        slots.append([g, False, cap - load[g]])
        if g in small: slots.append([g, True, scap])
    need = sum(cost(o[0]) for st in streams for o in st)
    have = sum(max(0, s_[2]) for s_ in slots)
    extra = max(0, need - have)
    fill = {g: list(fixed.get(g, [])) for g in range(-1, n)}
    sfill = {g: [] for g in small}
    pos = [0] * len(streams)
    lastgap = [-1] * len(streams)
    for si, (g, sm_, room) in enumerate(slots):
        while True:
            cand = []
            for k in range(len(streams)):
                if pos[k] >= len(streams[k]): continue
                op = streams[k][pos[k]]
                if op[1] > g: continue
                cand.append((op[2], k))
            if not cand: break
            cand.sort()
            ok = False
            for dl, k in cand:
                op = streams[k][pos[k]]
                forced = dl <= g and (sm_ or g not in small)
                if cost(op[0]) <= room or forced:
                    (sfill[g] if sm_ else fill[g]).append(op[0]); room -= cost(op[0]); pos[k] += 1; ok = True
                    break
            if not ok: break
    assert all(pos[k] == len(streams[k]) for k in range(len(streams))), pos
    sched(a, mf, reads, la, npre=npre, fill=fill, events=events, pair=pair, small={g: (small[g], sfill[g]) for g in small}, evrange=evrange)

STAMP_OFF = 496 * 1024 * 1024
NST = 24

def gen():
    a = Asm()
    a.raw('.globl %s\n.p2align 8\n.type %s,@function' % (NAME, NAME)); a.label(NAME)
    SX, SW, SK, SV, SWS, SWO, SOUT, SDBG, SST = 8, 12, 16, 20, 24, 56, 60, 64, 68
    sWave, sLdsW, sAoff, sBoff, sCnt, sH, sB, sT0, sT1, sOb, sKoff, sVoff, sSlot = 29, 30, 31, 32, 33, 34, 35, 46, 47, 48, 49, 50, 51
    sQs, sThr, sJ, sKg = 52, 51, 54, 55
    sWoP, sWoB, sF1, sF2, sSpin, sEx, sT2, sPb, sTch, sBlk = 72, 73, 74, 75, 76, 78, 80, 81, 82, 83
    vTch = 9
    vLs, vOnes = 248, 252
    sPA, sPB = 44, 45
    vKoff, vVoff, vWoOff = 10, 14, 15
    vKaddr, vTaddr, vWoAddr = 16, 24, 28
    vL, vMax, vTmp, vOoff, vDelta, vAlpha, vFl = 29, 30, 31, 32, 33, 34, 35
    vQ, vNegM, vS, vO = 40, 72, [88, 120], 152
    POOL = [216 + 4 * i for i in range(8)]
    vXoff, vWoff, vXaddr, vTw = vQ, vQ + 4, vQ + 24, vQ + 28
    vOaddr = vNegM
    AUX, BB = 65536, 98304
    vs = lambda t: (t + 3) & 3
    WS_O, WS_P, WS_F1, WS_F2, WS_C = 0, 0x800000, 0x1800000, 0x1810000, 0x1820000
    SC, sCo, sTgt, vCoff, vOne, PRE, FC = 40, 28, 77, 29, 35, 8, OPT['fc']
    sG1, sG2, vPst, vPrg = 6, 7, 35, 5

    def stamp(idx, dyn=None):
        if not OPT['stamps']: return
        lab = 'L_st%d' % idx
        if OPT['stamps'] == 3:
            slot = {0: 0, 10: 1, 11: 2, 1: 3, 2: 4, 3: 5, 4: 6, 5: 7, 6: 8, 7: 9, 8: 10, 9: 11, 12: 12}[idx]
            a('s_cmp_lg_u32 s%d, 0' % sWave); a('s_cbranch_scc1 %s' % lab)
            a('s_cmp_lg_u32 s2, %d' % OPT['dwg']); a('s_cbranch_scc1 %s' % lab)
            if dyn is not None:
                a('s_cmp_gt_u32 s%d, 2' % dyn); a('s_cbranch_scc1 %s' % lab)
            a('s_memrealtime s[84:85]'); a('s_waitcnt lgkmcnt(0)')
            t = 244 if idx == 0 else 6
            a('v_mov_b32 v%d, s84' % t); a('v_mov_b32 v%d, 0' % (t + 2))
            a('s_mov_b32 s86, %d' % (4 + 4 * slot))
            if dyn is not None:
                a('s_lshl_b32 s87, s%d, 2' % dyn); a('s_add_u32 s86, s86, s87')
            a('buffer_store_dword v%d, v%d, %s, s86 offen sc1' % (t, t + 2, sr(SDBG, 4)))
            a.label(lab)
            return
        a('s_cmp_lg_u32 s%d, 0' % sWave); a('s_cbranch_scc1 %s' % lab)
        a('s_memtime s[84:85]' if OPT['stamps'] == 2 else 's_memrealtime s[84:85]')
        a('s_waitcnt lgkmcnt(0)')
        t = 244 if idx == 0 else 6
        a('v_mov_b32 v%d, s84' % t); a('v_mov_b32 v%d, s85' % (t + 1)); a('v_mov_b32 v%d, 0' % (t + 2))
        a('s_mul_i32 s86, s2, %d' % (NST * 8)); a('s_add_u32 s86, s86, %d' % (idx * 8))
        if dyn is not None:
            a('s_lshl_b32 s87, s%d, 3' % dyn); a('s_add_u32 s86, s86, s87')
        a('buffer_store_dwordx2 %s, v%d, %s, s86 offen' % (vr(t, 2), t + 2, sr(SST, 4)))
        a.label(lab)
    def srd(d, lo, hi, off, size):
        if off is None:
            a('s_mov_b32 s%d, s%d' % (d, lo)); a('s_mov_b32 s%d, s%d' % (d + 1, hi))
        else:
            a('s_add_u32 s%d, s%d, %s' % (d, lo, off)); a('s_addc_u32 s%d, s%d, 0' % (d + 1, hi))
        if size is not None: a('s_mov_b32 s%d, %s' % (d + 2, size))
        a('s_mov_b32 s%d, 0x00020000' % (d + 3))

    a('s_cmp_ge_u32 s2, 256')
    a('s_cbranch_scc1 L_end')
    a('s_load_dwordx8 s[36:43], s[0:1], 0')
    a('s_load_dwordx8 s[88:95], s[0:1], 32')
    a('v_lshrrev_b32 v2, 6, v0')
    a('v_and_b32 v1, 63, v0')
    a('v_readfirstlane_b32 s%d, v2' % sWave)
    a('s_and_b32 s%d, s2, 3' % sKg)
    a('s_lshl_b32 s3, s%d, 3' % sKg)
    a('s_lshr_b32 s4, s2, 3')
    a('s_and_b32 s%d, s4, 7' % sJ)
    if OPT['jx']: a('s_xor_b32 s%d, s%d, %d' % (sJ, sJ, OPT['jx']))
    a('s_add_u32 s%d, s3, s%d' % (sH, sJ))
    a('s_and_b32 s3, s2, 4')
    a('s_lshr_b32 s4, s4, 3')
    a('s_add_u32 s%d, s3, s4' % sB)
    a('s_lshl_b32 s%d, s%d, 12' % (sLdsW, sWave))
    a('v_lshrrev_b32 v2, 4, v1')
    a('v_and_b32 v3, 15, v1')
    a('v_lshrrev_b32 v4, 3, v1')
    a('v_and_b32 v5, 7, v1')
    a('v_lshlrev_b32 v6, 2, v2')
    a('v_xor_b32 v6, v6, v3')
    a('v_lshlrev_b32 v6, 4, v6')
    a('s_lshl_b32 s3, s%d, 17' % sWave)
    a('v_lshl_add_u32 v7, v2, 13, v6')
    a('v_add_u32 v%d, s3, v7' % vWoff)
    for i in range(1, 4): a('v_add_u32 v%d, %d, v%d' % (vWoff + i, i * (32768 - 1024), vWoff))
    a('s_lshl_b32 s3, s%d, 16' % sWave)
    a('v_xor_b32 v7, v2, v5')
    a('v_xor_b32 v8, 4, v7')
    a('v_lshlrev_b32 v7, 4, v7'); a('v_lshlrev_b32 v8, 4, v8')
    a('v_lshl_add_u32 v7, v4, 11, v7'); a('v_lshl_add_u32 v8, v4, 11, v8')
    a('v_add_u32 v%d, s3, v7' % vXoff); a('v_add_u32 v8, s3, v8')
    a('v_add_u32 v%d, %d, v8' % (vXoff + 1, 1 * (16384 - 1024)))
    a('v_add_u32 v%d, %d, v%d' % (vXoff + 2, 2 * (16384 - 1024), vXoff))
    a('v_add_u32 v%d, %d, v8' % (vXoff + 3, 3 * (16384 - 1024)))
    if OPT['stag']:
        a('s_lshl_b32 s3, s%d, 1' % sH); a('s_mul_i32 s4, s%d, %d' % (sB, OPT['stagb'])); a('s_add_u32 s3, s3, s4'); a('s_and_b32 s3, s3, 15')
        a('s_lshl_b32 s%d, s3, 7' % sAoff); a('s_lshl_b32 s%d, s3, 19' % sBoff)
    else:
        a('s_mov_b32 s%d, 0' % sAoff); a('s_mov_b32 s%d, 0' % sBoff)
    a('s_lshl_b32 s5, s%d, 18' % sB)
    a('s_lshl_b32 s6, s%d, 8' % sH)
    a('s_sub_u32 s%d, 0x800000, s6' % (SW + 2))
    a('s_waitcnt lgkmcnt(0)')
    srd(SX, 36, 37, 's5', '0x40000')
    srd(SW, 42, 43, 's6', None)

    XST = [16384, 32768, 49152, 65536]
    WST = [BB, BB + 16384, BB + 32768, BB - 16384]
    def dma_xw(st):
        out = ['s_add_u32 m0, s%d, %d' % (sLdsW, XST[st]), 's_lshl_b32 s%d, s%d, 12' % (sBoff, sAoff)]
        for i in range(4):
            out.append('buffer_load_dwordx4 v%d, %s, s%d offen offset:%d %s lds' % (vXoff + i, sr(SX, 4), sAoff, i * 1024, pol('xwpol')))
        out += ['s_add_u32 m0, s%d, %d' % (sLdsW, WST[st]), 's_add_u32 s%d, s%d, 128' % (sAoff, sAoff)]
        for i in range(4):
            out.append('buffer_load_dwordx4 v%d, %s, s%d offen offset:%d %s lds' % (vWoff + i, sr(SW, 4), sBoff, i * 1024, pol('xwpol')))
            if i == 0: out.append('s_and_b32 s%d, s%d, 0x7ff' % (sAoff, sAoff))
        return out
    def dma_k(m0src):
        out = [m0src, 's_cmp_lt_u32 s%d, 0x80000' % sKoff, 's_cselect_b32 s%d, %s, 0' % (SK + 2, '0' if OPT['nokv'] else '0x80000')]
        for i in range(4):
            out.append('buffer_load_dwordx4 v%d, %s, s%d offen offset:%d %s lds' % (vKoff + i, sr(SK, 4), sKoff, i * 1024, pol('kpol')))
        out.append('s_add_u32 s%d, s%d, 0x4000' % (sKoff, sKoff))
        return out
    def dma_v(m0src):
        out = [m0src, 's_cmp_lt_u32 s%d, 0x80000' % sVoff, 's_cselect_b32 s%d, %s, 0' % (SV + 2, '0' if OPT['nokv'] else '0x80000')]
        for i in range(4):
            out.append('buffer_load_dwordx4 v%d, %s, s%d offen offset:%d %s lds' % (vVoff, sr(SV, 4), sVoff, i * 1024, pol('vpol')))
        out.append('s_add_u32 s%d, s%d, 0x4000' % (sVoff, sVoff))
        return out
    def dma_wo():
        out = ['s_lshl_b32 s%d, s%d, 18' % (sT2, sWoP),
               's_add_u32 s%d, s%d, s%d' % (sT2, sT2, sWoB),
               's_cmp_lt_u32 s%d, 8' % sWoP, 's_cselect_b32 s%d, %s, 0' % (SWO + 2, '0' if OPT['nowo'] else '0x800000'),
               's_lshl_b32 m0, s%d, 1' % sLdsW, 's_add_u32 m0, m0, %d' % AUX, 's_add_u32 s%d, s%d, 1' % (sWoP, sWoP)]
        for i in range(8):
            if i == 4: out.append('s_add_u32 m0, m0, 4096')
            if i: out.append('s_add_u32 s%d, s%d, %d' % (sT2, sT2, 8192 - 1024 + (4096 if i == 4 else 0)))
            out.append('buffer_load_dwordx4 v%d, %s, s%d offen offset:%d %s lds' % (vWoOff, sr(SWO, 4), sT2, (i & 3) * 1024, pol('wopol')))
        return out
    def touch_wo():
        if not OPT['touch']: return []
        return ['s_lshl_b32 s%d, s%d, 18' % (sT2, sWoP), 's_add_u32 s%d, s%d, s%d' % (sT2, sT2, sTch),
                's_cmp_lt_u32 s%d, 8' % sWoP, 's_cselect_b32 s%d, 0x800000, 0' % (SWO + 2),
                'buffer_load_dword v35, v%d, %s, s%d offen %s' % (vTch, sr(SWO, 4), sT2, pol('tpol'))]
    def groups(lst):
        gs = [[]]
        for x in lst:
            gs[-1].append(x)
            if x.startswith('buffer'): gs.append([])
        if gs[-1]: gs[-2] += gs[-1]
        return gs[:-1]

    for c in range(3):
        for g in groups(dma_xw(c))[:8 if c < 2 else 3]:
            for x in g: a(x)
    a('s_lshl_b32 s3, s%d, 5' % sB); a('s_add_u32 s3, s3, s%d' % sH); a('s_lshl_b32 s3, s3, 19')
    srd(SK, 38, 39, 's3', '0x80000'); srd(SV, 40, 41, 's3', '0x80000')
    srd(SWS, 94, 95, None, '0x2000000'); srd(SWO, 88, 89, None, '0x800000'); srd(SOUT, 90, 91, None, '0x200000'); srd(SDBG, 92, 93, None, '256')
    if OPT['stamps']: srd(SST, 94, 95, str(STAMP_OFF), '0x100000')
    stamp(0)
    if OPT['stamps'] in (1, 2):
        a('s_getreg_b32 s84, hwreg(HW_REG_HW_ID)'); a('s_getreg_b32 s85, hwreg(HW_REG_XCC_ID)')
        a('v_mov_b32 v240, s84'); a('v_mov_b32 v241, s85'); a('v_mov_b32 v242, 0')
        a('s_mul_i32 s86, s2, %d' % (NST * 8)); a('s_add_u32 s86, s86, %d' % (20 * 8)); a('s_lshl_b32 s87, s%d, 3' % sWave); a('s_add_u32 s86, s86, s87')
        a('buffer_store_dwordx2 v[240:241], v242, %s, s86 offen' % sr(SST, 4))
    a('s_lshl_b32 s3, s%d, 2' % sB); a('s_add_u32 s3, s3, s%d' % sKg); a('s_lshl_b32 s3, s3, 10'); a('s_lshl_b32 s4, s%d, 8' % sWave)
    a('s_add_u32 s3, s3, s4'); a('s_add_u32 s%d, s3, 0x%x' % (sF1, WS_F1))
    a('s_lshl_b32 s3, s%d, 3' % sB); a('s_add_u32 s3, s3, s%d' % sJ); a('s_lshl_b32 s3, s3, 10'); a('s_lshl_b32 s4, s%d, 8' % sWave)
    a('s_add_u32 s3, s3, s4'); a('s_add_u32 s%d, s3, 0x%x' % (sF2, WS_F2))
    a('s_lshl_b32 s3, s%d, 2' % sJ); a('s_lshl_b32 s4, s%d, 2' % sKg)
    a('v_mov_b32 v36, s3'); a('v_mov_b32 v37, s4'); a('v_mov_b32 v38, 0'); a('v_mov_b32 v39, 0')
    a('s_mov_b64 %s, exec' % sr(sEx, 2)); a('s_mov_b64 exec, 1')
    a('buffer_atomic_swap v38, v36, %s, s%d offen sc0 sc1' % (sr(SWS, 4), sF1))
    a('buffer_atomic_swap v39, v37, %s, s%d offen sc0 sc1' % (sr(SWS, 4), sF2))
    if FC:
        a('s_lshl_b32 s3, s%d, 2' % sB); a('s_add_u32 s3, s3, s%d' % sKg); a('s_lshl_b32 s%d, s3, 8' % sG1)
        a('s_lshl_b32 s3, s%d, 3' % sB); a('s_add_u32 s3, s3, s%d' % sJ); a('s_lshl_b32 s3, s3, 8'); a('s_add_u32 s%d, s3, 0x4000' % sG2)
        a('v_mov_b32 v35, 0'); a('v_mov_b32 v29, 0')
        a('s_add_u32 s3, s%d, 0x%x' % (sG1, WS_C)); a('s_add_u32 s4, s%d, 0x%x' % (sG2, WS_C))
        a('s_cmp_lg_u32 s%d, 0' % sWave); a('s_cbranch_scc1 L_noc')
        a('buffer_atomic_swap v35, v36, %s, s3 offen sc0 sc1' % sr(SWS, 4))
        a('buffer_atomic_swap v29, v37, %s, s4 offen sc0 sc1' % sr(SWS, 4))
        a.label('L_noc')
    a('s_mov_b64 exec, %s' % sr(sEx, 2))
    a('s_mov_b32 s%d, 0' % sKoff); a('s_mov_b32 s%d, 0' % sVoff); a('s_mov_b32 s%d, 0' % sWoP)
    a('s_lshl_b32 s3, s%d, 21' % sKg); a('s_lshl_b32 s4, s%d, 16' % sWave); a('s_add_u32 s%d, s3, s4' % sWoB)
    if OPT['split']:
        a('s_lshr_b32 s3, s%d, 1' % sJ); a('s_and_b32 s4, s%d, 1' % sJ); a('s_lshl_b32 s4, s4, 2'); a('s_add_u32 s3, s3, s4')
        a('s_lshl_b32 s%d, s3, 7' % sPA)
        a('s_add_u32 s3, s3, 2'); a('s_and_b32 s3, s3, 7'); a('s_add_u32 s3, s3, 7'); a('s_lshl_b32 s%d, s3, 7' % sPB)
    else:
        a('s_lshl_b32 s%d, s%d, 8' % (sPA, sJ)); a('s_mov_b32 s%d, s%d' % (sPB, sPA))
    a('s_lshr_b32 s3, s2, 3'); a('s_lshl_b32 s3, s3, 2'); a('s_add_u32 s3, s3, s%d' % sWave); a('s_lshl_b32 s3, s3, 11')
    a('s_lshl_b32 s4, s%d, 21' % sKg); a('s_add_u32 s%d, s3, s4' % sTch)
    a('v_lshlrev_b32 v%d, 5, v1' % vTch)
    a('v_lshl_add_u32 v7, v2, 8, v6'); a('v_add_u32 v%d, s%d, v7' % (vVoff, sLdsW))
    a('v_lshl_add_u32 v%d, v2, 11, v6' % vWoOff)
    a('v_mov_b32 v7, s%d' % sPA); a('v_mov_b32 v8, s%d' % sPB)
    a('v_cmp_gt_u32 vcc, 128, v6')
    a('v_cndmask_b32 v7, v8, v7, vcc')
    a('v_add_u32 v%d, v7, v%d' % (vWoOff, vWoOff))
    a('v_xor_b32 v6, v2, v3')
    for i in range(4):
        a('v_xor_b32 v7, %d, v6' % (4 * i)); a('v_lshlrev_b32 v7, 4, v7'); a('v_lshl_add_u32 v7, v2, 8, v7')
        a('v_add_u32 v%d, s%d, v7' % (vKoff + i, sLdsW))
    a('v_and_b32 v2, 31, v1')
    a('v_lshrrev_b32 v3, 5, v1')
    a('v_and_b32 v4, 19, v2'); a('v_and_b32 v5, 4, v2'); a('v_lshlrev_b32 v5, 1, v5'); a('v_or_b32 v4, v4, v5')
    a('v_and_b32 v5, 8, v2'); a('v_lshrrev_b32 v5, 1, v5'); a('v_or_b32 v4, v4, v5')
    a('v_and_b32 v5, 15, v4'); a('v_xor_b32 v5, v5, v3')
    for m in range(8):
        a('v_xor_b32 v6, %d, v5' % (2 * m)); a('v_lshlrev_b32 v6, 4, v6'); a('v_lshl_add_u32 v%d, v4, 8, v6' % (vKaddr + m))
    a('v_lshrrev_b32 v5, 1, v2'); a('v_and_b32 v5, 7, v5'); a('v_xor_b32 v5, v5, v3')
    for ks in range(4):
        a('v_xor_b32 v6, %d, v5' % (2 * ks)); a('v_lshlrev_b32 v6, 4, v6'); a('v_lshl_add_u32 v6, v2, 7, v6')
        a('v_add_u32 v6, s%d, v6' % sLdsW); a('v_add_u32 v%d, 0x4000, v6' % (vXaddr + ks))
    a('v_lshrrev_b32 v4, 2, v1'); a('v_and_b32 v4, 3, v4')
    a('v_lshl_add_u32 v5, v3, 3, v4'); a('v_lshlrev_b32 v5, 8, v5')
    a('v_and_b32 v6, 2, v1'); a('v_lshl_add_u32 v5, v6, 2, v5')
    a('v_lshrrev_b32 v6, 3, v1'); a('v_and_b32 v6, 2, v6'); a('v_and_b32 v7, 1, v1'); a('v_or_b32 v6, v6, v7')
    a('v_lshl_add_u32 v6, v4, 2, v6')
    a('v_add_u32 v8, %d, v5' % BB)
    for db in range(4):
        a('v_xor_b32 v7, %d, v6' % (4 * db)); a('v_lshl_add_u32 v%d, v7, 4, v8' % (vTaddr + db))
    a('v_and_b32 v6, 1, v1'); a('v_lshlrev_b32 v6, 1, v6'); a('v_lshrrev_b32 v7, 4, v1'); a('v_and_b32 v7, 1, v7'); a('v_or_b32 v6, v6, v7')
    a('v_lshl_add_u32 v6, v4, 2, v6')
    a('s_lshl_b32 s3, s%d, 2' % sWave)
    a('v_xor_b32 v6, s3, v6')
    a('v_add_u32 v8, 0x%x, v5' % AUX)
    a('v_lshl_add_u32 v%d, v6, 4, v8' % vWoAddr)
    a('v_lshlrev_b32 v%d, 4, v1' % vOoff)
    for i in range(64): a('v_mov_b32 v%d, 0' % (vS[0] + i))
    for k in range(4): a('v_add_u32 v%d, -16384, v%d' % (vTw + k, vTaddr + k))
    a('s_mov_b32 s%d, 0x%08x' % (sQs, QSCALE)); a('s_mov_b32 s%d, 0x%08x' % (sQs + 1, QSCALE)); a('s_mov_b32 s%d, 0x%08x' % (sThr, THRESH))
    for k in range(4): a('v_mov_b32 v%d, 0' % (vLs + k))
    a('v_lshrrev_b32 v6, 2, v1'); a('v_lshrrev_b32 v7, 4, v1'); a('v_xor_b32 v6, v6, v7'); a('v_and_b32 v6, 1, v6')
    a('v_add_u32 v6, -1, v6'); a('v_and_b32 v%d, 0x3f803f80, v6' % vOnes)
    for k in range(1, 4): a('v_mov_b32 v%d, v%d' % (vOnes + k, vOnes))
    a('s_mov_b32 s%d, 0' % sCnt)

    LA = OPT['la']
    def qk_parts(slot, S, first, base=0):
        reads = []; mf = []
        for kb in range(2):
            for m in range(8):
                i = len(mf)
                reads.append(dict(ins=['ds_read_b128 {d}, v%d offset:%d' % (vKaddr + m, slot * 16384 + kb * 8192)], buf=POOL[i & 7], first=base + i, free=base + i - 8))
                acc = vr(S + 16 * kb, 16)
                c = acc if m else ('0' if first else vr(vNegM, 16))
                mf.append(dict(fmt='%s %s, {r0}, %s, %s' % (MFMA, acc, vr(vQ + 4 * m, 4), c), uses=[base + i]))
        return reads, mf
    def pv_parts(slot, S, base):
        reads = []; mf = []
        slot = vs(slot)
        for u in range(4):
            for db in range(4):
                i = len(mf)
                reads.append(dict(ins=['ds_read_b64_tr_b16 {d0}, v%d offset:%d' % (vTaddr + db, slot * 16384 + u * 4096),
                                       'ds_read_b64_tr_b16 {d1}, v%d offset:%d' % (vTaddr + db, slot * 16384 + u * 4096 + 1024)], buf=POOL[i & 7], first=base + i, free=base + i - 8))
                acc = vr(vO + 16 * db, 16)
                mf.append(dict(fmt='%s %s, {r0}, %s, %s' % (MFMA, acc, vr(S + 8 * u, 4), acc), uses=[base + i]))
        return reads, mf
    def softmax_ops(S):
        ops = []
        for u in range(4):
            b = S + 8 * u
            for h4 in range(2):
                q = b + 4 * h4
                for j in range(4): ops.append(('v_exp_f32 v%d, v%d' % (q + j, q + j), 2, u))
                for j in range(2):
                    ops.append(('v_cvt_pk_bf16_f32 v%d, v%d, v%d' % (b + 2 * h4 + j, q + 2 * j, q + 2 * j + 1), 1, u))
        return ops
    def lsum(S, u):
        return 'v_mfma_f32_16x16x32_bf16 %s, %s, %s, %s' % (vr(vLs, 4), vr(vOnes, 4), vr(S + 8 * u, 4), vr(vLs, 4))
    def max_ops(S):
        ops = ['v_max3_f32 v%d, v%d, v%d, v%d' % (vMax, S, S + 1, S + 2)]
        for j in range(3, 31, 2): ops.append('v_max3_f32 v%d, v%d, v%d, v%d' % (vMax, vMax, S + j, S + j + 1))
        ops.append('v_max_f32 v%d, v%d, v%d' % (vMax, vMax, S + 31))
        return ops
    def rowmax():
        a('v_mov_b32 v%d, v%d' % (vTmp, vMax)); a('s_nop 1')
        a('v_permlane32_swap_b32 v%d, v%d' % (vMax, vTmp)); a('s_nop 1')
        a('v_max_f32 v%d, v%d, v%d' % (vMax, vMax, vTmp))
    def emit_reads(rs):
        for rd in rs:
            for f in rd['ins']: a(f.format(d=vr(rd['buf'], 4), d0=vr(rd['buf'], 2), d1=vr(rd['buf'] + 2, 2)))

    WP = [vO + 4 * i for i in range(16)]
    QLA = OPT['qla']
    def qp_reads(st, base, dbmajor=False):
        reads = []; mf = []; xi = {}
        XP = [vNegM + 4 * k for k in range(4)] if dbmajor else POOL[4 * (st & 1): 4 * (st & 1) + 4]
        order = [(ks, db) for db in range(4) for ks in range(4)] if dbmajor else [(ks, db) for ks in range(4) for db in range(4)]
        for i, (ks, db) in enumerate(order):
            if ks not in xi:
                xi[ks] = len(reads)
                reads.append(dict(ins=['ds_read_b128 {d}, v%d offset:%d' % (vXaddr + ks, XST[st] - 16384)], buf=XP[ks], first=base + i))
            wo_ = WST[st] - (BB - 16384) + ks * 4096
            reads.append(dict(ins=['ds_read_b64_tr_b16 {d0}, v%d offset:%d' % (vTw + db, wo_),
                                   'ds_read_b64_tr_b16 {d1}, v%d offset:%d' % (vTw + db, wo_ + 1024)], buf=WP[i], first=base + i, free=base + i - 16))
            acc = vr(vS[0] + 16 * db, 16)
            mf.append(dict(fmt='%s %s, {r0}, {r1}, %s' % (MFMA, acc, acc), uses=[len(reads) - 1, xi[ks]]))
        return reads, mf
    def npre_of(r, base):
        n = len([x for x in r if x['first'] - base <= QLA - 2])
        while sum(len(x['ins']) for x in r[:n]) > 12: n -= 1
        return n
    gkv = lambda t: groups(dma_k('s_add_u32 m0, s%d, %d' % (sLdsW, (t & 3) * 16384)) + dma_v('s_add_u32 m0, s%d, %d' % (sLdsW, BB + vs(t) * 16384)))
    gxw = lambda c: groups(dma_xw(c & 3))
    def qp_body(c, early, late, tail=(), vm=8, extra=None):
        r0, mf = qp_reads(c & 3, 0); r1, _ = qp_reads((c + 1) & 3, 16, dbmajor=(c == 14))
        fill = {}
        for k, g in enumerate(early): fill[2 * k] = list(g)
        for k, g in enumerate(late): fill[11 + 2 * k] = list(g)
        fill.setdefault(15, []); fill[15] += list(tail)
        ev = ['s_waitcnt vmcnt(%d)' % vm, 's_barrier']
        k1 = OPT['kv0at'] + 1
        if c == k1 and c >= 12: ev = ['s_waitcnt vmcnt(16)', 's_barrier']
        elif c < 4 and k1 < 12 and c == (k1 & 3):
            ev = ['s_cmp_eq_u32 s%d, %d' % (sCnt, k1 >> 2), 's_cbranch_scc1 L_kvw', 's_waitcnt vmcnt(8)', 'L_kvw:', 's_waitcnt vmcnt(16)', 's_barrier']
        sched(a, mf, r0 + r1[:npre_of(r1, 16)], QLA, npre=npre_of(r0, 0), fill=fill, events={len(r0): ev}, evrange=(9, 11))
    r0, _ = qp_reads(0, 0)
    a('s_waitcnt vmcnt(11)')
    a('s_barrier')
    stamp(10)
    emit_reads(r0[:npre_of(r0, 0)])
    a.label('L_qp')
    if OPT['stamps']:
        a('s_cmp_lg_u32 s%d, 2' % sCnt); a('s_cbranch_scc1 L_st11')
        stamp(11)
    for c in range(4):
        qp_body(c, gxw(c + 2)[3:], gxw(c + 3)[:3], ['s_add_u32 s%d, s%d, 1' % (sCnt, sCnt), 's_cmp_lt_u32 s%d, 3' % sCnt] if c == 3 else [])
        if c == 2:
            a('s_or_b32 s3, s%d, s%d' % (sWave, sCnt)); a('s_cbranch_scc1 L_noinit')
            a('v_mov_b32 v38, 1'); a('v_mov_b32 v39, 0')
            a('s_mov_b64 exec, 1')
            a('buffer_atomic_add v38, v39, %s, 0 offen sc1' % sr(SDBG, 4))
            a('s_mov_b64 exec, %s' % sr(sEx, 2))
            a.label('L_noinit')
        if c == OPT['kv0at'] & 3:
            a('s_cmp_lg_u32 s%d, %d' % (sCnt, (OPT['kv0at'] >> 2) + (1 if c == 3 else 0))); a('s_cbranch_scc1 L_nokv0')
            for g in gkv(0):
                for x in g: a(x)
            a('s_add_u32 m0, s%d, %d' % (sLdsW, XST[(c + 3) & 3]))
            a.label('L_nokv0')
            if c == 3: a('s_cmp_lt_u32 s%d, 3' % sCnt)
    a('s_cbranch_scc1 L_qp')
    qp_body(12, gxw(14)[3:], gxw(15)[:3])
    qp_body(13, gxw(15)[3:], gkv(1)[:3])
    qp_body(14, gkv(1)[3:], gkv(2)[:3])
    def pack(db):
        t = vS[0] + 16 * db
        out = []
        for r in range(0, 16, 2):
            out.append('v_pk_mul_f32 %s, %s, %s' % (vr(t + r, 2), vr(t + r, 2), sr(sQs, 2)))
        for r in range(0, 16, 2): out.append('v_cvt_pk_bf16_f32 v%d, v%d, v%d' % (vQ + 8 * db + r // 2, t + r, t + r + 1))
        return out
    r0, mf = qp_reads(3, 0, dbmajor=True)
    rq, mq = qk_parts(0, vS[0], True)
    rq16, _ = qk_parts(0, vS[0], True, base=16)
    for x in rq16: x['free'] = -1
    gk3 = groups(dma_k('s_add_u32 m0, s%d, %d' % (sLdsW, 3 * 16384)))
    fill = {}
    for k, g in enumerate(gkv(2)[3:]): fill[2 * k] = list(g)
    for k in range(3): fill[11 + 2 * k] = list(gk3[k])
    pk = pack(0) + pack(1)
    for g in range(7, 16):
        fill.setdefault(g, []); n = 4 if g < 11 or g & 1 else 5
        if g < 11: n = min(n, max(0, 16 - (32 - len(pk))))
        fill[g] += pk[:n]; pk = pk[n:]
    sched(a, mf, r0 + rq16[:LA], QLA, npre=npre_of(r0, 0), fill=fill, events={len(r0): ['s_barrier']}, evrange=(9, 11))
    stamp(1)
    for x in gk3[3]: a(x)
    for x in pk + pack(2) + pack(3): a(x)
    rn, _ = qk_parts(1, vS[1], False, base=16)
    zero = ['v_mov_b32 v%d, 0' % (vO + i) for i in range(64)]
    fill = {i: zero[4 * i: 4 * i + 4] for i in range(16)}
    mx = max_ops(vS[0])
    for k, g in enumerate((11, 12, 12, 13, 14, 14, 15)): fill[g].append(mx[k])
    sched(a, mq, rq + rn[:LA], LA, npre=LA, fill=fill, events={16: ['s_waitcnt vmcnt(16)', 's_barrier']}, evrange=(0, 12))
    a('s_barrier')
    for x in mx[7:]: a(x)
    rowmax()
    for j in range(16): a('v_sub_f32 v%d, 0, v%d' % (vNegM + j, vMax))
    for j in range(32): a('v_sub_f32 v%d, v%d, v%d' % (vS[0] + j, vS[0] + j, vMax))
    if FC:
        srd(SC, 94, 95, '0x%x' % WS_C, None)
        a('s_cmp_eq_u32 s%d, 0' % sWave); a('s_cselect_b32 s%d, 0x8000, 0' % (SC + 2)); a('s_cselect_b32 s%d, 0xfff, 0' % sTgt)
        a('v_lshlrev_b32 v2, 2, v1'); a('v_add_u32 v3, s%d, v2' % sG1); a('v_add_u32 v4, s%d, v2' % sG2); a('v_add_u32 v4, -32, v4')
        a('v_cmp_gt_u32 vcc, 8, v1'); a('v_cndmask_b32 v%d, v4, v3, vcc' % vCoff)
        a('v_mov_b32 v4, 0x100000'); a('v_cmp_gt_u32 vcc, 12, v1'); a('v_cndmask_b32 v%d, v4, v%d, vcc' % (vCoff, vCoff))
        a('v_add_u32 v2, s%d, v36' % sG1); a('v_add_u32 v3, s%d, v37' % sG2)
        a('v_cmp_eq_u32 vcc, 0, v1'); a('v_cndmask_b32 v%d, v3, v2, vcc' % vPst)
        a('v_cmp_gt_u32 vcc, 2, v1'); a('v_cndmask_b32 v%d, v4, v%d, vcc' % (vPst, vPst))
        a('v_mov_b32 v%d, 0' % vPrg); a('v_mov_b32 v2, 0'); a('v_mov_b32 v3, 0'); a('s_mov_b32 s%d, %d' % (sCo, 1 - FC))
    stamp(2)

    rare = []
    def iteration(j, vm, kind='mid', tag=''):
        cur, nxt = vS[j & 1], vS[(j + 1) & 1]
        sm = softmax_ops(cur)
        if kind != 'last':
            r1, m1 = qk_parts((j + 1) & 3, nxt, False)
            r2, m2 = pv_parts(j, cur, 16)
            if kind == 'mid': r3, _ = qk_parts((j + 2) & 3, cur, False, base=32)
            else: r3, _ = pv_parts((j + 1) & 3, nxt, 32)
            reads, mf = r1 + r2 + r3[:LA], m1 + m2
            st1 = []; ne = 0
            for x, c, u in sm:
                if c == 2: ne += 1
                st1.append((x, 0, min(14 + 4 * u, (ne * 26) // 32 + (0 if c == 2 else 1))))
            mx = max_ops(nxt) + ['v_cmp_lt_f32 vcc, s%d, v%d' % (sThr, vMax)]
            st2 = [(x, 10 if k < 7 else 18, 31) for k, x in enumerate(mx)]
            fixed = {}
            if kind == 'mid':
                gk = groups(dma_k('s_add_u32 m0, s%d, %d' % (sLdsW, j * 16384)))
                gv = groups(dma_v('s_add_u32 m0, s%d, %d' % (sLdsW, BB + vs(j + 3) * 16384)))
                for k in range(4): fixed[1 + 2 * k] = gk[k]
                for k, g in enumerate((27, 28, 30, 31)): fixed[g] = gv[k]
                if j == 0:
                    gw = groups(dma_wo())
                    for k in range(8): fixed[9 + 2 * k] = gw[k]
                if j == OPT['tat']: fixed[25] = touch_wo()
            ev = ['s_waitcnt vmcnt(%d)' % vm, 's_barrier']
            if FC and kind == 'mid':
                fixed[0] = ['buffer_load_dword v%d, v%d, %s, 0 offen sc1' % (2 + (j & 1), vCoff, sr(SC, 4)), 'v_add_u32 v%d, 1, v%d' % (vPrg, vPrg)]
                fixed[29] = ['buffer_store_dword v%d, v%d, %s, 0 offen sc1' % (vPrg, vPst, sr(SC, 4)), 's_add_u32 s%d, s%d, 1' % (sCo, sCo)]
                ev = ['s_waitcnt vmcnt(%d)' % (vm + 1), 'v_cmp_gt_i32 s[4:5], s%d, v%d' % (sCo, 2 + ((j + 1) & 1)), 's_nop 0', 's_and_b32 s4, s4, s%d' % sTgt,
                      's_cbranch_scc1 L_fc%d' % j, 'L_fc%d_ret:' % j, 's_barrier']
            bsched(a, mf, reads, LA, npre=LA, events={32: ev}, fixed=fixed, streams=[st1, st2], pair=OPT['pair'],
                   small={16 + 4 * u: lsum(cur, u) for u in range(4)}, cap=OPT['cap'], evrange=(24, 27))
            lab = 'L_rare%d%s' % (j, tag)
            a('s_cbranch_vccnz %s' % lab)
            a.label(lab + '_ret')
            rare.append((lab, nxt))
        else:
            reads, mf = pv_parts(j, cur, 0)
            fill = {i: [] for i in range(-1, 16)}
            fill[-1] = [x[0] for x in sm if x[2] == 0]
            k = len(fill[-1])
            for g in range(16):
                budget = 8
                while k < len(sm) and (budget >= sm[k][1] or g >= 4 * sm[k][2] - 2):
                    fill[g].append(sm[k][0]); budget -= sm[k][1]; k += 1
            sched(a, mf, reads, LA, npre=LA, fill=fill, small={4 * u: (lsum(cur, u), []) for u in range(4)})

    def wo_block(p):
        for ks in range(8):
            a('ds_read_b64_tr_b16 %s, v%d offset:%d' % (ar(32 * p + 4 * ks, 2), vWoAddr, ks * 4096))
            a('ds_read_b64_tr_b16 %s, v%d offset:%d' % (ar(32 * p + 4 * ks + 2, 2), vWoAddr, ks * 4096 + 1024))
        a('s_waitcnt lgkmcnt(0)')

    def wo_chain(tag):
        a('s_sub_u32 s%d, s%d, s%d' % (sBlk, sCnt, sJ)); a('s_and_b32 s%d, s%d, 7' % (sBlk, sBlk))
        for p in range(8):
            if p < 7:
                a('s_cmp_lg_u32 s%d, %d' % (sBlk, p)); a('s_cbranch_scc1 L_wb%s%d' % (tag, p + 1))
            wo_block(p)
            if p < 7: a('s_branch L_wbdone%s' % tag)
            a.label('L_wb%s%d' % (tag, p + 1) if p < 7 else 'L_wbdone%s' % tag)
    a('s_mov_b32 s%d, 0' % sCnt)
    a.label('L_at')
    stamp(12, sCnt)
    iteration(0, 20)
    iteration(1, 20)
    a('s_cmp_eq_u32 s%d, 7' % sCnt)
    a('s_cbranch_scc1 L_at_last')
    iteration(2, 12)
    wo_chain('a')
    iteration(3, 12)
    a('s_add_u32 s%d, s%d, 1' % (sCnt, sCnt))
    a('s_branch L_at')
    if OPT['atm']:
        n0 = [k for k, i in enumerate(a.ins) if i.text.startswith('L_at:')][0]
        keep = []
        m = OPT['atm']
        for i in a.ins[n0:]:
            if (m & 1) and i.op == 'v_exp_f32': continue
            if (m & 2) and i.kind == 'ds': continue
            if (m & 4) and i.kind == 'vmem' and 'lds' in i.text: continue
            if (m & 8) and i.op == 's_barrier': continue
            if (m & 16) and i.op == 'v_add_f32': continue
            if (m & 32) and i.op.startswith('v_max'): continue
            if (m & 64) and i.op.startswith('v_cvt'): continue
            if (m & 128) and i.op == 's_waitcnt' and 'lgkm' in i.text and 'lgkmcnt(0)' not in i.text: continue
            keep.append(i)
        a.ins[n0:] = keep
    a.label('L_at_last')
    iteration(2, 8, kind='pen', tag='p')
    wo_chain('b')
    iteration(3, 0, kind='last')
    stamp(3)

    a('v_rcp_f32 v%d, v%d' % (vAlpha, vLs))
    a('s_lshl_b32 s3, s%d, 2' % sB); a('s_add_u32 s3, s3, s%d' % sWave); a('s_lshl_b32 s3, s3, 18')
    a('s_lshl_b32 s4, s%d, 16' % sKg); a('s_add_u32 s%d, s3, s4' % sOb)
    a('s_lshl_b32 s4, s%d, 13' % sJ); a('s_add_u32 s%d, s%d, s4' % (sT0, sOb)); a('s_add_u32 s%d, s%d, 4096' % (sT1, sT0))
    a('s_lshl_b32 s5, s%d, 1' % sLdsW)
    a('v_add_u32 v2, s5, v%d' % vOoff); a('v_add_u32 v2, 0x8000, v2')
    a('v_mov_b32 v39, 0')
    a('s_waitcnt vmcnt(0)')
    a('buffer_load_dword v38, v39, %s, 0 offen sc1' % sr(SDBG, 4))
    for db in range(4):
        t = vO + 16 * db
        for r in range(16): a('v_mul_f32 v%d, v%d, v%d' % (t + r, vAlpha, t + r))
        for r in range(0, 16, 2): a('v_cvt_pk_bf16_f32 v%d, v%d, v%d' % (vQ + 8 * db + r // 2, t + r, t + r + 1))
        for hm in range(2):
            m = 2 * db + hm
            a('buffer_store_dwordx4 %s, v%d, %s, s%d offen offset:%d sc1' % (vr(vQ + 4 * m, 4), vOoff, sr(SWS, 4), sT0 if m < 4 else sT1, (m & 3) * 1024))
            a('ds_write_b128 v2, %s offset:%d' % (vr(vQ + 4 * m, 4), m * 1024))
    for i in range(4):
        a('s_add_u32 s3, s%d, %d' % (sKg, i)); a('s_and_b32 s3, s3, 3'); a('s_lshl_b32 s3, s3, 13')
        a('v_add_u32 v%d, s3, v%d' % (vOaddr + i, vOoff))
        a('v_add_u32 v%d, 0x10000, v%d' % (vOaddr + 4 + i, vOaddr + i))
        a('v_add_u32 v%d, 0x20000, v%d' % (vOaddr + 8 + i, vOaddr + i))
    a('s_waitcnt lgkmcnt(0)')
    a('s_barrier')
    ACC = vS[0]
    OSLOT = [1, 0, 2, 3, 4, 1, 0, 2]
    OP = POOL
    def op_parts(p, base):
        slot = OSLOT[p]
        reads = []; mf = []
        order = [(m, i) for m in range(8) for i in range(4)] if p < 7 else [(m, i) for i in (1, 2, 3, 0) for m in range(8)]
        for m, i in order:
            if True:
                n = len(mf)
                reads.append(dict(ins=['ds_read_b128 {d}, v%d offset:%d' % (vOaddr + 4 * (slot >> 1) + i, (slot & 1) * 32768 + m * 1024)], buf=OP[n & 7], first=base + n, free=base + n - 8))
                acc = vr(ACC + 16 * i, 16)
                mf.append(dict(fmt='%s %s, %s, {r0}, %s' % (MFMA, acc, ar(32 * p + 4 * m, 4), '0' if (p == 0 and m == 0) else acc), uses=[base + n]))
        return reads, mf
    def dma_o(p):
        out = ['s_add_u32 s3, s%d, %d' % (sJ, p), 's_and_b32 s3, s3, 7', 's_lshl_b32 s3, s3, 13', 's_add_u32 s%d, s3, s%d' % (sT0, sOb),
               's_add_u32 m0, s5, %d' % (OSLOT[p] * 32768), 's_add_u32 s%d, s%d, 4096' % (sT1, sT0)]
        for m in range(4): out.append('buffer_load_dwordx4 v%d, %s, s%d offen offset:%d sc1 lds' % (vOoff, sr(SWS, 4), sT0, m * 1024))
        out += ['s_add_u32 m0, m0, 4096', 's_nop 0']
        for m in range(4): out.append('buffer_load_dwordx4 v%d, %s, s%d offen offset:%d sc1 lds' % (vOoff, sr(SWS, 4), sT1, m * 1024))
        return out
    def signal(sF, vown, vpoll, cnt):
        return ['v_mov_b32 v38, 1', 's_mov_b64 exec, 1',
                'buffer_store_dword v38, v%d, %s, s%d offen sc1' % (vown, sr(SWS, 4), sF),
                's_mov_b64 exec, %d' % ((1 << cnt) - 2),
                'buffer_load_dword v39, v%d, %s, s%d offen sc1' % (vpoll, sr(SWS, 4), sF),
                's_mov_b64 exec, %s' % sr(sEx, 2)]
    def poll(n, sF, vpoll, cnt):
        a('s_mov_b64 exec, %d' % ((1 << cnt) - 2))
        a('s_mov_b32 s%d, 0' % sSpin)
        a.label('L_poll%d' % n)
        a('s_waitcnt vmcnt(0)')
        a('v_cmp_ne_u32 vcc, 1, v39')
        a('s_cbranch_vccz L_poll%d_out' % n)
        a('s_add_u32 s%d, s%d, 1' % (sSpin, sSpin)); a('s_cmp_ge_u32 s%d, %d' % (sSpin, OPT['spin'])); a('s_cbranch_scc1 L_poll%d_out' % n)
        if OPT['psleep']: a('s_sleep %d' % OPT['psleep'])
        a('buffer_load_dword v39, v%d, %s, s%d offen sc1' % (vpoll, sr(SWS, 4), sF))
        a('s_branch L_poll%d' % n)
        a.label('L_poll%d_out' % n)
        a('s_mov_b64 exec, %s' % sr(sEx, 2))
    a('v_add_u32 v3, s%d, v1' % sJ); a('v_and_b32 v3, 7, v3'); a('v_lshlrev_b32 v3, 2, v3')
    a('v_add_u32 v4, s%d, v1' % sKg); a('v_and_b32 v4, 3, v4'); a('v_lshlrev_b32 v4, 2, v4')
    r, m = op_parts(0, 0)
    mid = ['s_waitcnt vmcnt(0)', 's_mov_b32 s%d, 0' % sSpin, 'L_init:', 'v_readfirstlane_b32 s3, v38', 's_add_u32 s%d, s%d, 1' % (sSpin, sSpin),
           's_cmp_ge_u32 s3, 256', 's_cbranch_scc1 L_init_ok', 's_cmp_ge_u32 s%d, %d' % (sSpin, OPT['spin']), 's_cbranch_scc1 L_init_ok',
           'v_mov_b32 v39, 0', 'buffer_load_dword v38, v39, %s, 0 offen sc1' % sr(SDBG, 4), 's_waitcnt vmcnt(0)', 's_branch L_init', 'L_init_ok:'] + signal(sF1, 36, 3, 8)
    sched(a, m, r, LA, fill={OPT['sigat']: mid})
    stamp(4)
    poll(1, sF1, 3, 8)
    stamp(5)
    for p in range(1, 3):
        for x in dma_o(p): a(x)
    a('s_waitcnt vmcnt(8)'); a('s_barrier')
    r, _ = op_parts(1, 0)
    emit_reads(r[:LA])
    a('s_lshl_b32 s3, s%d, 3' % sB); a('s_add_u32 s3, s3, s%d' % sJ); a('s_lshl_b32 s3, s3, 18'); a('s_add_u32 s3, s3, s%d' % sLdsW)
    a('s_add_u32 s%d, s3, 0x%x' % (sPb, WS_P))
    a('s_lshl_b32 s6, s%d, 14' % sKg); a('s_add_u32 s6, s6, s%d' % sPb)
    def send(i):
        out = ['s_add_u32 s3, s%d, %d' % (sKg, i), 's_and_b32 s3, s3, 3', 's_lshl_b32 s3, s3, 16', 's_add_u32 s%d, s3, s6' % sT0]
        for g in range(4):
            out.append('buffer_store_dwordx4 %s, v%d, %s, s%d offen offset:%d sc1' % (vr(ACC + 16 * i + 4 * g, 4), vOoff, sr(SWS, 4), sT0, g * 1024))
        return out
    for p in range(1, 8):
        r, m = op_parts(p, 0)
        if p < 7:
            rn, _ = op_parts(p + 1, 32)
            fill = {}
            if p + 2 <= 7:
                for k, g in enumerate(groups(dma_o(p + 2))): fill[3 * k] = g
            sched(a, m, r + rn[:LA], LA, npre=LA, fill=fill, events={32: ['s_waitcnt vmcnt(%d)' % (8 if p + 2 <= 7 else 0), 's_barrier']}, evrange=(22, 31))
        else:
            fill = {}
            for i in (1, 2):
                for k, g in enumerate(groups(send(i))): fill[8 * i + 4 + k] = g
            for k, g in enumerate(groups(send(3))): fill[28 + k] = g
            sched(a, m, r, LA, npre=LA, fill=fill)
    stamp(6)
    a('s_waitcnt vmcnt(0)')
    stamp(7)
    for x in signal(sF2, 37, 4, 4): a(x)
    poll(2, sF2, 4, 4)
    stamp(8)
    a('s_lshl_b32 s4, s%d, 16' % sKg); a('s_add_u32 s4, s4, s%d' % sPb)
    for i in range(1, 4):
        a('s_add_u32 s3, s%d, %d' % (sKg, i)); a('s_and_b32 s3, s3, 3'); a('s_lshl_b32 s3, s3, 14'); a('s_add_u32 s%d, s3, s4' % sT0)
        for g in range(4):
            a('buffer_load_dwordx4 %s, v%d, %s, s%d offen offset:%d sc1' % (vr(vO + 16 * i + 4 * g, 4), vOoff, sr(SWS, 4), sT0, g * 1024))
    a('v_and_b32 v2, 31, v1'); a('v_lshrrev_b32 v3, 5, v1'); a('v_lshlrev_b32 v2, 11, v2'); a('v_lshl_add_u32 v2, v3, 5, v2')
    a('s_lshl_b32 s3, s%d, 18' % sB); a('s_lshl_b32 s4, s%d, 16' % sKg); a('s_add_u32 s3, s3, s4')
    a('s_cmp_lt_u32 s%d, 2' % sWave); a('s_cselect_b32 s4, s%d, s%d' % (sPA, sPB))
    a('s_add_u32 s3, s3, s4'); a('s_lshl_b32 s4, s%d, 6' % sWave); a('s_add_u32 s3, s3, s4')
    for i in range(1, 4):
        a('s_waitcnt vmcnt(%d)' % (4 * (3 - i)))
        for r in range(16): a('v_add_f32 v%d, v%d, v%d' % (ACC + r, ACC + r, vO + 16 * i + r))
    for r in range(0, 16, 2): a('v_cvt_pk_bf16_f32 v%d, v%d, v%d' % (vQ + r // 2, ACC + r, ACC + r + 1))
    a('buffer_store_dwordx4 %s, v2, %s, s3 offen' % (vr(vQ, 4), sr(SOUT, 4)))
    a('buffer_store_dwordx4 %s, v2, %s, s3 offen offset:16' % (vr(vQ + 4, 4), sr(SOUT, 4)))
    if OPT['stamps']:
        a('s_waitcnt vmcnt(0)'); stamp(9)
    a.label('L_end')
    a('s_endpgm')
    if FC:
        for j in range(4):
            a.label('L_fc%d' % j)
            a('s_mov_b32 s%d, 0' % sSpin)
            a.label('L_fc%d_l' % j)
            a('buffer_load_dword v4, v%d, %s, 0 offen sc1' % (vCoff, sr(SC, 4)))
            a('s_add_u32 s%d, s%d, 1' % (sSpin, sSpin)); a('s_cmp_ge_u32 s%d, %d' % (sSpin, OPT['spin'])); a('s_cbranch_scc1 L_fc%d_ret' % j)
            a('s_waitcnt vmcnt(0)')
            a('v_cmp_gt_i32 s[4:5], s%d, v4' % sCo); a('s_nop 0'); a('s_and_b32 s4, s4, s%d' % sTgt); a('s_cbranch_scc0 L_fc%d_ret' % j)
            a('s_sleep 2')
            a('s_branch L_fc%d_l' % j)
    for lab, S in rare:
        a.label(lab)
        a('s_nop 15')
        rowmax()
        a('v_max_f32 v%d, 0, v%d' % (vDelta, vMax))
        a('v_sub_f32 v%d, 0, v%d' % (vTmp, vDelta))
        a('v_exp_f32 v%d, v%d' % (vAlpha, vTmp))
        for j in range(32): a('v_sub_f32 v%d, v%d, v%d' % (S + j, S + j, vDelta))
        for j in range(16): a('v_sub_f32 v%d, v%d, v%d' % (vNegM + j, vNegM + j, vDelta))
        a('v_mul_f32 v%d, v%d, v%d' % (vLs, vLs, vAlpha))
        for j in range(64): a('v_mul_f32 v%d, v%d, v%d' % (vO + j, vO + j, vAlpha))
        a('s_nop 3')
        a('s_branch %s_ret' % lab)
    return a

def main():
    a = gen()
    import io, contextlib
    buf = io.StringIO()
    with contextlib.redirect_stdout(buf):
        bad = check_program(a)
    sys.stderr.write(buf.getvalue())
    for b in bad: sys.stderr.write('BRANCH HAZARD %s\n' % (b,))
    print('; @launch grid=(256,1,1) block=(256,1,1) lds=163840')
    print('.amdgcn_target "amdgcn-amd-amdhsa--gfx950"\n.text')
    print(a.text())
    print('''.section .rodata,"a"
.p2align 6
.amdhsa_kernel %s
  .amdhsa_next_free_vgpr 512
  .amdhsa_next_free_sgpr 96
  .amdhsa_accum_offset 256
  .amdhsa_group_segment_fixed_size 0
  .amdhsa_kernarg_size 64
  .amdhsa_user_sgpr_count 2
  .amdhsa_user_sgpr_kernarg_segment_ptr 1
  .amdhsa_system_sgpr_workgroup_id_x 1
.end_amdhsa_kernel''' % NAME)
main()
```

```python
import sys, math, struct
from asmlib import *

OPT = dict(kpol='nt', vpol='nt', xwpol='-', wopol='-', stamps=0, la=14, qla=14, spin=0x8000, nokv=0, psleep=1, sigat=27,
           stagb=5, nowo=0, atm=0, pair=6, kv0at=9, dwg=0, lvalu=0, mx0=44)
for a_ in sys.argv[1:]:
    k, v = a_.split('=')
    assert k in OPT, k
    OPT[k] = v if not v.lstrip('-').isdigit() else int(v)
def pol(k): return str(OPT[k]).replace('+', ' ').replace('-', '')
def f32bits(x): return struct.unpack('<I', struct.pack('<f', x))[0]
QSCALE = f32bits(math.log2(math.e) / math.sqrt(128.0))
THRESH = f32bits(8.0)
def vr(b, n=1): return 'v%d' % b if n == 1 else 'v[%d:%d]' % (b, b + n - 1)
def ar(b, n=1): return 'a%d' % b if n == 1 else 'a[%d:%d]' % (b, b + n - 1)
def sr(b, n=1): return 's%d' % b if n == 1 else 's[%d:%d]' % (b, b + n - 1)
MFMA = 'v_mfma_f32_16x16x32_bf16'
NAME = 'standalone__mha_block_cached__near_ridge_kernel'

def is_valu(x): return x.startswith('v_') and not x.startswith('v_mfma')
def cost(x):
    if x.endswith(':'): return 0
    return 2 if x.startswith('v_exp') else 1

def sched(a, mf, reads, la, npre=0, fill=None, events=None, pair=2, evrange=None, maxrd=2):
    fill = fill or {}; events = events or {}
    st = dict(done=0, nxt=npre)
    def issue(cur, lim):
        n = 0
        while st['nxt'] < len(reads) and n < lim:
            k = st['nxt']; rd = reads[k]
            if rd['first'] > cur + la or rd.get('free', -1) > cur or k - st['done'] >= 15: break
            if k in events:
                if evrange is not None: assert evrange[0] <= cur <= evrange[1], ('event gap', cur, evrange)
                for x in events[k]: a(x)
            a(rd['t']); st['nxt'] += 1; n += 1
    def wait_for(i):
        us = mf[i]['uses']
        assert all(u < st['nxt'] for u in us), ('read not issued', i, mf[i], st)
        if us and max(us) + 1 > st['done']:
            pos = max(us) + 1
            for j in range(i + 1, min(i + pair, len(mf))):
                if mf[j]['uses'] and max(mf[j]['uses']) < st['nxt']: pos = max(pos, max(mf[j]['uses']) + 1)
            a('s_waitcnt lgkmcnt(%d)' % (st['nxt'] - pos)); st['done'] = pos
    def fillers(lst, cur, lim):
        if any(x.endswith(':') for x in lst):
            issue(cur, lim)
            for x in lst: a(x)
            return
        evgap = st['nxt'] in events
        if evgap: issue(cur, lim)
        for x in lst:
            if not is_valu(x): a(x)
        if not evgap: issue(cur, lim)
        for x in lst:
            if x.startswith('v_exp'): a(x)
        for x in lst:
            if is_valu(x) and not x.startswith('v_exp'): a(x)
    fillers(fill.get(-1, []), -1, 99)
    wait_for(0)
    for i, m in enumerate(mf):
        a(m['t'])
        if i + 1 < len(mf):
            if not all(u < st['nxt'] for u in mf[i + 1]['uses']): issue(i, 99)
            wait_for(i + 1)
        fillers(fill.get(i, []), i, maxrd if i + 1 < len(mf) else 99)
    assert st['nxt'] == len(reads), (st, len(reads))

def bsched(a, mf, reads, la, npre=0, events=None, fixed=None, streams=(), pair=2, evrange=None, cap=3):
    fixed = {k: list(v) for k, v in (fixed or {}).items()}
    n = len(mf)
    t = Asm(); sched(t, mf, reads, la, npre=npre, fill=fixed, events=events, pair=pair)
    load = {g: 0 for g in range(-1, n)}; g = -1
    for i in t.ins:
        if i.kind == 'mfma': g += 1
        elif i.kind != 'none': load[g] += cost(i.text)
    load[n - 1] += load[-1] + 1
    total = sum(load[g] for g in range(n)) + sum(cost(o[0]) for s_ in streams for o in s_)
    fill = {g: list(fixed.get(g, [])) for g in range(-1, n)}
    pos = [0] * len(streams); done = 0
    for g in range(n):
        done += load[g]; used = load[g]
        target = total * (g + 1.0) / n + 1.0
        while True:
            cand = sorted((streams[k][pos[k]][2], k) for k in range(len(streams)) if pos[k] < len(streams[k]) and streams[k][pos[k]][1] <= g)
            ok = False
            for dl, k in cand:
                c = cost(streams[k][pos[k]][0])
                if dl <= g or used + c <= 2 or (used + c <= cap and done + c <= target):
                    fill[g].append(streams[k][pos[k]][0]); used += c; done += c; pos[k] += 1; ok = True
                    break
            if not ok: break
    assert all(pos[k] == len(streams[k]) for k in range(len(streams))), pos
    sched(a, mf, reads, la, npre=npre, fill=fill, events=events, pair=pair, evrange=evrange)

STAMP_OFF = 496 * 1024 * 1024
NST = 24

def gen():
    a = Asm()
    a.raw('.globl %s\n.p2align 8\n.type %s,@function' % (NAME, NAME)); a.label(NAME)
    SX, SW, SK, SV, SWS, SWO, SOUT, SDBG, SST = 8, 12, 16, 20, 24, 56, 60, 64, 68
    sWave, sLdsW, sAoff, sBoff, sCnt, sH, sB, sT0, sT1, sOb, sKoff, sVoff, sThr = 29, 30, 31, 32, 33, 34, 35, 46, 47, 48, 49, 50, 51
    sQs, sJ, sKg, sPA, sPB = 52, 54, 55, 44, 45
    sWoP, sWoB, sF1, sF2, sSpin, sEx, sT2, sPb, sBlk = 72, 73, 74, 75, 76, 78, 80, 81, 83
    vKoff, vVoff, vWoOff, vOoff = 10, 12, 14, 15
    vKaddr, vTaddr, vWoAddr = 16, 20, 28
    vMax, vTmp, vTmp2, vDelta, vAlpha = 29, 30, 31, 32, 34
    vQ, vNegM, vLs, vS, vO = 40, 72, 80, [88, 120], 152
    POOL = [216 + 4 * i for i in range(8)]
    vOnes = 248
    vXoff, vWoff, vXaddr, vTw = vQ, vQ + 4, vQ + 22, vQ + 24
    vOaddr = vKaddr
    AUX, BB = 65536, 98304
    vs = lambda t: (t + 3) & 3
    WS_P, WS_F1, WS_F2 = 0x800000, 0x1800000, 0x1810000

    def stamp(idx, dyn=None):
        if not OPT['stamps']: return
        lab = 'L_st%d' % idx
        a('s_cmp_lg_u32 s%d, 0' % sWave); a('s_cbranch_scc1 %s' % lab)
        a('s_memtime s[84:85]' if OPT['stamps'] == 2 else 's_memrealtime s[84:85]')
        if OPT['stamps'] == 4:
            a('s_memtime s[86:87]'); a('s_waitcnt lgkmcnt(0)'); a('s_mov_b32 s85, s86')
        a('s_waitcnt lgkmcnt(0)')
        a('v_mov_b32 v252, s84'); a('v_mov_b32 v253, s85'); a('v_mov_b32 v254, 0')
        a('s_mul_i32 s86, s2, %d' % (NST * 8)); a('s_add_u32 s86, s86, %d' % (idx * 8))
        if dyn is not None:
            a('s_lshl_b32 s87, s%d, 3' % dyn); a('s_add_u32 s86, s86, s87')
        a('buffer_store_dwordx2 v[252:253], v254, %s, s86 offen' % sr(SST, 4))
        a.label(lab)
    def srd(d, lo, hi, off, size):
        if off is None:
            a('s_mov_b32 s%d, s%d' % (d, lo)); a('s_mov_b32 s%d, s%d' % (d + 1, hi))
        else:
            a('s_add_u32 s%d, s%d, %s' % (d, lo, off)); a('s_addc_u32 s%d, s%d, 0' % (d + 1, hi))
        if size is not None: a('s_mov_b32 s%d, %s' % (d + 2, size))
        a('s_mov_b32 s%d, 0x00020000' % (d + 3))

    a('s_cmp_ge_u32 s2, 256')
    a('s_cbranch_scc1 L_end')
    a('s_load_dwordx8 s[36:43], s[0:1], 0')
    a('s_load_dwordx8 s[88:95], s[0:1], 32')
    a('v_lshrrev_b32 v2, 6, v0')
    a('v_and_b32 v1, 63, v0')
    a('v_readfirstlane_b32 s%d, v2' % sWave)
    a('s_and_b32 s%d, s2, 3' % sKg); a('s_lshl_b32 s3, s%d, 3' % sKg); a('s_lshr_b32 s4, s2, 3'); a('s_and_b32 s%d, s4, 7' % sJ)
    a('s_add_u32 s%d, s3, s%d' % (sH, sJ)); a('s_and_b32 s3, s2, 4'); a('s_lshr_b32 s4, s4, 3'); a('s_add_u32 s%d, s3, s4' % sB)
    a('s_lshl_b32 s%d, s%d, 12' % (sLdsW, sWave))
    a('v_lshrrev_b32 v2, 4, v1')
    a('v_and_b32 v3, 15, v1')
    a('v_lshrrev_b32 v4, 3, v1')
    a('v_and_b32 v5, 7, v1')
    a('v_lshlrev_b32 v6, 1, v2'); a('v_xor_b32 v6, v6, v3'); a('v_lshlrev_b32 v6, 4, v6')
    a('v_xor_b32 v9, 0x80, v6')
    a('s_lshl_b32 s3, s%d, 17' % sWave)
    a('v_lshl_add_u32 v7, v2, 13, v6'); a('v_add_u32 v%d, s3, v7' % vWoff)
    a('v_add_u32 v%d, %d, v%d' % (vWoff + 1, 32768 - 1024, vWoff))
    a('v_lshl_add_u32 v7, v2, 13, v9'); a('v_add_u32 v7, s3, v7')
    a('v_add_u32 v%d, %d, v7' % (vWoff + 2, 2 * (32768 - 1024))); a('v_add_u32 v%d, %d, v7' % (vWoff + 3, 3 * (32768 - 1024)))
    a('s_lshl_b32 s3, s%d, 16' % sWave)
    a('v_xor_b32 v7, v2, v5'); a('v_xor_b32 v8, 4, v7')
    a('v_lshlrev_b32 v7, 4, v7'); a('v_lshlrev_b32 v8, 4, v8')
    a('v_lshl_add_u32 v7, v4, 11, v7'); a('v_lshl_add_u32 v8, v4, 11, v8')
    a('v_add_u32 v%d, s3, v7' % vXoff); a('v_add_u32 v8, s3, v8')
    a('v_add_u32 v%d, %d, v8' % (vXoff + 1, 1 * (16384 - 1024)))
    a('v_add_u32 v%d, %d, v%d' % (vXoff + 2, 2 * (16384 - 1024), vXoff))
    a('v_add_u32 v%d, %d, v8' % (vXoff + 3, 3 * (16384 - 1024)))
    a('s_lshl_b32 s3, s%d, 1' % sH); a('s_mul_i32 s4, s%d, %d' % (sB, OPT['stagb'])); a('s_add_u32 s3, s3, s4'); a('s_and_b32 s3, s3, 15')
    a('s_lshl_b32 s%d, s3, 7' % sAoff)
    a('s_lshl_b32 s5, s%d, 18' % sB); a('s_lshl_b32 s6, s%d, 8' % sH); a('s_sub_u32 s%d, 0x800000, s6' % (SW + 2))
    a('s_waitcnt lgkmcnt(0)')
    srd(SX, 36, 37, 's5', '0x40000'); srd(SW, 42, 43, 's6', None)

    XST = [16384, 32768, 49152, 65536]
    WST = [BB, BB + 16384, BB + 32768, BB - 16384]
    def dma_xw(st):
        out = ['s_add_u32 m0, s%d, %d' % (sLdsW, XST[st]), 's_lshl_b32 s%d, s%d, 12' % (sBoff, sAoff)]
        for i in range(4):
            out.append('buffer_load_dwordx4 v%d, %s, s%d offen offset:%d %s lds' % (vXoff + i, sr(SX, 4), sAoff, i * 1024, pol('xwpol')))
        out += ['s_add_u32 m0, s%d, %d' % (sLdsW, WST[st]), 's_add_u32 s%d, s%d, 128' % (sAoff, sAoff)]
        for i in range(4):
            out.append('buffer_load_dwordx4 v%d, %s, s%d offen offset:%d %s lds' % (vWoff + i, sr(SW, 4), sBoff, i * 1024, pol('xwpol')))
            if i == 0: out.append('s_and_b32 s%d, s%d, 0x7ff' % (sAoff, sAoff))
        return out
    def dma_kv(t, S, so, vo, base, p):
        out = ['s_add_u32 m0, s%d, %d' % (sLdsW, base), 's_cmp_lt_u32 s%d, 0x80000' % so, 's_cselect_b32 s%d, %s, 0' % (S + 2, '0' if OPT['nokv'] else '0x80000')]
        for i in range(4):
            out.append('buffer_load_dwordx4 v%d, %s, s%d offen offset:%d %s lds' % (vo + (i >> 1), sr(S, 4), so, i * 1024, pol(p)))
        out.append('s_add_u32 s%d, s%d, 0x4000' % (so, so))
        return out
    dma_k = lambda t: dma_kv(t, SK, sKoff, vKoff, (t & 3) * 16384, 'kpol')
    dma_v = lambda t: dma_kv(t, SV, sVoff, vVoff, BB + vs(t) * 16384, 'vpol')
    def dma_wo():
        out = ['s_lshl_b32 s%d, s%d, 18' % (sT2, sWoP), 's_add_u32 s%d, s%d, s%d' % (sT2, sT2, sWoB),
               's_lshl_b32 m0, s%d, 1' % sLdsW, 's_add_u32 m0, m0, %d' % AUX, 's_add_u32 s%d, s%d, 1' % (sWoP, sWoP)]
        for i in range(8):
            if i == 4: out.append('s_add_u32 m0, m0, 4096')
            if i: out.append('s_add_u32 s%d, s%d, %d' % (sT2, sT2, 8192 - 1024 + (4096 if i == 4 else 0)))
            out.append('buffer_load_dwordx4 v%d, %s, s%d offen offset:%d %s lds' % (vWoOff, sr(SWO, 4), sT2, (i & 3) * 1024, pol('wopol')))
        return out
    def groups(lst):
        gs = [[]]
        for x in lst:
            gs[-1].append(x)
            if x.startswith('buffer'): gs.append([])
        if gs[-1]: gs[-2] += gs[-1]
        return gs[:-1]
    def spread(fixed, lst, g0, step, per=2):
        g = g0
        for grp in groups(lst):
            pre = grp[:[x.startswith('buffer') for x in grp].index(True)]
            rest = grp[len(pre):]
            while len(pre) > 1:
                fixed.setdefault(g, []).extend(pre[:2]); pre = pre[2:]; g += 1
            fixed.setdefault(g, []).extend(pre + rest); g += step
        return g

    for c in range(3):
        for g in groups(dma_xw(c))[:8 if c < 2 else 3]:
            for x in g: a(x)
    a('s_lshl_b32 s3, s%d, 5' % sB); a('s_add_u32 s3, s3, s%d' % sH); a('s_lshl_b32 s3, s3, 19')
    srd(SK, 38, 39, 's3', '0x80000'); srd(SV, 40, 41, 's3', '0x80000')
    srd(SWS, 94, 95, None, '0x2000000'); srd(SWO, 88, 89, None, '0' if OPT['nowo'] else '0x800000'); srd(SOUT, 90, 91, None, '0x200000'); srd(SDBG, 92, 93, None, '256')
    if OPT['stamps']: srd(SST, 94, 95, str(STAMP_OFF), '0x100000')
    stamp(0)
    a('s_lshl_b32 s3, s%d, 2' % sB); a('s_add_u32 s3, s3, s%d' % sKg); a('s_lshl_b32 s3, s3, 10'); a('s_lshl_b32 s4, s%d, 8' % sWave)
    a('s_add_u32 s3, s3, s4'); a('s_add_u32 s%d, s3, 0x%x' % (sF1, WS_F1))
    a('s_lshl_b32 s3, s%d, 3' % sB); a('s_add_u32 s3, s3, s%d' % sJ); a('s_lshl_b32 s3, s3, 10')
    a('s_add_u32 s3, s3, s4'); a('s_add_u32 s%d, s3, 0x%x' % (sF2, WS_F2))
    a('s_lshl_b32 s3, s%d, 2' % sJ); a('s_lshl_b32 s4, s%d, 2' % sKg)
    a('v_mov_b32 v36, s3'); a('v_mov_b32 v37, s4'); a('v_mov_b32 v38, 0'); a('v_mov_b32 v39, 0')
    a('s_mov_b64 %s, exec' % sr(sEx, 2)); a('s_mov_b64 exec, 1')
    a('buffer_atomic_swap v38, v36, %s, s%d offen sc0 sc1' % (sr(SWS, 4), sF1))
    a('buffer_atomic_swap v39, v37, %s, s%d offen sc0 sc1' % (sr(SWS, 4), sF2))
    a('s_mov_b64 exec, %s' % sr(sEx, 2))
    a('s_mov_b32 s%d, 0' % sKoff); a('s_mov_b32 s%d, 0' % sVoff); a('s_mov_b32 s%d, 0' % sWoP)
    a('s_lshl_b32 s3, s%d, 21' % sKg); a('s_lshl_b32 s4, s%d, 16' % sWave); a('s_add_u32 s%d, s3, s4' % sWoB)
    a('s_lshr_b32 s3, s%d, 1' % sJ); a('s_and_b32 s4, s%d, 1' % sJ); a('s_lshl_b32 s4, s4, 2'); a('s_add_u32 s3, s3, s4')
    a('s_lshl_b32 s%d, s3, 7' % sPA)
    a('s_add_u32 s3, s3, 2'); a('s_and_b32 s3, s3, 7'); a('s_add_u32 s3, s3, 7'); a('s_lshl_b32 s%d, s3, 7' % sPB)
    a('v_lshl_add_u32 v7, v2, 8, v6'); a('v_add_u32 v%d, s%d, v7' % (vVoff, sLdsW))
    a('v_lshl_add_u32 v7, v2, 8, v9'); a('v_add_u32 v%d, s%d, v7' % (vVoff + 1, sLdsW))
    a('v_lshlrev_b32 v6, 2, v2'); a('v_xor_b32 v6, v6, v3'); a('v_lshlrev_b32 v6, 4, v6')
    a('v_lshl_add_u32 v%d, v2, 11, v6' % vWoOff)
    a('v_mov_b32 v7, s%d' % sPA); a('v_mov_b32 v8, s%d' % sPB); a('v_cmp_gt_u32 vcc, 128, v6'); a('s_nop 1')
    a('v_cndmask_b32 v7, v8, v7, vcc'); a('v_add_u32 v%d, v7, v%d' % (vWoOff, vWoOff))
    a('s_lshl_b32 s3, s%d, 3' % sWave); a('s_and_b32 s3, s3, 8')
    a('v_xor_b32 v6, v2, v3'); a('v_xor_b32 v6, s3, v6')
    for i in range(2):
        a('v_xor_b32 v7, %d, v6' % (4 * i)); a('v_lshlrev_b32 v7, 4, v7'); a('v_lshl_add_u32 v7, v2, 8, v7')
        a('v_add_u32 v%d, s%d, v7' % (vKoff + i, sLdsW))
    a('v_and_b32 v4, 12, v3'); a('v_and_b32 v5, 3, v3'); a('v_lshl_add_u32 v4, v4, 1, v5')
    a('v_and_b32 v5, 1, v2'); a('v_lshlrev_b32 v5, 1, v5'); a('v_lshrrev_b32 v6, 1, v2'); a('v_or_b32 v5, v5, v6'); a('v_xor_b32 v5, v5, v3')
    for m in range(4):
        a('v_xor_b32 v6, %d, v5' % (4 * m)); a('v_lshlrev_b32 v6, 4, v6'); a('v_lshl_add_u32 v%d, v4, 8, v6' % (vKaddr + m))
    a('v_lshrrev_b32 v5, 1, v3'); a('v_xor_b32 v5, v5, v2')
    for ks in range(2):
        a('v_xor_b32 v6, %d, v5' % (4 * ks)); a('v_lshlrev_b32 v6, 4, v6'); a('v_lshl_add_u32 v6, v3, 7, v6')
        a('v_add_u32 v6, s%d, v6' % sLdsW); a('v_add_u32 v%d, 0x4000, v6' % (vXaddr + ks))
    a('v_lshrrev_b32 v4, 2, v3')
    a('v_lshl_add_u32 v5, v2, 3, v4'); a('v_lshlrev_b32 v5, 8, v5')
    a('v_and_b32 v6, 1, v1'); a('v_lshl_add_u32 v5, v6, 3, v5'); a('v_add_u32 v5, %d, v5' % BB)
    a('v_and_b32 v6, 1, v2'); a('v_lshl_add_u32 v6, v6, 2, v4'); a('v_lshlrev_b32 v6, 1, v6')
    a('v_lshrrev_b32 v7, 1, v1'); a('v_and_b32 v7, 1, v7'); a('v_or_b32 v6, v6, v7')
    for db in range(8):
        a('v_xor_b32 v7, %d, v6' % (2 * db)); a('v_lshl_add_u32 v%d, v7, 4, v5' % (vTaddr + db))
        a('v_add_u32 v%d, -16384, v%d' % (vTw + db, vTaddr + db))
    a('v_lshl_add_u32 v5, v2, 2, v4'); a('v_lshlrev_b32 v5, 8, v5'); a('v_add_u32 v5, 0x%x, v5' % AUX)
    a('s_lshl_b32 s3, s%d, 2' % sWave)
    a('v_xor_b32 v6, s3, v3')
    a('v_lshl_add_u32 v%d, v6, 4, v5' % vWoAddr)
    a('v_lshlrev_b32 v%d, 4, v1' % vOoff)
    for i in range(64): a('v_mov_b32 v%d, 0' % (vS[0] + i))
    a('s_mov_b32 s%d, 0x%08x' % (sQs, QSCALE)); a('s_mov_b32 s%d, 0x%08x' % (sQs + 1, QSCALE)); a('s_mov_b32 s%d, 0x%08x' % (sThr, THRESH))
    for k in range(4): a('v_mov_b32 v%d, 0x3f803f80' % (vOnes + k))
    a('s_mov_b32 s%d, 0' % sCnt)

    LA = OPT['la']
    def tr2(buf, addr, off, first, free):
        return [dict(t='ds_read_b64_tr_b16 %s, v%d offset:%d' % (vr(buf, 2), addr, off), first=first, free=free),
                dict(t='ds_read_b64_tr_b16 %s, v%d offset:%d' % (vr(buf + 2, 2), addr, off + 1024), first=first + 1, free=free)]
    def qk_parts(slot, S, first, mbase=0, rbase=0):
        reads = []; mf = []
        for n in range(16):
            blk, m = n >> 2, n & 3; u, kb2 = blk >> 1, blk & 1
            buf = POOL[n & 7]
            reads.append(dict(t='ds_read_b128 %s, v%d offset:%d' % (vr(buf, 4), vKaddr + m, slot * 16384 + u * 8192 + kb2 * 1024), first=mbase + 2 * n, free=mbase + 2 * n - 15))
            for qb in range(2):
                acc = vr(S + 16 * qb + 4 * blk, 4)
                c = acc if m else ('0' if first else vr(vNegM + 4 * qb, 4))
                mf.append(dict(t='%s %s, %s, %s, %s' % (MFMA, acc, vr(buf, 4), vr(vQ + 8 * m + 4 * qb, 4), c), uses=[rbase + n]))
        return reads, mf
    def lsum(S, u, qb):
        return dict(t='%s %s, %s, %s, %s' % (MFMA, vr(vLs + 4 * qb, 4), vr(vOnes, 4), vr(S + 16 * qb + 8 * u, 4), vr(vLs + 4 * qb, 4)), uses=[])
    def pv_parts(t, S, mbase=0, rbase=0, prev=None):
        reads = []; mf = []; last = dict(prev or {})
        for n in range(16):
            u, db = n >> 3, n & 7
            buf = POOL[n & 7]
            i = mbase + len(mf)
            reads += tr2(buf, vTaddr + db, vs(t) * 16384 + u * 8192, i, last.get(n & 7, -1))
            for qb in range(2):
                acc = vr(vO + 8 * db + 4 * qb, 4)
                mf.append(dict(t='%s %s, %s, %s, %s' % (MFMA, acc, vr(buf, 4), vr(S + 16 * qb + 8 * u, 4), acc), uses=[rbase + 2 * n, rbase + 2 * n + 1]))
            last[n & 7] = i + 1
            if db in (2, 5) and not OPT['lvalu']: mf.append(lsum(S, u, 0 if db == 2 else 1))
        return reads, mf, last
    def softmax_ops(S):
        ops = []
        for u in range(2):
            for qb in range(2):
                b = S + 16 * qb + 8 * u
                for h4 in range(2):
                    q = b + 4 * h4
                    for j in range(4): ops.append(('v_exp_f32 v%d, v%d' % (q + j, q + j), u))
                    for j in range(2):
                        if OPT['lvalu']:
                            ops.append(('v_add_f32 v%d, v%d, v%d' % (vLs + 4 * qb, vLs + 4 * qb, q + 2 * j), u))
                            ops.append(('v_add_f32 v%d, v%d, v%d' % (vLs + 4 * qb, vLs + 4 * qb, q + 2 * j + 1), u))
                        ops.append(('v_cvt_pk_bf16_f32 v%d, v%d, v%d' % (b + 2 * h4 + j, q + 2 * j, q + 2 * j + 1), u))
        return ops
    def max_ops(S):
        regs = [(S + 16 * qb + 4 * blk + r, blk) for blk in range(4) for qb in range(2) for r in range(4)]
        ops = [('v_max3_f32 v%d, v%d, v%d, v%d' % (vMax, regs[0][0], regs[1][0], regs[2][0]), 0)]
        for j in range(3, 31, 2): ops.append(('v_max3_f32 v%d, v%d, v%d, v%d' % (vMax, vMax, regs[j][0], regs[j + 1][0]), regs[j + 1][1]))
        ops.append(('v_max_f32 v%d, v%d, v%d' % (vMax, vMax, regs[31][0]), 3))
        return ops
    def allgroups(v, op):
        for sw in ('v_permlane32_swap_b32', 'v_permlane16_swap_b32'):
            a('v_mov_b32 v%d, v%d' % (vTmp, v)); a('s_nop 1'); a('%s v%d, v%d' % (sw, v, vTmp)); a('s_nop 1'); a('%s v%d, v%d, v%d' % (op, v, v, vTmp))
    def rowmax(S, qb, d):
        b = S + 16 * qb
        a('v_max3_f32 v%d, v%d, v%d, v%d' % (d, b, b + 1, b + 2))
        for j in range(3, 15, 2): a('v_max3_f32 v%d, v%d, v%d, v%d' % (d, d, b + j, b + j + 1))
        a('v_max_f32 v%d, v%d, v%d' % (d, d, b + 15))
        allgroups(d, 'v_max_f32')
    def emit_reads(rs):
        for rd in rs: a(rd['t'])
    def npre_of(r, base, la): return min(13, len([x for x in r if x['first'] - base <= la - 1]))

    WP = [vO + 4 * i for i in range(16)]
    QLA = OPT['qla']
    def qp_reads(st, mbase=0, rbase=0, dbmajor=False):
        reads = []; mf = []; xi = {}
        XP = [vNegM + 4 * k for k in range(4)] if dbmajor else POOL[4 * (st & 1): 4 * (st & 1) + 4]
        order = [(ks, db) for db in range(8) for ks in range(2)] if dbmajor else [(ks, db) for ks in range(2) for db in range(8)]
        for n, (ks, db) in enumerate(order):
            i = mbase + 2 * n
            if ks not in xi:
                xi[ks] = rbase + len(reads)
                for qb in range(2):
                    reads.append(dict(t='ds_read_b128 %s, v%d offset:%d' % (vr(XP[2 * ks + qb], 4), vXaddr + ks, XST[st] - 16384 + qb * 2048), first=i))
            wi = rbase + len(reads)
            reads += tr2(WP[n], vTw + db, WST[st] - (BB - 16384) + ks * 8192, i, i - 31)
            for qb in range(2):
                acc = vr(vS[0] + 8 * db + 4 * qb, 4)
                mf.append(dict(t='%s %s, %s, %s, %s' % (MFMA, acc, vr(WP[n], 4), vr(XP[2 * ks + qb], 4), acc), uses=[wi, wi + 1, xi[ks], xi[ks] + 1]))
        return reads, mf
    gkv = lambda t: groups(dma_k(t) + dma_v(t))
    gxw = lambda c: groups(dma_xw(c & 3))
    def qp_body(c, early, late, tail=()):
        r0, mf = qp_reads(c & 3); r1, _ = qp_reads((c + 1) & 3, 32, dbmajor=(c == 14))
        fill = {}
        for k, g in enumerate(early): fill[4 * k] = list(g)
        for k, g in enumerate(late): fill[22 + 4 * k] = list(g)
        fill.setdefault(31, []); fill[31] += list(tail)
        ev = ['s_waitcnt vmcnt(8)', 's_barrier']
        k1 = OPT['kv0at'] + 1
        if c == k1 and c >= 12: ev = ['s_waitcnt vmcnt(16)', 's_barrier']
        elif c < 4 and k1 < 12 and c == (k1 & 3):
            ev = ['s_cmp_eq_u32 s%d, %d' % (sCnt, k1 >> 2), 's_cbranch_scc1 L_kvw', 's_waitcnt vmcnt(8)', 'L_kvw:', 's_waitcnt vmcnt(16)', 's_barrier']
        sched(a, mf, r0 + r1[:npre_of(r1, 32, QLA)], QLA, npre=npre_of(r0, 0, QLA), fill=fill, events={len(r0): ev}, evrange=(17, 22), pair=4)
    r0, _ = qp_reads(0)
    a('s_waitcnt vmcnt(11)')
    a('s_barrier')
    stamp(10)
    emit_reads(r0[:npre_of(r0, 0, QLA)])
    a.label('L_qp')
    if OPT['stamps']:
        a('s_cmp_lg_u32 s%d, 2' % sCnt); a('s_cbranch_scc1 L_st11')
        stamp(11)
    for c in range(4):
        qp_body(c, gxw(c + 2)[3:], gxw(c + 3)[:3], ['s_add_u32 s%d, s%d, 1' % (sCnt, sCnt), 's_cmp_lt_u32 s%d, 3' % sCnt] if c == 3 else [])
        if c == 2:
            a('s_or_b32 s3, s%d, s%d' % (sWave, sCnt)); a('s_cbranch_scc1 L_noinit')
            a('v_mov_b32 v38, 1'); a('v_mov_b32 v39, 0')
            a('s_mov_b64 exec, 1')
            a('buffer_atomic_add v38, v39, %s, 0 offen sc1' % sr(SDBG, 4))
            a('s_mov_b64 exec, %s' % sr(sEx, 2))
            a.label('L_noinit')
        if c == OPT['kv0at'] & 3:
            a('s_cmp_lg_u32 s%d, %d' % (sCnt, (OPT['kv0at'] >> 2) + (1 if c == 3 else 0))); a('s_cbranch_scc1 L_nokv0')
            for x in dma_k(0) + dma_v(0): a(x)
            a('s_add_u32 m0, s%d, %d' % (sLdsW, XST[(c + 3) & 3]))
            a.label('L_nokv0')
            if c == 3: a('s_cmp_lt_u32 s%d, 3' % sCnt)
    a('s_cbranch_scc1 L_qp')
    qp_body(12, gxw(14)[3:], gxw(15)[:3])
    qp_body(13, gxw(15)[3:], gkv(1)[:3])
    qp_body(14, gkv(1)[3:], gkv(2)[:3])
    def pack(m):
        out = []
        t = vS[0] + 16 * m
        for r in range(0, 16, 2): out.append('v_pk_mul_f32 %s, %s, %s' % (vr(t + r, 2), vr(t + r, 2), sr(sQs, 2)))
        for qb in range(2):
            for h in range(2):
                for k in range(2):
                    s_ = t + 8 * h + 4 * qb + 2 * k
                    out.append('v_cvt_pk_bf16_f32 v%d, v%d, v%d' % (vQ + 8 * m + 4 * qb + 2 * h + k, s_, s_ + 1))
        return out
    def qswap(m):
        return ['v_permlane16_swap_b32 v%d, v%d' % (vQ + 8 * m + 4 * qb + k, vQ + 8 * m + 4 * qb + 2 + k) for qb in range(2) for k in range(2)]
    r0, mf = qp_reads(3, dbmajor=True)
    rq, mq = qk_parts(0, vS[0], True)
    rq32, _ = qk_parts(0, vS[0], True, mbase=32)
    for x in rq32: x['free'] = -1
    NPK = npre_of(rq, 0, LA)
    gk3 = groups(dma_k(3))
    fill = {}
    for k, g in enumerate(gkv(2)[3:]): fill[4 * k] = list(g)
    for k in range(3): fill[22 + 4 * k] = list(gk3[k])
    st = [(x, 12, 31) for x in pack(0)] + [(x, 20, 31) for x in pack(1)[:8]]
    bsched(a, mf, r0 + rq32[:NPK], QLA, npre=npre_of(r0, 0, QLA), fixed=fill, events={len(r0): ['s_barrier']}, evrange=(17, 22), streams=[st], pair=4)
    stamp(1)
    for x in gk3[3]: a(x)
    for x in pack(1)[8:] + qswap(0) + pack(2) + qswap(1) + pack(3) + qswap(2) + ['s_nop 0'] + qswap(3): a(x)
    rn, _ = qk_parts(1, vS[1], False, mbase=32)
    zero = ['v_mov_b32 v%d, 0' % (vO + i) for i in range(64)]
    fill = {i: zero[2 * i: 2 * i + 2] for i in range(32)}
    sched(a, mq, rq + rn[:NPK], LA, npre=NPK, fill=fill, events={16: ['s_waitcnt vmcnt(16)', 's_barrier']}, pair=OPT['pair'])
    a('s_barrier')
    gk4 = groups(dma_k(4))
    for k in range(8): a('v_mov_b32 v%d, 0' % (vLs + k))
    for qb in range(2):
        for x in gk4[2 * qb]: a(x)
        rowmax(vS[0], qb, vDelta + qb)
        for x in gk4[2 * qb + 1]: a(x)
        for j in range(4): a('v_sub_f32 v%d, 0, v%d' % (vNegM + 4 * qb + j, vDelta + qb))
        for j in range(16): a('v_sub_f32 v%d, v%d, v%d' % (vS[0] + 16 * qb + j, vS[0] + 16 * qb + j, vDelta + qb))
    stamp(2)

    rare = []
    def iteration(j, vm, kind='mid', tag=''):
        cur, nxt = vS[j & 1], vS[(j + 1) & 1]
        sm = softmax_ops(cur)
        if kind != 'last':
            r1, m1 = qk_parts((j + 1) & 3, nxt, False)
            r2, m2, last = pv_parts(j, cur, 32, 16, prev={b: 2 * (8 + b) + 1 for b in range(8)})
            n = len(m1) + len(m2)
            if kind == 'mid':
                r3, _ = qk_parts((j + 2) & 3, cur, False, mbase=n)
                for k in range(8): r3[k]['free'] = last[k]
                r3 = r3[:NPK]
            else:
                r3, _, _ = pv_parts(j + 1, nxt, n, prev=last); r3 = r3[:NPV]
            reads, mf = r1 + r2 + r3, m1 + m2
            u1 = 32 + len(m2) // 2
            st1 = []; ne = 0
            for x, u in sm:
                if x.startswith('v_exp'): ne += 1
                st1.append((x, 0, min(29 if u == 0 else u1 - 3, (ne * (u1 - 4)) // 32 + (0 if x.startswith('v_exp') else 1))))
            st2 = [(x, max(8 * blk + 12, OPT['mx0']), n - 1) for x, blk in max_ops(nxt)] + [('v_cmp_lt_f32 vcc, s%d, v%d' % (sThr, vMax), 40, n - 1)]
            fixed = {}
            ev0 = n - LA
            if kind == 'mid':
                if j == 0: g = spread(fixed, dma_wo(), ev0 - 28, 3); assert g <= ev0 + 2, g
                g = spread(fixed, dma_v(j + 3) + dma_k(j + 1), ev0 + 2, 1); assert g - 1 < n, g
            bsched(a, mf, reads, LA, npre=NPK, events={len(r1) + len(r2): ['s_waitcnt vmcnt(%d)' % vm, 's_barrier']}, fixed=fixed, streams=[st1, st2],
                   pair=OPT['pair'], evrange=(ev0, ev0 + 2))
            lab = 'L_rare%d%s' % (j, tag)
            a('s_cbranch_vccnz %s' % lab)
            a.label(lab + '_ret')
            rare.append((lab, nxt))
        else:
            reads, mf, _ = pv_parts(j, cur)
            u1 = len(mf) // 2
            for x, u in sm:
                if u == 0: a(x)
            st1 = [(x, 0, u1 - 3) for x, u in sm if u == 1]
            bsched(a, mf, reads, LA, npre=NPV, streams=[st1], pair=OPT['pair'], cap=5)
    NPV = npre_of(pv_parts(0, vS[0])[0], 0, LA)

    def wo_block(p):
        for m in range(4):
            for nb in range(2):
                for h in range(2):
                    a('ds_read_b64_tr_b16 %s, v%d offset:%d' % (ar(32 * p + 8 * m + 4 * nb + 2 * h, 2), vWoAddr, m * 8192 + h * 4096 + nb * 8))
        a('s_waitcnt lgkmcnt(0)')
    def wo_chain(tag):
        a('s_sub_u32 s%d, s%d, s%d' % (sBlk, sCnt, sJ)); a('s_and_b32 s%d, s%d, 7' % (sBlk, sBlk))
        for p in range(8):
            if p < 7:
                a('s_cmp_lg_u32 s%d, %d' % (sBlk, p)); a('s_cbranch_scc1 L_wb%s%d' % (tag, p + 1))
            wo_block(p)
            if p < 7: a('s_branch L_wbdone%s' % tag)
            a.label('L_wb%s%d' % (tag, p + 1) if p < 7 else 'L_wbdone%s' % tag)
    a('s_mov_b32 s%d, 0' % sCnt)
    a.label('L_at')
    stamp(12, sCnt)
    iteration(0, 20)
    iteration(1, 20)
    a('s_cmp_eq_u32 s%d, 7' % sCnt)
    a('s_cbranch_scc1 L_at_last')
    iteration(2, 12)
    wo_chain('a')
    iteration(3, 12)
    a('s_add_u32 s%d, s%d, 1' % (sCnt, sCnt))
    a('s_branch L_at')
    a.label('L_at_last')
    iteration(2, 0, kind='pen', tag='p')
    wo_chain('b')
    iteration(3, 0, kind='last')
    stamp(3)

    a('s_lshl_b32 s3, s%d, 2' % sB); a('s_add_u32 s3, s3, s%d' % sWave); a('s_lshl_b32 s3, s3, 18')
    a('s_lshl_b32 s4, s%d, 16' % sKg); a('s_add_u32 s%d, s3, s4' % sOb)
    a('s_lshl_b32 s4, s%d, 13' % sJ); a('s_add_u32 s%d, s%d, s4' % (sT0, sOb)); a('s_add_u32 s%d, s%d, 4096' % (sT1, sT0))
    a('s_lshl_b32 s5, s%d, 1' % sLdsW)
    a('v_add_u32 v2, s5, v%d' % vOoff); a('v_add_u32 v2, 0x8000, v2')
    a('v_mov_b32 v39, 0')
    a('s_waitcnt vmcnt(0)')
    a('buffer_load_dword v38, v39, %s, 0 offen sc1' % sr(SDBG, 4))
    for qb in range(2):
        if OPT['lvalu']: allgroups(vLs + 4 * qb, 'v_add_f32')
        a('v_rcp_f32 v%d, v%d' % (vAlpha + qb, vLs + 4 * qb))
    for m in range(4):
        for qb in range(2):
            f = vQ + 16 * qb + 4 * m
            for h in range(2):
                t = vO + 8 * (2 * m + h) + 4 * qb
                for r in range(4): a('v_mul_f32 v%d, v%d, v%d' % (t + r, vAlpha + qb, t + r))
                for k in range(2): a('v_cvt_pk_bf16_f32 v%d, v%d, v%d' % (f + 2 * h + k, t + 2 * k, t + 2 * k + 1))
            a('buffer_store_dwordx4 %s, v%d, %s, s%d offen offset:%d sc1' % (vr(f, 4), vOoff, sr(SWS, 4), sT1 if qb else sT0, m * 1024))
            a('ds_write_b128 v2, %s offset:%d' % (vr(f, 4), qb * 4096 + m * 1024))
    for i in range(4):
        a('s_add_u32 s3, s%d, %d' % (sKg, i)); a('s_and_b32 s3, s3, 3'); a('s_lshl_b32 s3, s3, 13')
        a('v_add_u32 v%d, s3, v%d' % (vOaddr + i, vOoff))
        a('v_add_u32 v%d, 0x10000, v%d' % (vOaddr + 4 + i, vOaddr + i))
        a('v_add_u32 v%d, 0x20000, v%d' % (vOaddr + 8 + i, vOaddr + i))
    a('s_waitcnt lgkmcnt(0)')
    a('s_barrier')
    ACC = vS[0]
    OSLOT = [1, 0, 2, 3, 4, 1, 0, 2]
    def op_parts(p, mbase=0):
        slot = OSLOT[p]
        reads = []; mf = []
        order = [(m, i, qb) for m in range(4) for i in range(4) for qb in range(2)] if p < 7 else [(m, i, qb) for i in (1, 2, 3, 0) for m in range(4) for qb in range(2)]
        for n, (m, i, qb) in enumerate(order):
            buf = POOL[n & 7]
            reads.append(dict(t='ds_read_b128 %s, v%d offset:%d' % (vr(buf, 4), vOaddr + 4 * (slot >> 1) + i, (slot & 1) * 32768 + qb * 4096 + m * 1024), first=mbase + 2 * n, free=mbase + 2 * n - 15))
            for nb in range(2):
                acc = vr(ACC + 16 * i + 8 * qb + 4 * nb, 4)
                mf.append(dict(t='%s %s, %s, %s, %s' % (MFMA, acc, ar(32 * p + 8 * m + 4 * nb, 4), vr(buf, 4), '0' if (p == 0 and m == 0) else acc), uses=[n]))
        return reads, mf
    def dma_o(p):
        out = ['s_add_u32 s3, s%d, %d' % (sJ, p), 's_and_b32 s3, s3, 7', 's_lshl_b32 s3, s3, 13', 's_add_u32 s%d, s3, s%d' % (sT0, sOb),
               's_add_u32 m0, s5, %d' % (OSLOT[p] * 32768), 's_add_u32 s%d, s%d, 4096' % (sT1, sT0)]
        for m in range(4): out.append('buffer_load_dwordx4 v%d, %s, s%d offen offset:%d sc1 lds' % (vOoff, sr(SWS, 4), sT0, m * 1024))
        out += ['s_add_u32 m0, m0, 4096', 's_nop 0']
        for m in range(4): out.append('buffer_load_dwordx4 v%d, %s, s%d offen offset:%d sc1 lds' % (vOoff, sr(SWS, 4), sT1, m * 1024))
        return out
    def signal(sF, vown, vpoll, cnt):
        return ['v_mov_b32 v38, 1', 's_mov_b64 exec, 1',
                'buffer_store_dword v38, v%d, %s, s%d offen sc1' % (vown, sr(SWS, 4), sF),
                's_mov_b64 exec, %d' % ((1 << cnt) - 2),
                'buffer_load_dword v39, v%d, %s, s%d offen sc1' % (vpoll, sr(SWS, 4), sF),
                's_mov_b64 exec, %s' % sr(sEx, 2)]
    def poll(n, sF, vpoll, cnt):
        a('s_mov_b64 exec, %d' % ((1 << cnt) - 2))
        a('s_mov_b32 s%d, 0' % sSpin)
        a.label('L_poll%d' % n)
        a('s_waitcnt vmcnt(0)')
        a('v_cmp_ne_u32 vcc, 1, v39')
        a('s_cbranch_vccz L_poll%d_out' % n)
        a('s_add_u32 s%d, s%d, 1' % (sSpin, sSpin)); a('s_cmp_ge_u32 s%d, %d' % (sSpin, OPT['spin'])); a('s_cbranch_scc1 L_poll%d_out' % n)
        if OPT['psleep']: a('s_sleep %d' % OPT['psleep'])
        a('buffer_load_dword v39, v%d, %s, s%d offen sc1' % (vpoll, sr(SWS, 4), sF))
        a('s_branch L_poll%d' % n)
        a.label('L_poll%d_out' % n)
        a('s_mov_b64 exec, %s' % sr(sEx, 2))
    a('v_add_u32 v3, s%d, v1' % sJ); a('v_and_b32 v3, 7, v3'); a('v_lshlrev_b32 v3, 2, v3')
    a('v_add_u32 v4, s%d, v1' % sKg); a('v_and_b32 v4, 3, v4'); a('v_lshlrev_b32 v4, 2, v4')
    r, m = op_parts(0)
    mid = ['s_waitcnt vmcnt(0)', 's_mov_b32 s%d, 0' % sSpin, 'L_init:', 'v_readfirstlane_b32 s3, v38', 's_add_u32 s%d, s%d, 1' % (sSpin, sSpin),
           's_cmp_ge_u32 s3, 256', 's_cbranch_scc1 L_init_ok', 's_cmp_ge_u32 s%d, %d' % (sSpin, OPT['spin']), 's_cbranch_scc1 L_init_ok',
           'v_mov_b32 v39, 0', 'buffer_load_dword v38, v39, %s, 0 offen sc1' % sr(SDBG, 4), 's_waitcnt vmcnt(0)', 's_branch L_init', 'L_init_ok:'] + signal(sF1, 36, 3, 8)
    sched(a, m, r, LA, fill={OPT['sigat']: mid}, pair=4)
    stamp(4)
    poll(1, sF1, 3, 8)
    stamp(5)
    for p in range(1, 3):
        for x in dma_o(p): a(x)
    a('s_waitcnt vmcnt(8)'); a('s_barrier')
    r, _ = op_parts(1)
    emit_reads(r[:NPK])
    a('s_lshl_b32 s3, s%d, 3' % sB); a('s_add_u32 s3, s3, s%d' % sJ); a('s_lshl_b32 s3, s3, 18'); a('s_add_u32 s3, s3, s%d' % sLdsW)
    a('s_add_u32 s%d, s3, 0x%x' % (sPb, WS_P))
    a('s_lshl_b32 s6, s%d, 14' % sKg); a('s_add_u32 s6, s6, s%d' % sPb)
    def send(i):
        out = ['s_add_u32 s3, s%d, %d' % (sKg, i), 's_and_b32 s3, s3, 3', 's_lshl_b32 s3, s3, 16', 's_add_u32 s%d, s3, s6' % sT0]
        for g in range(4):
            out.append('buffer_store_dwordx4 %s, v%d, %s, s%d offen offset:%d sc1' % (vr(ACC + 16 * i + 4 * g, 4), vOoff, sr(SWS, 4), sT0, g * 1024))
        return out
    for p in range(1, 8):
        r, m = op_parts(p)
        fill = {}
        if p < 7:
            rn, _ = op_parts(p + 1, 64)
            if p + 2 <= 7:
                g = spread(fill, dma_o(p + 2), 0, 5); assert g - 5 < 64 - LA
            sched(a, m, r + rn[:NPK], LA, npre=NPK, fill=fill, events={32: ['s_waitcnt vmcnt(%d)' % (8 if p + 2 <= 7 else 0), 's_barrier']}, evrange=(64 - LA, 63), pair=4)
        else:
            for i in (1, 2, 3): spread(fill, send(i), 16 * i + 3, 2)
            sched(a, m, r, LA, npre=NPK, fill=fill, pair=4)
    stamp(6)
    a('s_waitcnt vmcnt(0)')
    stamp(7)
    for x in signal(sF2, 37, 4, 4): a(x)
    poll(2, sF2, 4, 4)
    stamp(8)
    a('s_lshl_b32 s4, s%d, 16' % sKg); a('s_add_u32 s4, s4, s%d' % sPb)
    for i in range(1, 4):
        a('s_add_u32 s3, s%d, %d' % (sKg, i)); a('s_and_b32 s3, s3, 3'); a('s_lshl_b32 s3, s3, 14'); a('s_add_u32 s%d, s3, s4' % sT0)
        for g in range(4):
            a('buffer_load_dwordx4 %s, v%d, %s, s%d offen offset:%d sc1' % (vr(vO + 16 * i + 4 * g, 4), vOoff, sr(SWS, 4), sT0, g * 1024))
    a('v_and_b32 v2, 15, v1'); a('v_lshrrev_b32 v3, 4, v1'); a('v_lshlrev_b32 v2, 11, v2'); a('v_lshl_add_u32 v2, v3, 4, v2')
    a('s_lshl_b32 s3, s%d, 18' % sB); a('s_lshl_b32 s4, s%d, 16' % sKg); a('s_add_u32 s3, s3, s4')
    a('s_cmp_lt_u32 s%d, 2' % sWave); a('s_cselect_b32 s4, s%d, s%d' % (sPA, sPB))
    a('s_add_u32 s3, s3, s4'); a('s_lshl_b32 s4, s%d, 6' % sWave); a('s_add_u32 s3, s3, s4'); a('s_add_u32 s4, s3, 0x8000')
    for i in range(1, 4):
        a('s_waitcnt vmcnt(%d)' % (4 * (3 - i)))
        for r in range(16): a('v_add_f32 v%d, v%d, v%d' % (ACC + r, ACC + r, vO + 16 * i + r))
    for r in range(0, 16, 2): a('v_cvt_pk_bf16_f32 v%d, v%d, v%d' % (vQ + r // 2, ACC + r, ACC + r + 1))
    a('buffer_store_dwordx4 %s, v2, %s, s3 offen' % (vr(vQ, 4), sr(SOUT, 4)))
    a('buffer_store_dwordx4 %s, v2, %s, s4 offen' % (vr(vQ + 4, 4), sr(SOUT, 4)))
    if OPT['stamps']:
        a('s_waitcnt vmcnt(0)'); stamp(9)
    a.label('L_end')
    a('s_endpgm')
    for lab, S in rare:
        a.label(lab)
        a('s_nop 15')
        for qb in range(2):
            d, al = vDelta + qb, vAlpha + qb
            rowmax(S, qb, d)
            a('v_max_f32 v%d, 0, v%d' % (d, d))
            a('v_sub_f32 v%d, 0, v%d' % (vTmp, d))
            a('v_exp_f32 v%d, v%d' % (al, vTmp))
            for j in range(16): a('v_sub_f32 v%d, v%d, v%d' % (S + 16 * qb + j, S + 16 * qb + j, d))
            for j in range(4): a('v_sub_f32 v%d, v%d, v%d' % (vNegM + 4 * qb + j, vNegM + 4 * qb + j, d))
            for j in range(4): a('v_mul_f32 v%d, v%d, v%d' % (vLs + 4 * qb + j, vLs + 4 * qb + j, al))
            for db in range(8):
                for j in range(4): a('v_mul_f32 v%d, v%d, v%d' % (vO + 8 * db + 4 * qb + j, vO + 8 * db + 4 * qb + j, al))
        a('s_nop 3')
        a('s_branch %s_ret' % lab)
    return a

def main():
    a = gen()
    import io, contextlib
    buf = io.StringIO()
    with contextlib.redirect_stdout(buf):
        bad = check_program(a)
    sys.stderr.write(buf.getvalue())
    for b in bad: sys.stderr.write('BRANCH HAZARD %s\n' % (b,))
    print('; @launch grid=(256,1,1) block=(256,1,1) lds=163840')
    print('.amdgcn_target "amdgcn-amd-amdhsa--gfx950"\n.text')
    print(a.text())
    print('''.section .rodata,"a"
.p2align 6
.amdhsa_kernel %s
  .amdhsa_next_free_vgpr 512
  .amdhsa_next_free_sgpr 96
  .amdhsa_accum_offset 256
  .amdhsa_group_segment_fixed_size 0
  .amdhsa_kernarg_size 64
  .amdhsa_user_sgpr_count 2
  .amdhsa_user_sgpr_kernarg_segment_ptr 1
  .amdhsa_system_sgpr_workgroup_id_x 1
.end_amdhsa_kernel''' % NAME)
main()
```

```python
import sys, math, struct
from asmlib import *

OPT = dict(kpol='nt', vpol='nt', xwpol='-', wopol='-', stamps=0, la=14, qla=14, spin=0x8000, nokv=0, psleep=1, sigat=27,
           stagb=5, nowo=0, atm=0, pair=6, kv0at=9, dwg=0, lvalu=0, mx0=44, qpm=0, odep=2)
for a_ in sys.argv[1:]:
    k, v = a_.split('=')
    assert k in OPT, k
    OPT[k] = v if not v.lstrip('-').isdigit() else int(v)
def pol(k): return str(OPT[k]).replace('+', ' ').replace('-', '')
def f32bits(x): return struct.unpack('<I', struct.pack('<f', x))[0]
QSCALE = f32bits(math.log2(math.e) / math.sqrt(128.0))
THRESH = f32bits(8.0)
def vr(b, n=1): return 'v%d' % b if n == 1 else 'v[%d:%d]' % (b, b + n - 1)
def ar(b, n=1): return 'a%d' % b if n == 1 else 'a[%d:%d]' % (b, b + n - 1)
def sr(b, n=1): return 's%d' % b if n == 1 else 's[%d:%d]' % (b, b + n - 1)
MFMA = 'v_mfma_f32_16x16x32_bf16'
NAME = 'standalone__mha_block_cached__near_ridge_kernel'

def is_valu(x): return x.startswith('v_') and not x.startswith('v_mfma')
def cost(x):
    if x.endswith(':'): return 0
    return 2 if x.startswith('v_exp') else 1

def sched(a, mf, reads, la, npre=0, fill=None, events=None, pair=2, evrange=None, maxrd=2):
    fill = fill or {}; events = events or {}
    st = dict(done=0, nxt=npre)
    def issue(cur, lim):
        n = 0
        while st['nxt'] < len(reads) and n < lim:
            k = st['nxt']; rd = reads[k]
            if rd['first'] > cur + la or rd.get('free', -1) > cur or k - st['done'] >= 15: break
            if k in events:
                if evrange is not None: assert evrange[0] <= cur <= evrange[1], ('event gap', cur, evrange)
                for x in events[k]: a(x)
            a(rd['t']); st['nxt'] += 1; n += 1
    def wait_for(i):
        us = mf[i]['uses']
        assert all(u < st['nxt'] for u in us), ('read not issued', i, mf[i], st)
        if us and max(us) + 1 > st['done']:
            pos = max(us) + 1
            for j in range(i + 1, min(i + pair, len(mf))):
                if mf[j]['uses'] and max(mf[j]['uses']) < st['nxt']: pos = max(pos, max(mf[j]['uses']) + 1)
            a('s_waitcnt lgkmcnt(%d)' % (st['nxt'] - pos)); st['done'] = pos
    def fillers(lst, cur, lim):
        if any(x.endswith(':') for x in lst):
            issue(cur, lim)
            for x in lst: a(x)
            return
        evgap = st['nxt'] in events
        if evgap: issue(cur, lim)
        for x in lst:
            if not is_valu(x): a(x)
        if not evgap: issue(cur, lim)
        for x in lst:
            if x.startswith('v_exp'): a(x)
        for x in lst:
            if is_valu(x) and not x.startswith('v_exp'): a(x)
    fillers(fill.get(-1, []), -1, 99)
    wait_for(0)
    for i, m in enumerate(mf):
        a(m['t'])
        if i + 1 < len(mf):
            if not all(u < st['nxt'] for u in mf[i + 1]['uses']): issue(i, 99)
            wait_for(i + 1)
        fillers(fill.get(i, []), i, maxrd if i + 1 < len(mf) else 99)
    assert st['nxt'] == len(reads), (st, len(reads))

def bsched(a, mf, reads, la, npre=0, events=None, fixed=None, streams=(), pair=2, evrange=None, cap=3):
    fixed = {k: list(v) for k, v in (fixed or {}).items()}
    n = len(mf)
    t = Asm(); sched(t, mf, reads, la, npre=npre, fill=fixed, events=events, pair=pair)
    load = {g: 0 for g in range(-1, n)}; g = -1
    for i in t.ins:
        if i.kind == 'mfma': g += 1
        elif i.kind != 'none': load[g] += cost(i.text)
    load[n - 1] += load[-1] + 1
    total = sum(load[g] for g in range(n)) + sum(cost(o[0]) for s_ in streams for o in s_)
    fill = {g: list(fixed.get(g, [])) for g in range(-1, n)}
    pos = [0] * len(streams); done = 0
    for g in range(n):
        done += load[g]; used = load[g]
        target = total * (g + 1.0) / n + 1.0
        while True:
            cand = sorted((streams[k][pos[k]][2], k) for k in range(len(streams)) if pos[k] < len(streams[k]) and streams[k][pos[k]][1] <= g)
            ok = False
            for dl, k in cand:
                c = cost(streams[k][pos[k]][0])
                if dl <= g or used + c <= 2 or (used + c <= cap and done + c <= target):
                    fill[g].append(streams[k][pos[k]][0]); used += c; done += c; pos[k] += 1; ok = True
                    break
            if not ok: break
    assert all(pos[k] == len(streams[k]) for k in range(len(streams))), pos
    sched(a, mf, reads, la, npre=npre, fill=fill, events=events, pair=pair, evrange=evrange)

STAMP_OFF = 496 * 1024 * 1024
NST = 24

def gen():
    a = Asm()
    a.raw('.globl %s\n.p2align 8\n.type %s,@function' % (NAME, NAME)); a.label(NAME)
    SX, SW, SK, SV, SWS, SWO, SOUT, SDBG, SST = 8, 12, 16, 20, 24, 56, 60, 64, 68
    sWave, sLdsW, sAoff, sBoff, sCnt, sH, sB, sT0, sT1, sOb, sKoff, sVoff, sThr = 29, 30, 31, 32, 33, 34, 35, 46, 47, 48, 49, 50, 51
    sQs, sJ, sKg, sPA, sPB = 52, 54, 55, 44, 45
    sWoP, sWoB, sF1, sF2, sSpin, sEx, sT2, sPb, sBlk = 72, 73, 74, 75, 76, 78, 80, 81, 83
    vKoff, vVoff, vWoOff, vOoff = 10, 12, 14, 15
    vKaddr, vTaddr, vWoAddr = 16, 20, 28
    vMax, vTmp, vTmp2, vDelta, vAlpha = 29, 30, 31, 32, 34
    vQ, vNegM, vLs, vS, vO = 40, 72, 80, [88, 120], 152
    POOL = [216 + 4 * i for i in range(8)]
    vOnes = 248
    vXoff, vWoff, vXaddr, vTw = vQ, vQ + 4, vQ + 22, vQ + 24
    vOaddr = vKaddr
    AUX, BB = 65536, 98304
    vs = lambda t: (t + 3) & 3
    WS_P, WS_F1, WS_F2 = 0x800000, 0x1800000, 0x1810000

    def stamp(idx, dyn=None):
        if not OPT['stamps']: return
        lab = 'L_st%d' % idx
        a('s_cmp_lg_u32 s%d, 0' % sWave); a('s_cbranch_scc1 %s' % lab)
        a('s_memtime s[84:85]' if OPT['stamps'] == 2 else 's_memrealtime s[84:85]')
        if OPT['stamps'] == 4:
            a('s_memtime s[86:87]'); a('s_waitcnt lgkmcnt(0)'); a('s_mov_b32 s85, s86')
        a('s_waitcnt lgkmcnt(0)')
        a('v_mov_b32 v252, s84'); a('v_mov_b32 v253, s85'); a('v_mov_b32 v254, 0')
        a('s_mul_i32 s86, s2, %d' % (NST * 8)); a('s_add_u32 s86, s86, %d' % (idx * 8))
        if dyn is not None:
            a('s_lshl_b32 s87, s%d, 3' % dyn); a('s_add_u32 s86, s86, s87')
        a('buffer_store_dwordx2 v[252:253], v254, %s, s86 offen' % sr(SST, 4))
        a.label(lab)
    def srd(d, lo, hi, off, size):
        if off is None:
            a('s_mov_b32 s%d, s%d' % (d, lo)); a('s_mov_b32 s%d, s%d' % (d + 1, hi))
        else:
            a('s_add_u32 s%d, s%d, %s' % (d, lo, off)); a('s_addc_u32 s%d, s%d, 0' % (d + 1, hi))
        if size is not None: a('s_mov_b32 s%d, %s' % (d + 2, size))
        a('s_mov_b32 s%d, 0x00020000' % (d + 3))

    a('s_cmp_ge_u32 s2, 256')
    a('s_cbranch_scc1 L_end')
    a('s_load_dwordx8 s[36:43], s[0:1], 0')
    a('s_load_dwordx8 s[88:95], s[0:1], 32')
    a('v_lshrrev_b32 v2, 6, v0')
    a('v_and_b32 v1, 63, v0')
    a('v_readfirstlane_b32 s%d, v2' % sWave)
    a('s_and_b32 s%d, s2, 3' % sKg); a('s_lshl_b32 s3, s%d, 3' % sKg); a('s_lshr_b32 s4, s2, 3'); a('s_and_b32 s%d, s4, 7' % sJ)
    a('s_add_u32 s%d, s3, s%d' % (sH, sJ)); a('s_and_b32 s3, s2, 4'); a('s_lshr_b32 s4, s4, 3'); a('s_add_u32 s%d, s3, s4' % sB)
    a('s_lshl_b32 s%d, s%d, 12' % (sLdsW, sWave))
    a('v_lshrrev_b32 v2, 4, v1')
    a('v_and_b32 v3, 15, v1')
    a('v_lshrrev_b32 v4, 3, v1')
    a('v_and_b32 v5, 7, v1')
    a('v_lshlrev_b32 v6, 1, v2'); a('v_xor_b32 v6, v6, v3'); a('v_lshlrev_b32 v6, 4, v6')
    a('v_xor_b32 v9, 0x80, v6')
    a('s_lshl_b32 s3, s%d, 17' % sWave)
    a('v_lshl_add_u32 v7, v2, 13, v6'); a('v_add_u32 v%d, s3, v7' % vWoff)
    a('v_add_u32 v%d, %d, v%d' % (vWoff + 1, 32768 - 1024, vWoff))
    a('v_lshl_add_u32 v7, v2, 13, v9'); a('v_add_u32 v7, s3, v7')
    a('v_add_u32 v%d, %d, v7' % (vWoff + 2, 2 * (32768 - 1024))); a('v_add_u32 v%d, %d, v7' % (vWoff + 3, 3 * (32768 - 1024)))
    a('s_lshl_b32 s3, s%d, 16' % sWave)
    a('v_xor_b32 v7, v2, v5'); a('v_xor_b32 v8, 4, v7')
    a('v_lshlrev_b32 v7, 4, v7'); a('v_lshlrev_b32 v8, 4, v8')
    a('v_lshl_add_u32 v7, v4, 11, v7'); a('v_lshl_add_u32 v8, v4, 11, v8')
    a('v_add_u32 v%d, s3, v7' % vXoff); a('v_add_u32 v8, s3, v8')
    a('v_add_u32 v%d, %d, v8' % (vXoff + 1, 1 * (16384 - 1024)))
    a('v_add_u32 v%d, %d, v%d' % (vXoff + 2, 2 * (16384 - 1024), vXoff))
    a('v_add_u32 v%d, %d, v8' % (vXoff + 3, 3 * (16384 - 1024)))
    a('s_lshl_b32 s3, s%d, 1' % sH); a('s_mul_i32 s4, s%d, %d' % (sB, OPT['stagb'])); a('s_add_u32 s3, s3, s4'); a('s_and_b32 s3, s3, 15')
    a('s_lshl_b32 s%d, s3, 7' % sAoff)
    a('s_lshl_b32 s5, s%d, 18' % sB); a('s_lshl_b32 s6, s%d, 8' % sH); a('s_sub_u32 s%d, 0x800000, s6' % (SW + 2))
    a('s_waitcnt lgkmcnt(0)')
    srd(SX, 36, 37, 's5', '0x40000'); srd(SW, 42, 43, 's6', None)

    XST = [16384, 32768, 49152, 65536]
    WST = [BB, BB + 16384, BB + 32768, BB - 16384]
    def dma_xw(st):
        out = ['s_add_u32 m0, s%d, %d' % (sLdsW, XST[st]), 's_lshl_b32 s%d, s%d, 12' % (sBoff, sAoff)]
        for i in range(4):
            out.append('buffer_load_dwordx4 v%d, %s, s%d offen offset:%d %s lds' % (vXoff + i, sr(SX, 4), sAoff, i * 1024, pol('xwpol')))
        out += ['s_add_u32 m0, s%d, %d' % (sLdsW, WST[st]), 's_add_u32 s%d, s%d, 128' % (sAoff, sAoff)]
        for i in range(4):
            out.append('buffer_load_dwordx4 v%d, %s, s%d offen offset:%d %s lds' % (vWoff + i, sr(SW, 4), sBoff, i * 1024, pol('xwpol')))
            if i == 0: out.append('s_and_b32 s%d, s%d, 0x7ff' % (sAoff, sAoff))
        return out
    def dma_kv(t, S, so, vo, base, p):
        out = ['s_add_u32 m0, s%d, %d' % (sLdsW, base), 's_cmp_lt_u32 s%d, 0x80000' % so, 's_cselect_b32 s%d, %s, 0' % (S + 2, '0' if OPT['nokv'] else '0x80000')]
        for i in range(4):
            out.append('buffer_load_dwordx4 v%d, %s, s%d offen offset:%d %s lds' % (vo + (i >> 1), sr(S, 4), so, i * 1024, pol(p)))
        out.append('s_add_u32 s%d, s%d, 0x4000' % (so, so))
        return out
    dma_k = lambda t: dma_kv(t, SK, sKoff, vKoff, (t & 3) * 16384, 'kpol')
    dma_v = lambda t: dma_kv(t, SV, sVoff, vVoff, BB + vs(t) * 16384, 'vpol')
    def dma_wo():
        out = ['s_lshl_b32 s%d, s%d, 18' % (sT2, sWoP), 's_add_u32 s%d, s%d, s%d' % (sT2, sT2, sWoB),
               's_lshl_b32 m0, s%d, 1' % sLdsW, 's_add_u32 m0, m0, %d' % AUX, 's_add_u32 s%d, s%d, 1' % (sWoP, sWoP)]
        for i in range(8):
            if i == 4: out.append('s_add_u32 m0, m0, 4096')
            if i: out.append('s_add_u32 s%d, s%d, %d' % (sT2, sT2, 8192 - 1024 + (4096 if i == 4 else 0)))
            out.append('buffer_load_dwordx4 v%d, %s, s%d offen offset:%d %s lds' % (vWoOff, sr(SWO, 4), sT2, (i & 3) * 1024, pol('wopol')))
        return out
    def groups(lst):
        gs = [[]]
        for x in lst:
            gs[-1].append(x)
            if x.startswith('buffer'): gs.append([])
        if gs[-1]: gs[-2] += gs[-1]
        return gs[:-1]
    def spread(fixed, lst, g0, step, per=2):
        g = g0
        for grp in groups(lst):
            pre = grp[:[x.startswith('buffer') for x in grp].index(True)]
            rest = grp[len(pre):]
            while len(pre) > 1:
                fixed.setdefault(g, []).extend(pre[:2]); pre = pre[2:]; g += 1
            fixed.setdefault(g, []).extend(pre + rest); g += step
        return g

    for c in range(3):
        for g in groups(dma_xw(c))[:8 if c < 2 else 3]:
            for x in g: a(x)
    a('s_lshl_b32 s3, s%d, 5' % sB); a('s_add_u32 s3, s3, s%d' % sH); a('s_lshl_b32 s3, s3, 19')
    srd(SK, 38, 39, 's3', '0x80000'); srd(SV, 40, 41, 's3', '0x80000')
    srd(SWS, 94, 95, None, '0x2000000'); srd(SWO, 88, 89, None, '0' if OPT['nowo'] else '0x800000'); srd(SOUT, 90, 91, None, '0x200000'); srd(SDBG, 92, 93, None, '256')
    if OPT['stamps']: srd(SST, 94, 95, str(STAMP_OFF), '0x100000')
    stamp(0)
    a('s_lshl_b32 s3, s%d, 2' % sB); a('s_add_u32 s3, s3, s%d' % sKg); a('s_lshl_b32 s3, s3, 10'); a('s_lshl_b32 s4, s%d, 8' % sWave)
    a('s_add_u32 s3, s3, s4'); a('s_add_u32 s%d, s3, 0x%x' % (sF1, WS_F1))
    a('s_lshl_b32 s3, s%d, 3' % sB); a('s_add_u32 s3, s3, s%d' % sJ); a('s_lshl_b32 s3, s3, 10')
    a('s_add_u32 s3, s3, s4'); a('s_add_u32 s%d, s3, 0x%x' % (sF2, WS_F2))
    a('s_lshl_b32 s3, s%d, 2' % sJ); a('s_lshl_b32 s4, s%d, 2' % sKg)
    a('v_mov_b32 v36, s3'); a('v_mov_b32 v37, s4'); a('v_mov_b32 v38, 0'); a('v_mov_b32 v39, 0')
    a('s_mov_b64 %s, exec' % sr(sEx, 2)); a('s_mov_b64 exec, 1')
    a('buffer_atomic_swap v38, v36, %s, s%d offen sc0 sc1' % (sr(SWS, 4), sF1))
    a('buffer_atomic_swap v39, v37, %s, s%d offen sc0 sc1' % (sr(SWS, 4), sF2))
    a('s_mov_b64 exec, %s' % sr(sEx, 2))
    a('s_mov_b32 s%d, 0' % sKoff); a('s_mov_b32 s%d, 0' % sVoff); a('s_mov_b32 s%d, 0' % sWoP)
    a('s_lshl_b32 s3, s%d, 21' % sKg); a('s_lshl_b32 s4, s%d, 16' % sWave); a('s_add_u32 s%d, s3, s4' % sWoB)
    a('s_lshr_b32 s3, s%d, 1' % sJ); a('s_and_b32 s4, s%d, 1' % sJ); a('s_lshl_b32 s4, s4, 2'); a('s_add_u32 s3, s3, s4')
    a('s_lshl_b32 s%d, s3, 7' % sPA)
    a('s_add_u32 s3, s3, 2'); a('s_and_b32 s3, s3, 7'); a('s_add_u32 s3, s3, 7'); a('s_lshl_b32 s%d, s3, 7' % sPB)
    a('v_lshl_add_u32 v7, v2, 8, v6'); a('v_add_u32 v%d, s%d, v7' % (vVoff, sLdsW))
    a('v_lshl_add_u32 v7, v2, 8, v9'); a('v_add_u32 v%d, s%d, v7' % (vVoff + 1, sLdsW))
    a('v_lshlrev_b32 v6, 2, v2'); a('v_xor_b32 v6, v6, v3'); a('v_lshlrev_b32 v6, 4, v6')
    a('v_lshl_add_u32 v%d, v2, 11, v6' % vWoOff)
    a('v_mov_b32 v7, s%d' % sPA); a('v_mov_b32 v8, s%d' % sPB); a('v_cmp_gt_u32 vcc, 128, v6'); a('s_nop 1')
    a('v_cndmask_b32 v7, v8, v7, vcc'); a('v_add_u32 v%d, v7, v%d' % (vWoOff, vWoOff))
    a('s_lshl_b32 s3, s%d, 3' % sWave); a('s_and_b32 s3, s3, 8')
    a('v_xor_b32 v6, v2, v3'); a('v_xor_b32 v6, s3, v6')
    for i in range(2):
        a('v_xor_b32 v7, %d, v6' % (4 * i)); a('v_lshlrev_b32 v7, 4, v7'); a('v_lshl_add_u32 v7, v2, 8, v7')
        a('v_add_u32 v%d, s%d, v7' % (vKoff + i, sLdsW))
    a('v_and_b32 v4, 12, v3'); a('v_and_b32 v5, 3, v3'); a('v_lshl_add_u32 v4, v4, 1, v5')
    a('v_and_b32 v5, 1, v2'); a('v_lshlrev_b32 v5, 1, v5'); a('v_lshrrev_b32 v6, 1, v2'); a('v_or_b32 v5, v5, v6'); a('v_xor_b32 v5, v5, v3')
    for m in range(4):
        a('v_xor_b32 v6, %d, v5' % (4 * m)); a('v_lshlrev_b32 v6, 4, v6'); a('v_lshl_add_u32 v%d, v4, 8, v6' % (vKaddr + m))
    a('v_lshrrev_b32 v5, 1, v3'); a('v_xor_b32 v5, v5, v2')
    for ks in range(2):
        a('v_xor_b32 v6, %d, v5' % (4 * ks)); a('v_lshlrev_b32 v6, 4, v6'); a('v_lshl_add_u32 v6, v3, 7, v6')
        a('v_add_u32 v6, s%d, v6' % sLdsW); a('v_add_u32 v%d, 0x4000, v6' % (vXaddr + ks))
    a('v_lshrrev_b32 v4, 2, v3')
    a('v_lshl_add_u32 v5, v2, 3, v4'); a('v_lshlrev_b32 v5, 8, v5')
    a('v_and_b32 v6, 1, v1'); a('v_lshl_add_u32 v5, v6, 3, v5'); a('v_add_u32 v5, %d, v5' % BB)
    a('v_and_b32 v6, 1, v2'); a('v_lshl_add_u32 v6, v6, 2, v4'); a('v_lshlrev_b32 v6, 1, v6')
    a('v_lshrrev_b32 v7, 1, v1'); a('v_and_b32 v7, 1, v7'); a('v_or_b32 v6, v6, v7')
    for db in range(8):
        a('v_xor_b32 v7, %d, v6' % (2 * db)); a('v_lshl_add_u32 v%d, v7, 4, v5' % (vTaddr + db))
        a('v_add_u32 v%d, -16384, v%d' % (vTw + db, vTaddr + db))
    a('v_lshl_add_u32 v5, v2, 2, v4'); a('v_lshlrev_b32 v5, 8, v5'); a('v_add_u32 v5, 0x%x, v5' % AUX)
    a('s_lshl_b32 s3, s%d, 2' % sWave)
    a('v_xor_b32 v6, s3, v3')
    a('v_lshl_add_u32 v%d, v6, 4, v5' % vWoAddr)
    a('v_lshlrev_b32 v%d, 4, v1' % vOoff)
    for i in range(64): a('v_mov_b32 v%d, 0' % (vS[0] + i))
    a('s_mov_b32 s%d, 0x%08x' % (sQs, QSCALE)); a('s_mov_b32 s%d, 0x%08x' % (sQs + 1, QSCALE)); a('s_mov_b32 s%d, 0x%08x' % (sThr, THRESH))
    for k in range(4): a('v_mov_b32 v%d, 0x3f803f80' % (vOnes + k))
    a('s_mov_b32 s%d, 0' % sCnt)

    LA = OPT['la']
    def tr2(buf, addr, off, first, free):
        return [dict(t='ds_read_b64_tr_b16 %s, v%d offset:%d' % (vr(buf, 2), addr, off), first=first, free=free),
                dict(t='ds_read_b64_tr_b16 %s, v%d offset:%d' % (vr(buf + 2, 2), addr, off + 1024), first=first + 1, free=free)]
    def qk_parts(slot, S, first, mbase=0, rbase=0):
        reads = []; mf = []
        for n in range(16):
            blk, m = n >> 2, n & 3; u, kb2 = blk >> 1, blk & 1
            buf = POOL[n & 7]
            reads.append(dict(t='ds_read_b128 %s, v%d offset:%d' % (vr(buf, 4), vKaddr + m, slot * 16384 + u * 8192 + kb2 * 1024), first=mbase + 2 * n, free=mbase + 2 * n - 15))
            for qb in range(2):
                acc = vr(S + 16 * qb + 4 * blk, 4)
                c = acc if m else ('0' if first else vr(vNegM + 4 * qb, 4))
                mf.append(dict(t='%s %s, %s, %s, %s' % (MFMA, acc, vr(buf, 4), vr(vQ + 8 * m + 4 * qb, 4), c), uses=[rbase + n]))
        return reads, mf
    def lsum(S, u, qb):
        return dict(t='%s %s, %s, %s, %s' % (MFMA, vr(vLs + 4 * qb, 4), vr(vOnes, 4), vr(S + 16 * qb + 8 * u, 4), vr(vLs + 4 * qb, 4)), uses=[])
    def pv_parts(t, S, mbase=0, rbase=0, prev=None):
        reads = []; mf = []; last = dict(prev or {})
        for n in range(16):
            u, db = n >> 3, n & 7
            buf = POOL[n & 7]
            i = mbase + len(mf)
            reads += tr2(buf, vTaddr + db, vs(t) * 16384 + u * 8192, i, last.get(n & 7, -1))
            for qb in range(2):
                acc = vr(vO + 8 * db + 4 * qb, 4)
                mf.append(dict(t='%s %s, %s, %s, %s' % (MFMA, acc, vr(buf, 4), vr(S + 16 * qb + 8 * u, 4), acc), uses=[rbase + 2 * n, rbase + 2 * n + 1]))
            last[n & 7] = i + 1
            if db in (2, 5) and not OPT['lvalu']: mf.append(lsum(S, u, 0 if db == 2 else 1))
        return reads, mf, last
    def softmax_ops(S):
        ops = []
        for u in range(2):
            for qb in range(2):
                b = S + 16 * qb + 8 * u
                for h4 in range(2):
                    q = b + 4 * h4
                    for j in range(4): ops.append(('v_exp_f32 v%d, v%d' % (q + j, q + j), u))
                    for j in range(2):
                        if OPT['lvalu']:
                            ops.append(('v_add_f32 v%d, v%d, v%d' % (vLs + 4 * qb, vLs + 4 * qb, q + 2 * j), u))
                            ops.append(('v_add_f32 v%d, v%d, v%d' % (vLs + 4 * qb, vLs + 4 * qb, q + 2 * j + 1), u))
                        ops.append(('v_cvt_pk_bf16_f32 v%d, v%d, v%d' % (b + 2 * h4 + j, q + 2 * j, q + 2 * j + 1), u))
        return ops
    def max_ops(S):
        regs = [(S + 16 * qb + 4 * blk + r, blk) for blk in range(4) for qb in range(2) for r in range(4)]
        ops = [('v_max3_f32 v%d, v%d, v%d, v%d' % (vMax, regs[0][0], regs[1][0], regs[2][0]), 0)]
        for j in range(3, 31, 2): ops.append(('v_max3_f32 v%d, v%d, v%d, v%d' % (vMax, vMax, regs[j][0], regs[j + 1][0]), regs[j + 1][1]))
        ops.append(('v_max_f32 v%d, v%d, v%d' % (vMax, vMax, regs[31][0]), 3))
        return ops
    def allgroups(v, op):
        for sw in ('v_permlane32_swap_b32', 'v_permlane16_swap_b32'):
            a('v_mov_b32 v%d, v%d' % (vTmp, v)); a('s_nop 1'); a('%s v%d, v%d' % (sw, v, vTmp)); a('s_nop 1'); a('%s v%d, v%d, v%d' % (op, v, v, vTmp))
    def rowmax(S, qb, d):
        b = S + 16 * qb
        a('v_max3_f32 v%d, v%d, v%d, v%d' % (d, b, b + 1, b + 2))
        for j in range(3, 15, 2): a('v_max3_f32 v%d, v%d, v%d, v%d' % (d, d, b + j, b + j + 1))
        a('v_max_f32 v%d, v%d, v%d' % (d, d, b + 15))
        allgroups(d, 'v_max_f32')
    def emit_reads(rs):
        for rd in rs: a(rd['t'])
    def npre_of(r, base, la): return min(13, len([x for x in r if x['first'] - base <= la - 1]))

    WP = [vO + 4 * i for i in range(16)]
    QLA = OPT['qla']
    def qp_reads(st, mbase=0, rbase=0, dbmajor=False):
        reads = []; mf = []; xi = {}
        XP = [vNegM + 4 * k for k in range(4)] if dbmajor else POOL[4 * (st & 1): 4 * (st & 1) + 4]
        order = [(ks, db) for db in range(8) for ks in range(2)] if dbmajor else [(ks, db) for ks in range(2) for db in range(8)]
        for n, (ks, db) in enumerate(order):
            i = mbase + 2 * n
            if ks not in xi:
                xi[ks] = rbase + len(reads)
                for qb in range(2):
                    reads.append(dict(t='ds_read_b128 %s, v%d offset:%d' % (vr(XP[2 * ks + qb], 4), vXaddr + ks, XST[st] - 16384 + qb * 2048), first=i))
            wi = rbase + len(reads)
            reads += tr2(WP[n], vTw + db, WST[st] - (BB - 16384) + ks * 8192, i, i - 31)
            for qb in range(2):
                acc = vr(vS[0] + 8 * db + 4 * qb, 4)
                mf.append(dict(t='%s %s, %s, %s, %s' % (MFMA, acc, vr(WP[n], 4), vr(XP[2 * ks + qb], 4), acc), uses=[wi, wi + 1, xi[ks], xi[ks] + 1]))
        return reads, mf
    gkv = lambda t: groups(dma_k(t) + dma_v(t))
    gxw = lambda c: groups(dma_xw(c & 3))
    def qp_body(c, early, late, tail=()):
        r0, mf = qp_reads(c & 3); r1, _ = qp_reads((c + 1) & 3, 32, dbmajor=(c == 14))
        fill = {}
        for k, g in enumerate(early): fill[4 * k] = list(g)
        for k, g in enumerate(late): fill[22 + 4 * k] = list(g)
        fill.setdefault(31, []); fill[31] += list(tail)
        ev = ['s_waitcnt vmcnt(8)', 's_barrier']
        k1 = OPT['kv0at'] + 1
        if c == k1 and c >= 12: ev = ['s_waitcnt vmcnt(16)', 's_barrier']
        elif c < 4 and k1 < 12 and c == (k1 & 3):
            ev = ['s_cmp_eq_u32 s%d, %d' % (sCnt, k1 >> 2), 's_cbranch_scc1 L_kvw', 's_waitcnt vmcnt(8)', 'L_kvw:', 's_waitcnt vmcnt(16)', 's_barrier']
        sched(a, mf, r0 + r1[:npre_of(r1, 32, QLA)], QLA, npre=npre_of(r0, 0, QLA), fill=fill, events={len(r0): ev}, evrange=(17, 22), pair=4)
    r0, _ = qp_reads(0)
    a('s_waitcnt vmcnt(11)')
    a('s_barrier')
    stamp(10)
    emit_reads(r0[:npre_of(r0, 0, QLA)])
    a.label('L_qp')
    if OPT['stamps']:
        a('s_cmp_lg_u32 s%d, 2' % sCnt); a('s_cbranch_scc1 L_st11')
        stamp(11)
    for c in range(4):
        qp_body(c, gxw(c + 2)[3:], gxw(c + 3)[:3], ['s_add_u32 s%d, s%d, 1' % (sCnt, sCnt), 's_cmp_lt_u32 s%d, 3' % sCnt] if c == 3 else [])
        if c == 2:
            a('s_or_b32 s3, s%d, s%d' % (sWave, sCnt)); a('s_cbranch_scc1 L_noinit')
            a('v_mov_b32 v38, 1'); a('v_mov_b32 v39, 0')
            a('s_mov_b64 exec, 1')
            a('buffer_atomic_add v38, v39, %s, 0 offen sc1' % sr(SDBG, 4))
            a('s_mov_b64 exec, %s' % sr(sEx, 2))
            a.label('L_noinit')
        if c == OPT['kv0at'] & 3:
            a('s_cmp_lg_u32 s%d, %d' % (sCnt, (OPT['kv0at'] >> 2) + (1 if c == 3 else 0))); a('s_cbranch_scc1 L_nokv0')
            for x in dma_k(0) + dma_v(0): a(x)
            a('s_add_u32 m0, s%d, %d' % (sLdsW, XST[(c + 3) & 3]))
            a.label('L_nokv0')
            if c == 3: a('s_cmp_lt_u32 s%d, 3' % sCnt)
    a('s_cbranch_scc1 L_qp')
    if OPT['qpm']:
        n0 = [k for k, i in enumerate(a.ins) if i.text.startswith('L_qp:')][0]
        keep = []
        for i in a.ins[n0:]:
            if (OPT['qpm'] & 1) and i.kind == 'mfma': continue
            if (OPT['qpm'] & 2) and i.kind == 'ds': continue
            if (OPT['qpm'] & 4) and i.kind == 'vmem' and 'lds' in i.text: continue
            if (OPT['qpm'] & 16) and i.op == 's_barrier': continue
            keep.append(i)
        a.ins[n0:] = keep
    qp_body(12, gxw(14)[3:], gxw(15)[:3])
    qp_body(13, gxw(15)[3:], gkv(1)[:3])
    qp_body(14, gkv(1)[3:], gkv(2)[:3])
    def pack(m):
        out = []
        t = vS[0] + 16 * m
        for r in range(0, 16, 2): out.append('v_pk_mul_f32 %s, %s, %s' % (vr(t + r, 2), vr(t + r, 2), sr(sQs, 2)))
        for qb in range(2):
            for h in range(2):
                for k in range(2):
                    s_ = t + 8 * h + 4 * qb + 2 * k
                    out.append('v_cvt_pk_bf16_f32 v%d, v%d, v%d' % (vQ + 8 * m + 4 * qb + 2 * h + k, s_, s_ + 1))
        return out
    def qswap(m):
        return ['v_permlane16_swap_b32 v%d, v%d' % (vQ + 8 * m + 4 * qb + k, vQ + 8 * m + 4 * qb + 2 + k) for qb in range(2) for k in range(2)]
    r0, mf = qp_reads(3, dbmajor=True)
    rq, mq = qk_parts(0, vS[0], True)
    rq32, _ = qk_parts(0, vS[0], True, mbase=32)
    for x in rq32: x['free'] = -1
    NPK = npre_of(rq, 0, LA)
    gk3 = groups(dma_k(3))
    fill = {}
    for k, g in enumerate(gkv(2)[3:]): fill[4 * k] = list(g)
    for k in range(3): fill[22 + 4 * k] = list(gk3[k])
    st = [(x, 12, 31) for x in pack(0)] + [(x, 20, 31) for x in pack(1)[:8]]
    bsched(a, mf, r0 + rq32[:NPK], QLA, npre=npre_of(r0, 0, QLA), fixed=fill, events={len(r0): ['s_barrier']}, evrange=(17, 22), streams=[st], pair=4)
    stamp(1)
    for x in gk3[3]: a(x)
    for x in pack(1)[8:] + qswap(0) + pack(2) + qswap(1) + pack(3) + qswap(2) + ['s_nop 0'] + qswap(3): a(x)
    rn, _ = qk_parts(1, vS[1], False, mbase=32)
    zero = ['v_mov_b32 v%d, 0' % (vO + i) for i in range(64)]
    fill = {i: zero[2 * i: 2 * i + 2] for i in range(32)}
    sched(a, mq, rq + rn[:NPK], LA, npre=NPK, fill=fill, events={16: ['s_waitcnt vmcnt(16)', 's_barrier']}, pair=OPT['pair'])
    a('s_barrier')
    gk4 = groups(dma_k(4))
    for k in range(8): a('v_mov_b32 v%d, 0' % (vLs + k))
    for qb in range(2):
        for x in gk4[2 * qb]: a(x)
        rowmax(vS[0], qb, vDelta + qb)
        for x in gk4[2 * qb + 1]: a(x)
        for j in range(4): a('v_sub_f32 v%d, 0, v%d' % (vNegM + 4 * qb + j, vDelta + qb))
        for j in range(16): a('v_sub_f32 v%d, v%d, v%d' % (vS[0] + 16 * qb + j, vS[0] + 16 * qb + j, vDelta + qb))
    stamp(2)

    rare = []
    def iteration(j, vm, kind='mid', tag=''):
        cur, nxt = vS[j & 1], vS[(j + 1) & 1]
        sm = softmax_ops(cur)
        if kind != 'last':
            r1, m1 = qk_parts((j + 1) & 3, nxt, False)
            r2, m2, last = pv_parts(j, cur, 32, 16, prev={b: 2 * (8 + b) + 1 for b in range(8)})
            n = len(m1) + len(m2)
            if kind == 'mid':
                r3, _ = qk_parts((j + 2) & 3, cur, False, mbase=n)
                for k in range(8): r3[k]['free'] = last[k]
                r3 = r3[:NPK]
            else:
                r3, _, _ = pv_parts(j + 1, nxt, n, prev=last); r3 = r3[:NPV]
            reads, mf = r1 + r2 + r3, m1 + m2
            u1 = 32 + len(m2) // 2
            st1 = []; ne = 0
            for x, u in sm:
                if x.startswith('v_exp'): ne += 1
                st1.append((x, 0, min(29 if u == 0 else u1 - 3, (ne * (u1 - 4)) // 32 + (0 if x.startswith('v_exp') else 1))))
            st2 = [(x, max(8 * blk + 12, OPT['mx0']), n - 1) for x, blk in max_ops(nxt)] + [('v_cmp_lt_f32 vcc, s%d, v%d' % (sThr, vMax), 40, n - 1)]
            fixed = {}
            ev0 = n - LA
            if kind == 'mid':
                if j == 0: g = spread(fixed, dma_wo(), ev0 - 28, 3); assert g <= ev0 + 2, g
                g = spread(fixed, dma_v(j + 3) + dma_k(j + 1), ev0 + 2, 1); assert g - 1 < n, g
            bsched(a, mf, reads, LA, npre=NPK, events={len(r1) + len(r2): ['s_waitcnt vmcnt(%d)' % vm, 's_barrier']}, fixed=fixed, streams=[st1, st2],
                   pair=OPT['pair'], evrange=(ev0, ev0 + 2))
            lab = 'L_rare%d%s' % (j, tag)
            a('s_cbranch_vccnz %s' % lab)
            a.label(lab + '_ret')
            rare.append((lab, nxt))
        else:
            reads, mf, _ = pv_parts(j, cur)
            u1 = len(mf) // 2
            for x, u in sm:
                if u == 0: a(x)
            st1 = [(x, 0, u1 - 3) for x, u in sm if u == 1]
            bsched(a, mf, reads, LA, npre=NPV, streams=[st1], pair=OPT['pair'], cap=5)
    NPV = npre_of(pv_parts(0, vS[0])[0], 0, LA)

    def wo_block(p):
        for m in range(4):
            for nb in range(2):
                for h in range(2):
                    a('ds_read_b64_tr_b16 %s, v%d offset:%d' % (ar(32 * p + 8 * m + 4 * nb + 2 * h, 2), vWoAddr, m * 8192 + h * 4096 + nb * 8))
        a('s_waitcnt lgkmcnt(0)')
    def wo_chain(tag):
        a('s_sub_u32 s%d, s%d, s%d' % (sBlk, sCnt, sJ)); a('s_and_b32 s%d, s%d, 7' % (sBlk, sBlk))
        for p in range(8):
            if p < 7:
                a('s_cmp_lg_u32 s%d, %d' % (sBlk, p)); a('s_cbranch_scc1 L_wb%s%d' % (tag, p + 1))
            wo_block(p)
            if p < 7: a('s_branch L_wbdone%s' % tag)
            a.label('L_wb%s%d' % (tag, p + 1) if p < 7 else 'L_wbdone%s' % tag)
    a('s_mov_b32 s%d, 0' % sCnt)
    a.label('L_at')
    stamp(12, sCnt)
    iteration(0, 20)
    iteration(1, 20)
    a('s_cmp_eq_u32 s%d, 7' % sCnt)
    a('s_cbranch_scc1 L_at_last')
    iteration(2, 12)
    wo_chain('a')
    iteration(3, 12)
    a('s_add_u32 s%d, s%d, 1' % (sCnt, sCnt))
    a('s_branch L_at')
    a.label('L_at_last')
    iteration(2, 0, kind='pen', tag='p')
    wo_chain('b')
    iteration(3, 0, kind='last')
    stamp(3)

    a('s_lshl_b32 s3, s%d, 2' % sB); a('s_add_u32 s3, s3, s%d' % sWave); a('s_lshl_b32 s3, s3, 18')
    a('s_lshl_b32 s4, s%d, 16' % sKg); a('s_add_u32 s%d, s3, s4' % sOb)
    a('s_lshl_b32 s4, s%d, 13' % sJ); a('s_add_u32 s%d, s%d, s4' % (sT0, sOb)); a('s_add_u32 s%d, s%d, 4096' % (sT1, sT0))
    a('s_lshl_b32 s5, s%d, 1' % sLdsW)
    a('v_add_u32 v2, s5, v%d' % vOoff); a('v_add_u32 v2, 0x8000, v2')
    a('v_mov_b32 v39, 0')
    a('s_waitcnt vmcnt(0)')
    a('buffer_load_dword v38, v39, %s, 0 offen sc1' % sr(SDBG, 4))
    for qb in range(2):
        if OPT['lvalu']: allgroups(vLs + 4 * qb, 'v_add_f32')
        a('v_rcp_f32 v%d, v%d' % (6 + 2 * qb, vLs + 4 * qb))
    a('s_nop 0')
    for qb in range(2): a('v_mov_b32 v%d, v%d' % (7 + 2 * qb, 6 + 2 * qb))
    for m in range(4):
        for qb in range(2):
            f = vQ + 16 * qb + 4 * m
            for h in range(2):
                t = vO + 8 * (2 * m + h) + 4 * qb
                for k in range(2): a('v_pk_mul_f32 %s, %s, %s' % (vr(t + 2 * k, 2), vr(t + 2 * k, 2), vr(6 + 2 * qb, 2)))
            for h in range(2):
                t = vO + 8 * (2 * m + h) + 4 * qb
                for k in range(2): a('v_cvt_pk_bf16_f32 v%d, v%d, v%d' % (f + 2 * h + k, t + 2 * k, t + 2 * k + 1))
            a('buffer_store_dwordx4 %s, v%d, %s, s%d offen offset:%d sc1' % (vr(f, 4), vOoff, sr(SWS, 4), sT1 if qb else sT0, m * 1024))
    for m in range(4):
        for qb in range(2): a('ds_write_b128 v2, %s offset:%d' % (vr(vQ + 16 * qb + 4 * m, 4), qb * 4096 + m * 1024))
    for i in range(4):
        a('s_add_u32 s3, s%d, %d' % (sKg, i)); a('s_and_b32 s3, s3, 3'); a('s_lshl_b32 s3, s3, 13')
        a('v_add_u32 v%d, s3, v%d' % (vOaddr + i, vOoff))
    a('v_add_u32 v%d, 0x10000, v%d' % (vOaddr + 4, vOoff)); a('v_add_u32 v%d, 0x20000, v%d' % (vOaddr + 5, vOoff))
    SADDR = [vOoff, vOaddr + 4, vOaddr + 5]
    ACC = vS[0]
    STG = [None] + [(i, hf) for i in (1, 2, 3, 0) for hf in range(2)]
    OSLOT = [1, 0, 2, 3, 4, 1, 0, 2, 3]
    def op_parts(s_, mbase=0):
        slot = OSLOT[s_]
        reads = []; mf = []
        if s_ == 0: order = [(0, m, i, qb) for m in range(4) for i in range(4) for qb in range(2)]
        else:
            i, hf = STG[s_]
            order = [(1 + 4 * hf + u, m, i, qb) for u in range(4 - hf) for m in range(4) for qb in range(2)]
        for n, (p, m, i, qb) in enumerate(order):
            buf = POOL[n & 7]
            if s_ == 0: ad, off = vOaddr + i, 32768
            else: ad, off = SADDR[slot >> 1], (slot & 1) * 32768 + ((p - 1) & 3) * 8192
            reads.append(dict(t='ds_read_b128 %s, v%d offset:%d' % (vr(buf, 4), ad, off + qb * 4096 + m * 1024), first=mbase + 2 * n, free=mbase + 2 * n - 15))
            for nb in range(2):
                acc = vr(ACC + 16 * i + 8 * qb + 4 * nb, 4)
                mf.append(dict(t='%s %s, %s, %s, %s' % (MFMA, acc, ar(32 * p + 8 * m + 4 * nb, 4), vr(buf, 4), '0' if (p == 0 and m == 0) else acc), uses=[n]))
        return reads, mf
    def dma_o(s_):
        i, hf = STG[s_]
        out = ['s_add_u32 s3, s%d, %d' % (sKg, i), 's_and_b32 s3, s3, 3', 's_lshl_b32 s3, s3, 18', 's_add_u32 s%d, s3, s%d' % (sT0, sHd + hf),
               's_add_u32 m0, s5, %d' % (OSLOT[s_] * 32768), 's_add_u32 s%d, s%d, 4096' % (sT1, sT0)]
        S_ = SWS2 if hf else SWS
        for m in range(4): out.append('buffer_load_dwordx4 v%d, %s, s%d offen offset:%d sc1 lds' % (vOoff, sr(S_, 4), sT0, m * 1024))
        out += ['s_add_u32 m0, m0, 4096', 's_nop 0']
        for m in range(4): out.append('buffer_load_dwordx4 v%d, %s, s%d offen offset:%d sc1 lds' % (vOoff, sr(S_, 4), sT1, m * 1024))
        return out
    def signal(sF, vown, vpoll, cnt):
        return ['v_mov_b32 v38, 1', 's_mov_b64 exec, 1',
                'buffer_store_dword v38, v%d, %s, s%d offen sc1' % (vown, sr(SWS, 4), sF),
                's_mov_b64 exec, %d' % ((1 << cnt) - 2),
                'buffer_load_dword v39, v%d, %s, s%d offen sc1' % (vpoll, sr(SWS, 4), sF),
                's_mov_b64 exec, %s' % sr(sEx, 2)]
    def poll(n, sF, vpoll, cnt):
        a('s_mov_b64 exec, %d' % ((1 << cnt) - 2))
        a('s_mov_b32 s%d, 0' % sSpin)
        a.label('L_poll%d' % n)
        a('s_waitcnt vmcnt(0)')
        a('v_cmp_ne_u32 vcc, 1, v39')
        a('s_cbranch_vccz L_poll%d_out' % n)
        a('s_add_u32 s%d, s%d, 1' % (sSpin, sSpin)); a('s_cmp_ge_u32 s%d, %d' % (sSpin, OPT['spin'])); a('s_cbranch_scc1 L_poll%d_out' % n)
        if OPT['psleep']: a('s_sleep %d' % OPT['psleep'])
        a('buffer_load_dword v39, v%d, %s, s%d offen sc1' % (vpoll, sr(SWS, 4), sF))
        a('s_branch L_poll%d' % n)
        a.label('L_poll%d_out' % n)
        a('s_mov_b64 exec, %s' % sr(sEx, 2))
    a('v_add_u32 v3, s%d, v1' % sJ); a('v_and_b32 v3, 7, v3'); a('v_lshlrev_b32 v3, 2, v3')
    a('v_add_u32 v4, s%d, v1' % sKg); a('v_and_b32 v4, 3, v4'); a('v_lshlrev_b32 v4, 2, v4')
    sHd, SWS2 = 36, 40
    a('s_lshl_b32 s3, s%d, 20' % sB); a('s_lshl_b32 s4, s%d, 16' % sKg); a('s_add_u32 s7, s3, s4')
    for hf in range(2):
        a('s_add_u32 s3, s%d, s%d' % (sJ, sWave)); a('s_add_u32 s3, s3, %d' % (1 + 4 * hf)); a('s_and_b32 s3, s3, 7'); a('s_lshl_b32 s3, s3, 13')
        a('s_add_u32 s%d, s3, s7' % (sHd + hf))
    srd(SWS2, 94, 95, None, None)
    a('s_cmp_eq_u32 s%d, 3' % sWave); a('s_cselect_b32 s%d, 0, 0x2000000' % (SWS2 + 2))
    a('s_lshl_b32 s3, s%d, 3' % sB); a('s_add_u32 s3, s3, s%d' % sJ); a('s_lshl_b32 s3, s3, 18'); a('s_add_u32 s3, s3, s%d' % sLdsW)
    a('s_add_u32 s%d, s3, 0x%x' % (sPb, WS_P))
    a('s_lshl_b32 s6, s%d, 14' % sKg); a('s_add_u32 s6, s6, s%d' % sPb)
    for x in ['s_waitcnt vmcnt(0)', 's_mov_b32 s%d, 0' % sSpin, 'L_init:', 'v_readfirstlane_b32 s3, v38', 's_add_u32 s%d, s%d, 1' % (sSpin, sSpin),
              's_cmp_ge_u32 s3, 256', 's_cbranch_scc1 L_init_ok', 's_cmp_ge_u32 s%d, %d' % (sSpin, OPT['spin']), 's_cbranch_scc1 L_init_ok',
              'v_mov_b32 v39, 0', 'buffer_load_dword v38, v39, %s, 0 offen sc1' % sr(SDBG, 4), 's_waitcnt vmcnt(0)', 's_branch L_init', 'L_init_ok:'] + signal(sF1, 36, 3, 8): a(x)
    stamp(4)
    poll(1, sF1, 3, 8)
    a('s_waitcnt lgkmcnt(0)')
    a('s_barrier')
    stamp(5)
    r, _ = op_parts(0)
    emit_reads(r[:NPK])
    for k in range(1, OPT['odep']):
        for x in dma_o(k): a(x)
    def send(i):
        out = ['s_add_u32 s3, s%d, %d' % (sKg, i), 's_and_b32 s3, s3, 3', 's_lshl_b32 s3, s3, 16', 's_add_u32 s%d, s3, s6' % sT2]
        for g in range(4):
            out.append('buffer_store_dwordx4 %s, v%d, %s, s%d offen offset:%d sc1' % (vr(ACC + 16 * i + 4 * g, 4), vOoff, sr(SWS, 4), sT2, g * 1024))
        return out
    for s_ in range(9):
        r, m = op_parts(s_)
        n = len(m)
        fill = {}
        g = 0
        if s_ in (3, 5, 7): g = spread(fill, send(STG[s_ - 1][0]), 3, 2)
        if s_ < 8:
            rn, _ = op_parts(s_ + 1, n)
            D = OPT['odep']
            if s_ + D <= 8:
                g = spread(fill, dma_o(s_ + D), g, 3); assert g - 3 < n - LA, (s_, g)
            sched(a, m, r + rn[:NPK], LA, npre=NPK, fill=fill, events={len(r): ['s_waitcnt vmcnt(%d)' % (8 * (min(8, s_ + D) - s_ - 1)), 's_barrier']}, evrange=(n - LA, n - 1), pair=4)
        else:
            fill[1] = ['L_sig2:'] + signal(sF2, 37, 4, 4)
            sched(a, m, r, LA, npre=NPK, fill=fill, pair=4)
    stamp(6)
    stamp(7)
    poll(2, sF2, 4, 4)
    stamp(8)
    a('s_lshl_b32 s4, s%d, 16' % sKg); a('s_add_u32 s4, s4, s%d' % sPb)
    for i in range(1, 4):
        a('s_add_u32 s3, s%d, %d' % (sKg, i)); a('s_and_b32 s3, s3, 3'); a('s_lshl_b32 s3, s3, 14'); a('s_add_u32 s%d, s3, s4' % sT0)
        for g in range(4):
            a('buffer_load_dwordx4 %s, v%d, %s, s%d offen offset:%d sc1' % (vr(vO + 16 * i + 4 * g, 4), vOoff, sr(SWS, 4), sT0, g * 1024))
    a('v_and_b32 v2, 15, v1'); a('v_lshrrev_b32 v3, 4, v1'); a('v_lshlrev_b32 v2, 11, v2'); a('v_lshl_add_u32 v2, v3, 4, v2')
    a('s_lshl_b32 s3, s%d, 18' % sB); a('s_lshl_b32 s4, s%d, 16' % sKg); a('s_add_u32 s3, s3, s4')
    a('s_cmp_lt_u32 s%d, 2' % sWave); a('s_cselect_b32 s4, s%d, s%d' % (sPA, sPB))
    a('s_add_u32 s3, s3, s4'); a('s_lshl_b32 s4, s%d, 6' % sWave); a('s_add_u32 s3, s3, s4'); a('s_add_u32 s4, s3, 0x8000')
    for i in range(1, 4):
        a('s_waitcnt vmcnt(%d)' % (4 * (3 - i)))
        for r in range(16): a('v_add_f32 v%d, v%d, v%d' % (ACC + r, ACC + r, vO + 16 * i + r))
    for r in range(0, 16, 2): a('v_cvt_pk_bf16_f32 v%d, v%d, v%d' % (vQ + r // 2, ACC + r, ACC + r + 1))
    a('buffer_store_dwordx4 %s, v2, %s, s3 offen' % (vr(vQ, 4), sr(SOUT, 4)))
    a('buffer_store_dwordx4 %s, v2, %s, s4 offen' % (vr(vQ + 4, 4), sr(SOUT, 4)))
    if OPT['stamps']:
        a('s_waitcnt vmcnt(0)'); stamp(9)
    a.label('L_end')
    a('s_endpgm')
    for lab, S in rare:
        a.label(lab)
        a('s_nop 15')
        for qb in range(2):
            d, al = vDelta + qb, vAlpha + qb
            rowmax(S, qb, d)
            a('v_max_f32 v%d, 0, v%d' % (d, d))
            a('v_sub_f32 v%d, 0, v%d' % (vTmp, d))
            a('v_exp_f32 v%d, v%d' % (al, vTmp))
            for j in range(16): a('v_sub_f32 v%d, v%d, v%d' % (S + 16 * qb + j, S + 16 * qb + j, d))
            for j in range(4): a('v_sub_f32 v%d, v%d, v%d' % (vNegM + 4 * qb + j, vNegM + 4 * qb + j, d))
            for j in range(4): a('v_mul_f32 v%d, v%d, v%d' % (vLs + 4 * qb + j, vLs + 4 * qb + j, al))
            for db in range(8):
                for j in range(4): a('v_mul_f32 v%d, v%d, v%d' % (vO + 8 * db + 4 * qb + j, vO + 8 * db + 4 * qb + j, al))
        a('s_nop 3')
        a('s_branch %s_ret' % lab)
    return a

def main():
    a = gen()
    import io, contextlib
    buf = io.StringIO()
    with contextlib.redirect_stdout(buf):
        bad = check_program(a)
    sys.stderr.write(buf.getvalue())
    for b in bad: sys.stderr.write('BRANCH HAZARD %s\n' % (b,))
    print('; @launch grid=(256,1,1) block=(256,1,1) lds=163840')
    print('.amdgcn_target "amdgcn-amd-amdhsa--gfx950"\n.text')
    print(a.text())
    print('''.section .rodata,"a"
.p2align 6
.amdhsa_kernel %s
  .amdhsa_next_free_vgpr 512
  .amdhsa_next_free_sgpr 96
  .amdhsa_accum_offset 256
  .amdhsa_group_segment_fixed_size 0
  .amdhsa_kernarg_size 64
  .amdhsa_user_sgpr_count 2
  .amdhsa_user_sgpr_kernarg_segment_ptr 1
  .amdhsa_system_sgpr_workgroup_id_x 1
.end_amdhsa_kernel''' % NAME)
main()
```

```python
import sys, math, struct
from asmlib import *

OPT = dict(kpol='nt', vpol='nt', xwpol='-', wopol='-', stamps=0, la=14, qla=14, spin=0x8000, nokv=0, psleep=1, sigat=27,
           stagb=5, nowo=0, atm=0, pair=6, kv0at=9, dwg=0, lvalu=0, mx0=44, qpm=0, odep=2)
for a_ in sys.argv[1:]:
    k, v = a_.split('=')
    assert k in OPT, k
    OPT[k] = v if not v.lstrip('-').isdigit() else int(v)
def pol(k): return str(OPT[k]).replace('+', ' ').replace('-', '')
def f32bits(x): return struct.unpack('<I', struct.pack('<f', x))[0]
QSCALE = f32bits(math.log2(math.e) / math.sqrt(128.0))
THRESH = f32bits(8.0)
def vr(b, n=1): return 'v%d' % b if n == 1 else 'v[%d:%d]' % (b, b + n - 1)
def ar(b, n=1): return 'a%d' % b if n == 1 else 'a[%d:%d]' % (b, b + n - 1)
def sr(b, n=1): return 's%d' % b if n == 1 else 's[%d:%d]' % (b, b + n - 1)
MFMA = 'v_mfma_f32_16x16x32_bf16'
NAME = 'standalone__mha_block_cached__near_ridge_kernel'

def is_valu(x): return x.startswith('v_') and not x.startswith('v_mfma')
def cost(x):
    if x.endswith(':'): return 0
    return 2 if x.startswith('v_exp') else 1

def sched(a, mf, reads, la, npre=0, fill=None, events=None, pair=2, evrange=None, maxrd=2):
    fill = fill or {}; events = events or {}
    st = dict(done=0, nxt=npre)
    def issue(cur, lim):
        n = 0
        while st['nxt'] < len(reads) and n < lim:
            k = st['nxt']; rd = reads[k]
            if rd['first'] > cur + la or rd.get('free', -1) > cur or k - st['done'] >= 15: break
            if k in events:
                if evrange is not None: assert evrange[0] <= cur <= evrange[1], ('event gap', cur, evrange)
                for x in events[k]: a(x)
            a(rd['t']); st['nxt'] += 1; n += 1
    def wait_for(i):
        us = mf[i]['uses']
        assert all(u < st['nxt'] for u in us), ('read not issued', i, mf[i], st)
        if us and max(us) + 1 > st['done']:
            pos = max(us) + 1
            for j in range(i + 1, min(i + pair, len(mf))):
                if mf[j]['uses'] and max(mf[j]['uses']) < st['nxt']: pos = max(pos, max(mf[j]['uses']) + 1)
            a('s_waitcnt lgkmcnt(%d)' % (st['nxt'] - pos)); st['done'] = pos
    def fillers(lst, cur, lim):
        if any(x.endswith(':') for x in lst):
            issue(cur, lim)
            for x in lst: a(x)
            return
        evgap = st['nxt'] in events
        if evgap: issue(cur, lim)
        for x in lst:
            if not is_valu(x): a(x)
        if not evgap: issue(cur, lim)
        for x in lst:
            if x.startswith('v_exp'): a(x)
        for x in lst:
            if is_valu(x) and not x.startswith('v_exp'): a(x)
    fillers(fill.get(-1, []), -1, 99)
    wait_for(0)
    for i, m in enumerate(mf):
        a(m['t'])
        if i + 1 < len(mf):
            if not all(u < st['nxt'] for u in mf[i + 1]['uses']): issue(i, 99)
            wait_for(i + 1)
        fillers(fill.get(i, []), i, maxrd if i + 1 < len(mf) else 99)
    assert st['nxt'] == len(reads), (st, len(reads))

def bsched(a, mf, reads, la, npre=0, events=None, fixed=None, streams=(), pair=2, evrange=None, cap=3):
    fixed = {k: list(v) for k, v in (fixed or {}).items()}
    n = len(mf)
    t = Asm(); sched(t, mf, reads, la, npre=npre, fill=fixed, events=events, pair=pair)
    load = {g: 0 for g in range(-1, n)}; g = -1
    for i in t.ins:
        if i.kind == 'mfma': g += 1
        elif i.kind != 'none': load[g] += cost(i.text)
    load[n - 1] += load[-1] + 1
    total = sum(load[g] for g in range(n)) + sum(cost(o[0]) for s_ in streams for o in s_)
    fill = {g: list(fixed.get(g, [])) for g in range(-1, n)}
    pos = [0] * len(streams); done = 0
    for g in range(n):
        done += load[g]; used = load[g]
        target = total * (g + 1.0) / n + 1.0
        while True:
            cand = sorted((streams[k][pos[k]][2], k) for k in range(len(streams)) if pos[k] < len(streams[k]) and streams[k][pos[k]][1] <= g)
            ok = False
            for dl, k in cand:
                c = cost(streams[k][pos[k]][0])
                if dl <= g or used + c <= 2 or (used + c <= cap and done + c <= target):
                    fill[g].append(streams[k][pos[k]][0]); used += c; done += c; pos[k] += 1; ok = True
                    break
            if not ok: break
    assert all(pos[k] == len(streams[k]) for k in range(len(streams))), pos
    sched(a, mf, reads, la, npre=npre, fill=fill, events=events, pair=pair, evrange=evrange)

STAMP_OFF = 496 * 1024 * 1024
NST = 24

def gen():
    a = Asm()
    a.raw('.globl %s\n.p2align 8\n.type %s,@function' % (NAME, NAME)); a.label(NAME)
    SX, SW, SK, SV, SWS, SWO, SOUT, SDBG, SST = 8, 12, 16, 20, 24, 56, 60, 64, 68
    sWave, sLdsW, sAoff, sBoff, sCnt, sH, sB, sT0, sT1, sOb, sKoff, sVoff, sThr = 29, 30, 31, 32, 33, 34, 35, 46, 47, 48, 49, 50, 51
    sQs, sJ, sKg, sPA, sPB = 52, 54, 55, 44, 45
    sWoP, sWoB, sF1, sF2, sSpin, sEx, sT2, sPb, sBlk = 72, 73, 74, 75, 76, 78, 80, 81, 83
    vKoff, vVoff, vWoOff, vOoff = 10, 12, 14, 15
    vKaddr, vTaddr, vWoAddr = 16, 20, 28
    vMax, vTmp, vTmp2, vDelta, vAlpha = 29, 30, 31, 32, 34
    vQ, vNegM, vLs, vS, vO = 40, 72, 80, [88, 120], 152
    POOL = [216 + 4 * i for i in range(8)]
    vOnes = 248
    vXoff, vWoff, vXaddr, vTw = vQ, vQ + 4, vQ + 22, vQ + 24
    vOaddr = vKaddr
    AUX, BB = 65536, 98304
    vs = lambda t: (t + 3) & 3
    WS_P, WS_F1, WS_F2 = 0x800000, 0x1800000, 0x1810000

    def stamp(idx, dyn=None):
        if not OPT['stamps']: return
        if OPT['stamps'] == 5 and idx not in (0, 9):
            if idx == 11: a.label('L_st11')
            return
        lab = 'L_st%d' % idx
        if OPT['stamps'] == 3:
            slot = {0: 0, 10: 1, 11: 2, 1: 3, 2: 4, 3: 5, 4: 6, 5: 7, 6: 8, 7: 9, 8: 10, 9: 11, 12: 12}[idx]
            a('s_cmp_lg_u32 s%d, 0' % sWave); a('s_cbranch_scc1 %s' % lab)
            a('s_cmp_lg_u32 s2, %d' % OPT['dwg']); a('s_cbranch_scc1 %s' % lab)
            if dyn is not None:
                a('s_cmp_gt_u32 s%d, 2' % dyn); a('s_cbranch_scc1 %s' % lab)
            if idx == 7: a('s_mov_b32 s84, s96')
            else:
                a('s_memrealtime s[84:85]'); a('s_waitcnt lgkmcnt(0)')
            a('v_mov_b32 v252, s84'); a('v_mov_b32 v254, 0')
            a('s_mov_b32 s86, %d' % (4 + 4 * slot))
            if dyn is not None:
                a('s_lshl_b32 s87, s%d, 2' % dyn); a('s_add_u32 s86, s86, s87')
            a('buffer_store_dword v252, v254, %s, s86 offen sc1' % sr(SDBG, 4))
            a.label(lab)
            return
        a('s_cmp_lg_u32 s%d, 0' % sWave); a('s_cbranch_scc1 %s' % lab)
        a('s_memtime s[84:85]' if OPT['stamps'] == 2 else 's_memrealtime s[84:85]')
        if OPT['stamps'] == 4:
            a('s_memtime s[86:87]'); a('s_waitcnt lgkmcnt(0)'); a('s_mov_b32 s85, s86')
        a('s_waitcnt lgkmcnt(0)')
        a('v_mov_b32 v252, s84'); a('v_mov_b32 v253, s85'); a('v_mov_b32 v254, 0')
        a('s_mul_i32 s86, s2, %d' % (NST * 8)); a('s_add_u32 s86, s86, %d' % (idx * 8))
        if dyn is not None:
            a('s_lshl_b32 s87, s%d, 3' % dyn); a('s_add_u32 s86, s86, s87')
        a('buffer_store_dwordx2 v[252:253], v254, %s, s86 offen' % sr(SST, 4))
        a.label(lab)
    def srd(d, lo, hi, off, size):
        if off is None:
            a('s_mov_b32 s%d, s%d' % (d, lo)); a('s_mov_b32 s%d, s%d' % (d + 1, hi))
        else:
            a('s_add_u32 s%d, s%d, %s' % (d, lo, off)); a('s_addc_u32 s%d, s%d, 0' % (d + 1, hi))
        if size is not None: a('s_mov_b32 s%d, %s' % (d + 2, size))
        a('s_mov_b32 s%d, 0x00020000' % (d + 3))

    if OPT['stamps'] == 3: a('s_memrealtime s[96:97]')
    a('s_cmp_ge_u32 s2, 256')
    a('s_cbranch_scc1 L_end')
    a('s_load_dwordx8 s[36:43], s[0:1], 0')
    a('s_load_dwordx8 s[88:95], s[0:1], 32')
    a('v_lshrrev_b32 v2, 6, v0')
    a('v_and_b32 v1, 63, v0')
    a('v_readfirstlane_b32 s%d, v2' % sWave)
    a('s_and_b32 s%d, s2, 3' % sKg); a('s_lshl_b32 s3, s%d, 3' % sKg); a('s_lshr_b32 s4, s2, 3'); a('s_and_b32 s%d, s4, 7' % sJ)
    a('s_add_u32 s%d, s3, s%d' % (sH, sJ)); a('s_and_b32 s3, s2, 4'); a('s_lshr_b32 s4, s4, 3'); a('s_add_u32 s%d, s3, s4' % sB)
    a('s_lshl_b32 s%d, s%d, 12' % (sLdsW, sWave))
    a('v_lshrrev_b32 v2, 4, v1')
    a('v_and_b32 v3, 15, v1')
    a('v_lshrrev_b32 v4, 3, v1')
    a('v_and_b32 v5, 7, v1')
    a('v_lshlrev_b32 v6, 1, v2'); a('v_xor_b32 v6, v6, v3'); a('v_lshlrev_b32 v6, 4, v6')
    a('v_xor_b32 v9, 0x80, v6')
    a('s_lshl_b32 s3, s%d, 17' % sWave)
    a('v_lshl_add_u32 v7, v2, 13, v6'); a('v_add_u32 v%d, s3, v7' % vWoff)
    a('v_add_u32 v%d, %d, v%d' % (vWoff + 1, 32768 - 1024, vWoff))
    a('v_lshl_add_u32 v7, v2, 13, v9'); a('v_add_u32 v7, s3, v7')
    a('v_add_u32 v%d, %d, v7' % (vWoff + 2, 2 * (32768 - 1024))); a('v_add_u32 v%d, %d, v7' % (vWoff + 3, 3 * (32768 - 1024)))
    a('s_lshl_b32 s3, s%d, 16' % sWave)
    a('v_xor_b32 v7, v2, v5'); a('v_xor_b32 v8, 4, v7')
    a('v_lshlrev_b32 v7, 4, v7'); a('v_lshlrev_b32 v8, 4, v8')
    a('v_lshl_add_u32 v7, v4, 11, v7'); a('v_lshl_add_u32 v8, v4, 11, v8')
    a('v_add_u32 v%d, s3, v7' % vXoff); a('v_add_u32 v8, s3, v8')
    a('v_add_u32 v%d, %d, v8' % (vXoff + 1, 1 * (16384 - 1024)))
    a('v_add_u32 v%d, %d, v%d' % (vXoff + 2, 2 * (16384 - 1024), vXoff))
    a('v_add_u32 v%d, %d, v8' % (vXoff + 3, 3 * (16384 - 1024)))
    a('s_lshl_b32 s3, s%d, 1' % sH); a('s_mul_i32 s4, s%d, %d' % (sB, OPT['stagb'])); a('s_add_u32 s3, s3, s4'); a('s_and_b32 s3, s3, 15')
    a('s_lshl_b32 s%d, s3, 7' % sAoff)
    a('s_lshl_b32 s5, s%d, 18' % sB); a('s_lshl_b32 s6, s%d, 8' % sH); a('s_sub_u32 s%d, 0x800000, s6' % (SW + 2))
    a('s_waitcnt lgkmcnt(0)')
    srd(SX, 36, 37, 's5', '0x40000'); srd(SW, 42, 43, 's6', None)

    XST = [16384, 32768, 49152, 65536]
    WST = [BB, BB + 16384, BB + 32768, BB - 16384]
    def dma_xw(st):
        out = ['s_add_u32 m0, s%d, %d' % (sLdsW, XST[st]), 's_lshl_b32 s%d, s%d, 12' % (sBoff, sAoff)]
        for i in range(4):
            out.append('buffer_load_dwordx4 v%d, %s, s%d offen offset:%d %s lds' % (vXoff + i, sr(SX, 4), sAoff, i * 1024, pol('xwpol')))
        out += ['s_add_u32 m0, s%d, %d' % (sLdsW, WST[st]), 's_add_u32 s%d, s%d, 128' % (sAoff, sAoff)]
        for i in range(4):
            out.append('buffer_load_dwordx4 v%d, %s, s%d offen offset:%d %s lds' % (vWoff + i, sr(SW, 4), sBoff, i * 1024, pol('xwpol')))
            if i == 0: out.append('s_and_b32 s%d, s%d, 0x7ff' % (sAoff, sAoff))
        return out
    def dma_kv(t, S, so, vo, base, p):
        out = ['s_add_u32 m0, s%d, %d' % (sLdsW, base), 's_cmp_lt_u32 s%d, 0x80000' % so, 's_cselect_b32 s%d, %s, 0' % (S + 2, '0' if OPT['nokv'] else '0x80000')]
        for i in range(4):
            out.append('buffer_load_dwordx4 v%d, %s, s%d offen offset:%d %s lds' % (vo + (i >> 1), sr(S, 4), so, i * 1024, pol(p)))
        out.append('s_add_u32 s%d, s%d, 0x4000' % (so, so))
        return out
    dma_k = lambda t: dma_kv(t, SK, sKoff, vKoff, (t & 3) * 16384, 'kpol')
    dma_v = lambda t: dma_kv(t, SV, sVoff, vVoff, BB + vs(t) * 16384, 'vpol')
    def dma_wo():
        out = ['s_lshl_b32 s%d, s%d, 18' % (sT2, sWoP), 's_add_u32 s%d, s%d, s%d' % (sT2, sT2, sWoB),
               's_lshl_b32 m0, s%d, 1' % sLdsW, 's_add_u32 m0, m0, %d' % AUX, 's_add_u32 s%d, s%d, 1' % (sWoP, sWoP)]
        for i in range(8):
            if i == 4: out.append('s_add_u32 m0, m0, 4096')
            if i: out.append('s_add_u32 s%d, s%d, %d' % (sT2, sT2, 8192 - 1024 + (4096 if i == 4 else 0)))
            out.append('buffer_load_dwordx4 v%d, %s, s%d offen offset:%d %s lds' % (vWoOff, sr(SWO, 4), sT2, (i & 3) * 1024, pol('wopol')))
        return out
    def groups(lst):
        gs = [[]]
        for x in lst:
            gs[-1].append(x)
            if x.startswith('buffer'): gs.append([])
        if gs[-1]: gs[-2] += gs[-1]
        return gs[:-1]
    def spread(fixed, lst, g0, step, per=2):
        g = g0
        for grp in groups(lst):
            pre = grp[:[x.startswith('buffer') for x in grp].index(True)]
            rest = grp[len(pre):]
            while len(pre) > 1:
                fixed.setdefault(g, []).extend(pre[:2]); pre = pre[2:]; g += 1
            fixed.setdefault(g, []).extend(pre + rest); g += step
        return g

    for c in range(3):
        for g in groups(dma_xw(c))[:8 if c < 2 else 3]:
            for x in g: a(x)
    a('s_lshl_b32 s3, s%d, 5' % sB); a('s_add_u32 s3, s3, s%d' % sH); a('s_lshl_b32 s3, s3, 19')
    srd(SK, 38, 39, 's3', '0x80000'); srd(SV, 40, 41, 's3', '0x80000')
    srd(SWS, 94, 95, None, '0x2000000'); srd(SWO, 88, 89, None, '0' if OPT['nowo'] else '0x800000'); srd(SOUT, 90, 91, None, '0x200000'); srd(SDBG, 92, 93, None, '256')
    if OPT['stamps']: srd(SST, 94, 95, str(STAMP_OFF), '0x100000')
    stamp(0)
    a('s_lshl_b32 s3, s%d, 2' % sB); a('s_add_u32 s3, s3, s%d' % sKg); a('s_lshl_b32 s3, s3, 10'); a('s_lshl_b32 s4, s%d, 8' % sWave)
    a('s_add_u32 s3, s3, s4'); a('s_add_u32 s%d, s3, 0x%x' % (sF1, WS_F1))
    a('s_lshl_b32 s3, s%d, 3' % sB); a('s_add_u32 s3, s3, s%d' % sJ); a('s_lshl_b32 s3, s3, 10')
    a('s_add_u32 s3, s3, s4'); a('s_add_u32 s%d, s3, 0x%x' % (sF2, WS_F2))
    a('s_lshl_b32 s3, s%d, 2' % sJ); a('s_lshl_b32 s4, s%d, 2' % sKg)
    a('v_mov_b32 v36, s3'); a('v_mov_b32 v37, s4'); a('v_mov_b32 v38, 0'); a('v_mov_b32 v39, 0')
    a('s_mov_b64 %s, exec' % sr(sEx, 2)); a('s_mov_b64 exec, 1')
    a('buffer_atomic_swap v38, v36, %s, s%d offen sc0 sc1' % (sr(SWS, 4), sF1))
    a('buffer_atomic_swap v39, v37, %s, s%d offen sc0 sc1' % (sr(SWS, 4), sF2))
    a('s_mov_b64 exec, %s' % sr(sEx, 2))
    a('s_mov_b32 s%d, 0' % sKoff); a('s_mov_b32 s%d, 0' % sVoff); a('s_mov_b32 s%d, 0' % sWoP)
    a('s_lshl_b32 s3, s%d, 21' % sKg); a('s_lshl_b32 s4, s%d, 16' % sWave); a('s_add_u32 s%d, s3, s4' % sWoB)
    a('s_lshr_b32 s3, s%d, 1' % sJ); a('s_and_b32 s4, s%d, 1' % sJ); a('s_lshl_b32 s4, s4, 2'); a('s_add_u32 s3, s3, s4')
    a('s_lshl_b32 s%d, s3, 7' % sPA)
    a('s_add_u32 s3, s3, 2'); a('s_and_b32 s3, s3, 7'); a('s_add_u32 s3, s3, 7'); a('s_lshl_b32 s%d, s3, 7' % sPB)
    a('v_lshl_add_u32 v7, v2, 8, v6'); a('v_add_u32 v%d, s%d, v7' % (vVoff, sLdsW))
    a('v_lshl_add_u32 v7, v2, 8, v9'); a('v_add_u32 v%d, s%d, v7' % (vVoff + 1, sLdsW))
    a('v_lshlrev_b32 v6, 2, v2'); a('v_xor_b32 v6, v6, v3'); a('v_lshlrev_b32 v6, 4, v6')
    a('v_lshl_add_u32 v%d, v2, 11, v6' % vWoOff)
    a('v_mov_b32 v7, s%d' % sPA); a('v_mov_b32 v8, s%d' % sPB); a('v_cmp_gt_u32 vcc, 128, v6'); a('s_nop 1')
    a('v_cndmask_b32 v7, v8, v7, vcc'); a('v_add_u32 v%d, v7, v%d' % (vWoOff, vWoOff))
    a('s_lshl_b32 s3, s%d, 3' % sWave); a('s_and_b32 s3, s3, 8')
    a('v_xor_b32 v6, v2, v3'); a('v_xor_b32 v6, s3, v6')
    for i in range(2):
        a('v_xor_b32 v7, %d, v6' % (4 * i)); a('v_lshlrev_b32 v7, 4, v7'); a('v_lshl_add_u32 v7, v2, 8, v7')
        a('v_add_u32 v%d, s%d, v7' % (vKoff + i, sLdsW))
    a('v_and_b32 v4, 12, v3'); a('v_and_b32 v5, 3, v3'); a('v_lshl_add_u32 v4, v4, 1, v5')
    a('v_and_b32 v5, 1, v2'); a('v_lshlrev_b32 v5, 1, v5'); a('v_lshrrev_b32 v6, 1, v2'); a('v_or_b32 v5, v5, v6'); a('v_xor_b32 v5, v5, v3')
    for m in range(4):
        a('v_xor_b32 v6, %d, v5' % (4 * m)); a('v_lshlrev_b32 v6, 4, v6'); a('v_lshl_add_u32 v%d, v4, 8, v6' % (vKaddr + m))
    a('v_lshrrev_b32 v5, 1, v3'); a('v_xor_b32 v5, v5, v2')
    for ks in range(2):
        a('v_xor_b32 v6, %d, v5' % (4 * ks)); a('v_lshlrev_b32 v6, 4, v6'); a('v_lshl_add_u32 v6, v3, 7, v6')
        a('v_add_u32 v6, s%d, v6' % sLdsW); a('v_add_u32 v%d, 0x4000, v6' % (vXaddr + ks))
    a('v_lshrrev_b32 v4, 2, v3')
    a('v_lshl_add_u32 v5, v2, 3, v4'); a('v_lshlrev_b32 v5, 8, v5')
    a('v_and_b32 v6, 1, v1'); a('v_lshl_add_u32 v5, v6, 3, v5'); a('v_add_u32 v5, %d, v5' % BB)
    a('v_and_b32 v6, 1, v2'); a('v_lshl_add_u32 v6, v6, 2, v4'); a('v_lshlrev_b32 v6, 1, v6')
    a('v_lshrrev_b32 v7, 1, v1'); a('v_and_b32 v7, 1, v7'); a('v_or_b32 v6, v6, v7')
    for db in range(8):
        a('v_xor_b32 v7, %d, v6' % (2 * db)); a('v_lshl_add_u32 v%d, v7, 4, v5' % (vTaddr + db))
        a('v_add_u32 v%d, -16384, v%d' % (vTw + db, vTaddr + db))
    a('v_lshl_add_u32 v5, v2, 2, v4'); a('v_lshlrev_b32 v5, 8, v5'); a('v_add_u32 v5, 0x%x, v5' % AUX)
    a('s_lshl_b32 s3, s%d, 2' % sWave)
    a('v_xor_b32 v6, s3, v3')
    a('v_lshl_add_u32 v%d, v6, 4, v5' % vWoAddr)
    a('v_lshlrev_b32 v%d, 4, v1' % vOoff)
    for i in range(64): a('v_mov_b32 v%d, 0' % (vS[0] + i))
    a('s_mov_b32 s%d, 0x%08x' % (sQs, QSCALE)); a('s_mov_b32 s%d, 0x%08x' % (sQs + 1, QSCALE)); a('s_mov_b32 s%d, 0x%08x' % (sThr, THRESH))
    for k in range(4): a('v_mov_b32 v%d, 0x3f803f80' % (vOnes + k))
    a('s_mov_b32 s%d, 0' % sCnt)

    LA = OPT['la']
    def tr2(buf, addr, off, first, free):
        return [dict(t='ds_read_b64_tr_b16 %s, v%d offset:%d' % (vr(buf, 2), addr, off), first=first, free=free),
                dict(t='ds_read_b64_tr_b16 %s, v%d offset:%d' % (vr(buf + 2, 2), addr, off + 1024), first=first + 1, free=free)]
    def qk_parts(slot, S, first, mbase=0, rbase=0):
        reads = []; mf = []
        for n in range(16):
            blk, m = n >> 2, n & 3; u, kb2 = blk >> 1, blk & 1
            buf = POOL[n & 7]
            reads.append(dict(t='ds_read_b128 %s, v%d offset:%d' % (vr(buf, 4), vKaddr + m, slot * 16384 + u * 8192 + kb2 * 1024), first=mbase + 2 * n, free=mbase + 2 * n - 15))
            for qb in range(2):
                acc = vr(S + 16 * qb + 4 * blk, 4)
                c = acc if m else ('0' if first else vr(vNegM + 4 * qb, 4))
                mf.append(dict(t='%s %s, %s, %s, %s' % (MFMA, acc, vr(buf, 4), vr(vQ + 8 * m + 4 * qb, 4), c), uses=[rbase + n]))
        return reads, mf
    def lsum(S, u, qb):
        return dict(t='%s %s, %s, %s, %s' % (MFMA, vr(vLs + 4 * qb, 4), vr(vOnes, 4), vr(S + 16 * qb + 8 * u, 4), vr(vLs + 4 * qb, 4)), uses=[])
    def pv_parts(t, S, mbase=0, rbase=0, prev=None):
        reads = []; mf = []; last = dict(prev or {})
        for n in range(16):
            u, db = n >> 3, n & 7
            buf = POOL[n & 7]
            i = mbase + len(mf)
            reads += tr2(buf, vTaddr + db, vs(t) * 16384 + u * 8192, i, last.get(n & 7, -1))
            for qb in range(2):
                acc = vr(vO + 8 * db + 4 * qb, 4)
                mf.append(dict(t='%s %s, %s, %s, %s' % (MFMA, acc, vr(buf, 4), vr(S + 16 * qb + 8 * u, 4), acc), uses=[rbase + 2 * n, rbase + 2 * n + 1]))
            last[n & 7] = i + 1
            if db in (2, 5) and not OPT['lvalu']: mf.append(lsum(S, u, 0 if db == 2 else 1))
        return reads, mf, last
    def softmax_ops(S):
        ops = []
        for u in range(2):
            for qb in range(2):
                b = S + 16 * qb + 8 * u
                for h4 in range(2):
                    q = b + 4 * h4
                    for j in range(4): ops.append(('v_exp_f32 v%d, v%d' % (q + j, q + j), u))
                    for j in range(2):
                        if OPT['lvalu']:
                            ops.append(('v_add_f32 v%d, v%d, v%d' % (vLs + 4 * qb, vLs + 4 * qb, q + 2 * j), u))
                            ops.append(('v_add_f32 v%d, v%d, v%d' % (vLs + 4 * qb, vLs + 4 * qb, q + 2 * j + 1), u))
                        ops.append(('v_cvt_pk_bf16_f32 v%d, v%d, v%d' % (b + 2 * h4 + j, q + 2 * j, q + 2 * j + 1), u))
        return ops
    def max_ops(S):
        regs = [(S + 16 * qb + 4 * blk + r, blk) for blk in range(4) for qb in range(2) for r in range(4)]
        ops = [('v_max3_f32 v%d, v%d, v%d, v%d' % (vMax, regs[0][0], regs[1][0], regs[2][0]), 0)]
        for j in range(3, 31, 2): ops.append(('v_max3_f32 v%d, v%d, v%d, v%d' % (vMax, vMax, regs[j][0], regs[j + 1][0]), regs[j + 1][1]))
        ops.append(('v_max_f32 v%d, v%d, v%d' % (vMax, vMax, regs[31][0]), 3))
        return ops
    def allgroups(v, op):
        for sw in ('v_permlane32_swap_b32', 'v_permlane16_swap_b32'):
            a('v_mov_b32 v%d, v%d' % (vTmp, v)); a('s_nop 1'); a('%s v%d, v%d' % (sw, v, vTmp)); a('s_nop 1'); a('%s v%d, v%d, v%d' % (op, v, v, vTmp))
    def rowmax(S, qb, d):
        b = S + 16 * qb
        a('v_max3_f32 v%d, v%d, v%d, v%d' % (d, b, b + 1, b + 2))
        for j in range(3, 15, 2): a('v_max3_f32 v%d, v%d, v%d, v%d' % (d, d, b + j, b + j + 1))
        a('v_max_f32 v%d, v%d, v%d' % (d, d, b + 15))
        allgroups(d, 'v_max_f32')
    def emit_reads(rs):
        for rd in rs: a(rd['t'])
    def npre_of(r, base, la): return min(13, len([x for x in r if x['first'] - base <= la - 1]))

    WP = [vO + 4 * i for i in range(16)]
    QLA = OPT['qla']
    def qp_reads(st, mbase=0, rbase=0, dbmajor=False):
        reads = []; mf = []; xi = {}
        XP = [vNegM + 4 * k for k in range(4)] if dbmajor else POOL[4 * (st & 1): 4 * (st & 1) + 4]
        order = [(ks, db) for db in range(8) for ks in range(2)] if dbmajor else [(ks, db) for ks in range(2) for db in range(8)]
        for n, (ks, db) in enumerate(order):
            i = mbase + 2 * n
            if ks not in xi:
                xi[ks] = rbase + len(reads)
                for qb in range(2):
                    reads.append(dict(t='ds_read_b128 %s, v%d offset:%d' % (vr(XP[2 * ks + qb], 4), vXaddr + ks, XST[st] - 16384 + qb * 2048), first=i))
            wi = rbase + len(reads)
            reads += tr2(WP[n], vTw + db, WST[st] - (BB - 16384) + ks * 8192, i, i - 31)
            for qb in range(2):
                acc = vr(vS[0] + 8 * db + 4 * qb, 4)
                mf.append(dict(t='%s %s, %s, %s, %s' % (MFMA, acc, vr(WP[n], 4), vr(XP[2 * ks + qb], 4), acc), uses=[wi, wi + 1, xi[ks], xi[ks] + 1]))
        return reads, mf
    gkv = lambda t: groups(dma_k(t) + dma_v(t))
    gxw = lambda c: groups(dma_xw(c & 3))
    def qp_body(c, early, late, tail=()):
        r0, mf = qp_reads(c & 3); r1, _ = qp_reads((c + 1) & 3, 32, dbmajor=(c == 14))
        fill = {}
        for k, g in enumerate(early): fill[4 * k] = list(g)
        for k, g in enumerate(late): fill[22 + 4 * k] = list(g)
        fill.setdefault(31, []); fill[31] += list(tail)
        ev = ['s_waitcnt vmcnt(8)', 's_barrier']
        k1 = OPT['kv0at'] + 1
        if c == k1 and c >= 12: ev = ['s_waitcnt vmcnt(16)', 's_barrier']
        elif c < 4 and k1 < 12 and c == (k1 & 3):
            ev = ['s_cmp_eq_u32 s%d, %d' % (sCnt, k1 >> 2), 's_cbranch_scc1 L_kvw', 's_waitcnt vmcnt(8)', 'L_kvw:', 's_waitcnt vmcnt(16)', 's_barrier']
        sched(a, mf, r0 + r1[:npre_of(r1, 32, QLA)], QLA, npre=npre_of(r0, 0, QLA), fill=fill, events={len(r0): ev}, evrange=(17, 22), pair=4)
    r0, _ = qp_reads(0)
    a('s_waitcnt vmcnt(11)')
    a('s_barrier')
    stamp(10)
    emit_reads(r0[:npre_of(r0, 0, QLA)])
    a.label('L_qp')
    if OPT['stamps']:
        a('s_cmp_lg_u32 s%d, 2' % sCnt); a('s_cbranch_scc1 L_st11')
        stamp(11)
    for c in range(4):
        qp_body(c, gxw(c + 2)[3:], gxw(c + 3)[:3], ['s_add_u32 s%d, s%d, 1' % (sCnt, sCnt), 's_cmp_lt_u32 s%d, 3' % sCnt] if c == 3 else [])
        if c == 2:
            a('s_or_b32 s3, s%d, s%d' % (sWave, sCnt)); a('s_cbranch_scc1 L_noinit')
            a('v_mov_b32 v38, 1'); a('v_mov_b32 v39, 0')
            a('s_mov_b64 exec, 1')
            a('buffer_atomic_add v38, v39, %s, 0 offen sc1' % sr(SDBG, 4))
            a('s_mov_b64 exec, %s' % sr(sEx, 2))
            a.label('L_noinit')
        if c == OPT['kv0at'] & 3:
            a('s_cmp_lg_u32 s%d, %d' % (sCnt, (OPT['kv0at'] >> 2) + (1 if c == 3 else 0))); a('s_cbranch_scc1 L_nokv0')
            for x in dma_k(0) + dma_v(0): a(x)
            a('s_add_u32 m0, s%d, %d' % (sLdsW, XST[(c + 3) & 3]))
            a.label('L_nokv0')
            if c == 3: a('s_cmp_lt_u32 s%d, 3' % sCnt)
    a('s_cbranch_scc1 L_qp')
    if OPT['qpm']:
        n0 = [k for k, i in enumerate(a.ins) if i.text.startswith('L_qp:')][0]
        keep = []
        for i in a.ins[n0:]:
            if (OPT['qpm'] & 1) and i.kind == 'mfma': continue
            if (OPT['qpm'] & 2) and i.kind == 'ds': continue
            if (OPT['qpm'] & 4) and i.kind == 'vmem' and 'lds' in i.text: continue
            if (OPT['qpm'] & 16) and i.op == 's_barrier': continue
            keep.append(i)
        a.ins[n0:] = keep
    qp_body(12, gxw(14)[3:], gxw(15)[:3])
    qp_body(13, gxw(15)[3:], gkv(1)[:3])
    qp_body(14, gkv(1)[3:], gkv(2)[:3])
    def pack(m):
        out = []
        t = vS[0] + 16 * m
        for r in range(0, 16, 2): out.append('v_pk_mul_f32 %s, %s, %s' % (vr(t + r, 2), vr(t + r, 2), sr(sQs, 2)))
        for qb in range(2):
            for h in range(2):
                for k in range(2):
                    s_ = t + 8 * h + 4 * qb + 2 * k
                    out.append('v_cvt_pk_bf16_f32 v%d, v%d, v%d' % (vQ + 8 * m + 4 * qb + 2 * h + k, s_, s_ + 1))
        return out
    def qswap(m):
        return ['v_permlane16_swap_b32 v%d, v%d' % (vQ + 8 * m + 4 * qb + k, vQ + 8 * m + 4 * qb + 2 + k) for qb in range(2) for k in range(2)]
    r0, mf = qp_reads(3, dbmajor=True)
    rq, mq = qk_parts(0, vS[0], True)
    rq32, _ = qk_parts(0, vS[0], True, mbase=32)
    for x in rq32: x['free'] = -1
    NPK = npre_of(rq, 0, LA)
    gk3 = groups(dma_k(3))
    fill = {}
    for k, g in enumerate(gkv(2)[3:]): fill[4 * k] = list(g)
    for k in range(3): fill[22 + 4 * k] = list(gk3[k])
    st = [(x, 12, 31) for x in pack(0)] + [(x, 20, 31) for x in pack(1)[:8]]
    bsched(a, mf, r0 + rq32[:NPK], QLA, npre=npre_of(r0, 0, QLA), fixed=fill, events={len(r0): ['s_barrier']}, evrange=(17, 22), streams=[st], pair=4)
    stamp(1)
    for x in gk3[3]: a(x)
    for x in pack(1)[8:] + qswap(0) + pack(2) + qswap(1) + pack(3) + qswap(2) + ['s_nop 0'] + qswap(3): a(x)
    rn, _ = qk_parts(1, vS[1], False, mbase=32)
    zero = ['v_mov_b32 v%d, 0' % (vO + i) for i in range(64)]
    fill = {i: zero[2 * i: 2 * i + 2] for i in range(32)}
    sched(a, mq, rq + rn[:NPK], LA, npre=NPK, fill=fill, events={16: ['s_waitcnt vmcnt(16)', 's_barrier']}, pair=OPT['pair'])
    a('s_barrier')
    gk4 = groups(dma_k(4))
    for k in range(8): a('v_mov_b32 v%d, 0' % (vLs + k))
    for qb in range(2):
        for x in gk4[2 * qb]: a(x)
        rowmax(vS[0], qb, vDelta + qb)
        for x in gk4[2 * qb + 1]: a(x)
        for j in range(4): a('v_sub_f32 v%d, 0, v%d' % (vNegM + 4 * qb + j, vDelta + qb))
        for j in range(16): a('v_sub_f32 v%d, v%d, v%d' % (vS[0] + 16 * qb + j, vS[0] + 16 * qb + j, vDelta + qb))
    stamp(2)

    rare = []
    def iteration(j, vm, kind='mid', tag=''):
        cur, nxt = vS[j & 1], vS[(j + 1) & 1]
        sm = softmax_ops(cur)
        if kind != 'last':
            r1, m1 = qk_parts((j + 1) & 3, nxt, False)
            r2, m2, last = pv_parts(j, cur, 32, 16, prev={b: 2 * (8 + b) + 1 for b in range(8)})
            n = len(m1) + len(m2)
            if kind == 'mid':
                r3, _ = qk_parts((j + 2) & 3, cur, False, mbase=n)
                for k in range(8): r3[k]['free'] = last[k]
                r3 = r3[:NPK]
            else:
                r3, _, _ = pv_parts(j + 1, nxt, n, prev=last); r3 = r3[:NPV]
            reads, mf = r1 + r2 + r3, m1 + m2
            u1 = 32 + len(m2) // 2
            st1 = []; ne = 0
            for x, u in sm:
                if x.startswith('v_exp'): ne += 1
                st1.append((x, 0, min(29 if u == 0 else u1 - 3, (ne * (u1 - 4)) // 32 + (0 if x.startswith('v_exp') else 1))))
            st2 = [(x, max(8 * blk + 12, OPT['mx0']), n - 1) for x, blk in max_ops(nxt)] + [('v_cmp_lt_f32 vcc, s%d, v%d' % (sThr, vMax), 40, n - 1)]
            fixed = {}
            ev0 = n - LA
            if kind == 'mid':
                if j == 0: g = spread(fixed, dma_wo(), ev0 - 28, 3); assert g <= ev0 + 2, g
                g = spread(fixed, dma_v(j + 3) + dma_k(j + 1), ev0 + 2, 1); assert g - 1 < n, g
            bsched(a, mf, reads, LA, npre=NPK, events={len(r1) + len(r2): ['s_waitcnt vmcnt(%d)' % vm, 's_barrier']}, fixed=fixed, streams=[st1, st2],
                   pair=OPT['pair'], evrange=(ev0, ev0 + 2))
            lab = 'L_rare%d%s' % (j, tag)
            a('s_cbranch_vccnz %s' % lab)
            a.label(lab + '_ret')
            rare.append((lab, nxt))
        else:
            reads, mf, _ = pv_parts(j, cur)
            u1 = len(mf) // 2
            for x, u in sm:
                if u == 0: a(x)
            st1 = [(x, 0, u1 - 3) for x, u in sm if u == 1]
            bsched(a, mf, reads, LA, npre=NPV, streams=[st1], pair=OPT['pair'], cap=5)
    NPV = npre_of(pv_parts(0, vS[0])[0], 0, LA)

    def wo_block(p):
        for m in range(4):
            for nb in range(2):
                for h in range(2):
                    a('ds_read_b64_tr_b16 %s, v%d offset:%d' % (ar(32 * p + 8 * m + 4 * nb + 2 * h, 2), vWoAddr, m * 8192 + h * 4096 + nb * 8))
        a('s_waitcnt lgkmcnt(0)')
    def wo_chain(tag):
        a('s_sub_u32 s%d, s%d, s%d' % (sBlk, sCnt, sJ)); a('s_and_b32 s%d, s%d, 7' % (sBlk, sBlk))
        for p in range(8):
            if p < 7:
                a('s_cmp_lg_u32 s%d, %d' % (sBlk, p)); a('s_cbranch_scc1 L_wb%s%d' % (tag, p + 1))
            wo_block(p)
            if p < 7: a('s_branch L_wbdone%s' % tag)
            a.label('L_wb%s%d' % (tag, p + 1) if p < 7 else 'L_wbdone%s' % tag)
    a('s_mov_b32 s%d, 0' % sCnt)
    a.label('L_at')
    stamp(12, sCnt)
    iteration(0, 20)
    iteration(1, 20)
    a('s_cmp_eq_u32 s%d, 7' % sCnt)
    a('s_cbranch_scc1 L_at_last')
    iteration(2, 12)
    wo_chain('a')
    iteration(3, 12)
    a('s_add_u32 s%d, s%d, 1' % (sCnt, sCnt))
    a('s_branch L_at')
    if OPT['atm']:
        n0 = [k for k, i in enumerate(a.ins) if i.text.startswith('L_at:')][0]
        keep = []; m = OPT['atm']; c = 0
        for i in a.ins[n0:]:
            if (m & 1) and i.op == 'v_exp_f32': continue
            if (m & 2) and i.kind == 'ds':
                c += 1
                if (m & 256) == 0 or (c & 1): continue
            if (m & 32) and i.op.startswith('v_max'): continue
            if (m & 64) and i.op.startswith('v_cvt'): continue
            if (m & 128) and i.op == 's_waitcnt' and 'lgkm' in i.text and 'lgkmcnt(0)' not in i.text: continue
            if (m & 512) and i.kind == 'mfma' and min(x[1] for x in i.d) >= vO + 32: continue
            keep.append(i)
        a.ins[n0:] = keep
    a.label('L_at_last')
    iteration(2, 0, kind='pen', tag='p')
    wo_chain('b')
    iteration(3, 0, kind='last')
    stamp(3)

    a('s_lshl_b32 s3, s%d, 2' % sB); a('s_add_u32 s3, s3, s%d' % sWave); a('s_lshl_b32 s3, s3, 18')
    a('s_lshl_b32 s4, s%d, 16' % sKg); a('s_add_u32 s%d, s3, s4' % sOb)
    a('s_lshl_b32 s4, s%d, 13' % sJ); a('s_add_u32 s%d, s%d, s4' % (sT0, sOb)); a('s_add_u32 s%d, s%d, 4096' % (sT1, sT0))
    a('s_lshl_b32 s5, s%d, 1' % sLdsW)
    a('v_add_u32 v2, s5, v%d' % vOoff); a('v_add_u32 v2, 0x8000, v2')
    a('v_mov_b32 v39, 0')
    a('s_waitcnt vmcnt(0)')
    a('buffer_load_dword v38, v39, %s, 0 offen sc1' % sr(SDBG, 4))
    for qb in range(2):
        if OPT['lvalu']: allgroups(vLs + 4 * qb, 'v_add_f32')
        a('v_rcp_f32 v%d, v%d' % (6 + 2 * qb, vLs + 4 * qb))
    a('s_nop 0')
    for qb in range(2): a('v_mov_b32 v%d, v%d' % (7 + 2 * qb, 6 + 2 * qb))
    for m in range(4):
        for qb in range(2):
            f = vQ + 16 * qb + 4 * m
            for h in range(2):
                t = vO + 8 * (2 * m + h) + 4 * qb
                for k in range(2): a('v_pk_mul_f32 %s, %s, %s' % (vr(t + 2 * k, 2), vr(t + 2 * k, 2), vr(6 + 2 * qb, 2)))
            for h in range(2):
                t = vO + 8 * (2 * m + h) + 4 * qb
                for k in range(2): a('v_cvt_pk_bf16_f32 v%d, v%d, v%d' % (f + 2 * h + k, t + 2 * k, t + 2 * k + 1))
            a('buffer_store_dwordx4 %s, v%d, %s, s%d offen offset:%d sc1' % (vr(f, 4), vOoff, sr(SWS, 4), sT1 if qb else sT0, m * 1024))
    for m in range(4):
        for qb in range(2): a('ds_write_b128 v2, %s offset:%d' % (vr(vQ + 16 * qb + 4 * m, 4), qb * 4096 + m * 1024))
    for i in range(4):
        a('s_add_u32 s3, s%d, %d' % (sKg, i)); a('s_and_b32 s3, s3, 3'); a('s_lshl_b32 s3, s3, 13')
        a('v_add_u32 v%d, s3, v%d' % (vOaddr + i, vOoff))
    a('v_add_u32 v%d, 0x10000, v%d' % (vOaddr + 4, vOoff)); a('v_add_u32 v%d, 0x20000, v%d' % (vOaddr + 5, vOoff))
    SADDR = [vOoff, vOaddr + 4, vOaddr + 5]
    ACC = vS[0]
    STG = [None] + [(i, hf) for i in (1, 2, 3, 0) for hf in range(2)]
    OSLOT = [1, 0, 2, 3, 4, 1, 0, 2, 3]
    def op_parts(s_, mbase=0):
        slot = OSLOT[s_]
        reads = []; mf = []
        if s_ == 0: order = [(0, m, i, qb) for m in range(4) for i in range(4) for qb in range(2)]
        else:
            i, hf = STG[s_]
            order = [(1 + 4 * hf + u, m, i, qb) for u in range(4 - hf) for m in range(4) for qb in range(2)]
        for n, (p, m, i, qb) in enumerate(order):
            buf = POOL[n & 7]
            if s_ == 0: ad, off = vOaddr + i, 32768
            else: ad, off = SADDR[slot >> 1], (slot & 1) * 32768 + ((p - 1) & 3) * 8192
            reads.append(dict(t='ds_read_b128 %s, v%d offset:%d' % (vr(buf, 4), ad, off + qb * 4096 + m * 1024), first=mbase + 2 * n, free=mbase + 2 * n - 15))
            for nb in range(2):
                acc = vr(ACC + 16 * i + 8 * qb + 4 * nb, 4)
                mf.append(dict(t='%s %s, %s, %s, %s' % (MFMA, acc, ar(32 * p + 8 * m + 4 * nb, 4), vr(buf, 4), '0' if (p == 0 and m == 0) else acc), uses=[n]))
        return reads, mf
    def dma_o(s_):
        i, hf = STG[s_]
        out = ['s_add_u32 s3, s%d, %d' % (sKg, i), 's_and_b32 s3, s3, 3', 's_lshl_b32 s3, s3, 18', 's_add_u32 s%d, s3, s%d' % (sT0, sHd + hf),
               's_add_u32 m0, s5, %d' % (OSLOT[s_] * 32768), 's_add_u32 s%d, s%d, 4096' % (sT1, sT0)]
        S_ = SWS2 if hf else SWS
        for m in range(4): out.append('buffer_load_dwordx4 v%d, %s, s%d offen offset:%d sc1 lds' % (vOoff, sr(S_, 4), sT0, m * 1024))
        out += ['s_add_u32 m0, m0, 4096', 's_nop 0']
        for m in range(4): out.append('buffer_load_dwordx4 v%d, %s, s%d offen offset:%d sc1 lds' % (vOoff, sr(S_, 4), sT1, m * 1024))
        return out
    def signal(sF, vown, vpoll, cnt):
        return ['v_mov_b32 v38, 1', 's_mov_b64 exec, 1',
                'buffer_store_dword v38, v%d, %s, s%d offen sc1' % (vown, sr(SWS, 4), sF),
                's_mov_b64 exec, %d' % ((1 << cnt) - 2),
                'buffer_load_dword v39, v%d, %s, s%d offen sc1' % (vpoll, sr(SWS, 4), sF),
                's_mov_b64 exec, %s' % sr(sEx, 2)]
    def poll(n, sF, vpoll, cnt):
        a('s_mov_b64 exec, %d' % ((1 << cnt) - 2))
        a('s_mov_b32 s%d, 0' % sSpin)
        a.label('L_poll%d' % n)
        a('s_waitcnt vmcnt(0)')
        a('v_cmp_ne_u32 vcc, 1, v39')
        a('s_cbranch_vccz L_poll%d_out' % n)
        a('s_add_u32 s%d, s%d, 1' % (sSpin, sSpin)); a('s_cmp_ge_u32 s%d, %d' % (sSpin, OPT['spin'])); a('s_cbranch_scc1 L_poll%d_out' % n)
        if OPT['psleep']: a('s_sleep %d' % OPT['psleep'])
        a('buffer_load_dword v39, v%d, %s, s%d offen sc1' % (vpoll, sr(SWS, 4), sF))
        a('s_branch L_poll%d' % n)
        a.label('L_poll%d_out' % n)
        a('s_mov_b64 exec, %s' % sr(sEx, 2))
    a('v_add_u32 v3, s%d, v1' % sJ); a('v_and_b32 v3, 7, v3'); a('v_lshlrev_b32 v3, 2, v3')
    a('v_add_u32 v4, s%d, v1' % sKg); a('v_and_b32 v4, 3, v4'); a('v_lshlrev_b32 v4, 2, v4')
    sHd, SWS2 = 36, 40
    a('s_lshl_b32 s3, s%d, 20' % sB); a('s_lshl_b32 s4, s%d, 16' % sKg); a('s_add_u32 s7, s3, s4')
    for hf in range(2):
        a('s_add_u32 s3, s%d, s%d' % (sJ, sWave)); a('s_add_u32 s3, s3, %d' % (1 + 4 * hf)); a('s_and_b32 s3, s3, 7'); a('s_lshl_b32 s3, s3, 13')
        a('s_add_u32 s%d, s3, s7' % (sHd + hf))
    srd(SWS2, 94, 95, None, None)
    a('s_cmp_eq_u32 s%d, 3' % sWave); a('s_cselect_b32 s%d, 0, 0x2000000' % (SWS2 + 2))
    a('s_lshl_b32 s3, s%d, 3' % sB); a('s_add_u32 s3, s3, s%d' % sJ); a('s_lshl_b32 s3, s3, 18'); a('s_add_u32 s3, s3, s%d' % sLdsW)
    a('s_add_u32 s%d, s3, 0x%x' % (sPb, WS_P))
    a('s_lshl_b32 s6, s%d, 14' % sKg); a('s_add_u32 s6, s6, s%d' % sPb)
    for x in ['s_waitcnt vmcnt(0)', 's_mov_b32 s%d, 0' % sSpin, 'L_init:', 'v_readfirstlane_b32 s3, v38', 's_add_u32 s%d, s%d, 1' % (sSpin, sSpin),
              's_cmp_ge_u32 s3, 256', 's_cbranch_scc1 L_init_ok', 's_cmp_ge_u32 s%d, %d' % (sSpin, OPT['spin']), 's_cbranch_scc1 L_init_ok',
              'v_mov_b32 v39, 0', 'buffer_load_dword v38, v39, %s, 0 offen sc1' % sr(SDBG, 4), 's_waitcnt vmcnt(0)', 's_branch L_init', 'L_init_ok:'] + signal(sF1, 36, 3, 8): a(x)
    stamp(4)
    poll(1, sF1, 3, 8)
    a('s_waitcnt lgkmcnt(0)')
    a('s_barrier')
    stamp(5)
    r, _ = op_parts(0)
    emit_reads(r[:NPK])
    for k in range(1, OPT['odep']):
        for x in dma_o(k): a(x)
    def send(i):
        out = ['s_add_u32 s3, s%d, %d' % (sKg, i), 's_and_b32 s3, s3, 3', 's_lshl_b32 s3, s3, 16', 's_add_u32 s%d, s3, s6' % sT2]
        for g in range(4):
            out.append('buffer_store_dwordx4 %s, v%d, %s, s%d offen offset:%d sc1' % (vr(ACC + 16 * i + 4 * g, 4), vOoff, sr(SWS, 4), sT2, g * 1024))
        return out
    for s_ in range(9):
        r, m = op_parts(s_)
        n = len(m)
        fill = {}
        g = 0
        if s_ in (3, 5, 7): g = spread(fill, send(STG[s_ - 1][0]), 3, 2)
        if s_ < 8:
            rn, _ = op_parts(s_ + 1, n)
            D = OPT['odep']
            if s_ + D <= 8:
                g = spread(fill, dma_o(s_ + D), g, 3); assert g - 3 < n - LA, (s_, g)
            sched(a, m, r + rn[:NPK], LA, npre=NPK, fill=fill, events={len(r): ['s_waitcnt vmcnt(%d)' % (8 * (min(8, s_ + D) - s_ - 1)), 's_barrier']}, evrange=(n - LA, n - 1), pair=4)
        else:
            fill[1] = ['L_sig2:'] + signal(sF2, 37, 4, 4)
            sched(a, m, r, LA, npre=NPK, fill=fill, pair=4)
    stamp(6)
    stamp(7)
    poll(2, sF2, 4, 4)
    stamp(8)
    a('s_lshl_b32 s4, s%d, 16' % sKg); a('s_add_u32 s4, s4, s%d' % sPb)
    for i in range(1, 4):
        a('s_add_u32 s3, s%d, %d' % (sKg, i)); a('s_and_b32 s3, s3, 3'); a('s_lshl_b32 s3, s3, 14'); a('s_add_u32 s%d, s3, s4' % sT0)
        for g in range(4):
            a('buffer_load_dwordx4 %s, v%d, %s, s%d offen offset:%d sc1' % (vr(vO + 16 * i + 4 * g, 4), vOoff, sr(SWS, 4), sT0, g * 1024))
    a('v_and_b32 v2, 15, v1'); a('v_lshrrev_b32 v3, 4, v1'); a('v_lshlrev_b32 v2, 11, v2'); a('v_lshl_add_u32 v2, v3, 4, v2')
    a('s_lshl_b32 s3, s%d, 18' % sB); a('s_lshl_b32 s4, s%d, 16' % sKg); a('s_add_u32 s3, s3, s4')
    a('s_cmp_lt_u32 s%d, 2' % sWave); a('s_cselect_b32 s4, s%d, s%d' % (sPA, sPB))
    a('s_add_u32 s3, s3, s4'); a('s_lshl_b32 s4, s%d, 6' % sWave); a('s_add_u32 s3, s3, s4'); a('s_add_u32 s4, s3, 0x8000')
    for i in range(1, 4):
        a('s_waitcnt vmcnt(%d)' % (4 * (3 - i)))
        for r in range(16): a('v_add_f32 v%d, v%d, v%d' % (ACC + r, ACC + r, vO + 16 * i + r))
    for r in range(0, 16, 2): a('v_cvt_pk_bf16_f32 v%d, v%d, v%d' % (vQ + r // 2, ACC + r, ACC + r + 1))
    a('buffer_store_dwordx4 %s, v2, %s, s3 offen' % (vr(vQ, 4), sr(SOUT, 4)))
    a('buffer_store_dwordx4 %s, v2, %s, s4 offen' % (vr(vQ + 4, 4), sr(SOUT, 4)))
    if OPT['stamps']:
        a('s_waitcnt vmcnt(0)'); stamp(9)
    a.label('L_end')
    a('s_endpgm')
    for lab, S in rare:
        a.label(lab)
        a('s_nop 15')
        for qb in range(2):
            d, al = vDelta + qb, vAlpha + qb
            rowmax(S, qb, d)
            a('v_max_f32 v%d, 0, v%d' % (d, d))
            a('v_sub_f32 v%d, 0, v%d' % (vTmp, d))
            a('v_exp_f32 v%d, v%d' % (al, vTmp))
            for j in range(16): a('v_sub_f32 v%d, v%d, v%d' % (S + 16 * qb + j, S + 16 * qb + j, d))
            for j in range(4): a('v_sub_f32 v%d, v%d, v%d' % (vNegM + 4 * qb + j, vNegM + 4 * qb + j, d))
            for j in range(4): a('v_mul_f32 v%d, v%d, v%d' % (vLs + 4 * qb + j, vLs + 4 * qb + j, al))
            for db in range(8):
                for j in range(4): a('v_mul_f32 v%d, v%d, v%d' % (vO + 8 * db + 4 * qb + j, vO + 8 * db + 4 * qb + j, al))
        a('s_nop 3')
        a('s_branch %s_ret' % lab)
    return a

def main():
    a = gen()
    import io, contextlib
    buf = io.StringIO()
    with contextlib.redirect_stdout(buf):
        bad = check_program(a)
    sys.stderr.write(buf.getvalue())
    for b in bad: sys.stderr.write('BRANCH HAZARD %s\n' % (b,))
    print('; @launch grid=(256,1,1) block=(256,1,1) lds=163840')
    print('.amdgcn_target "amdgcn-amd-amdhsa--gfx950"\n.text')
    print(a.text())
    print('''.section .rodata,"a"
.p2align 6
.amdhsa_kernel %s
  .amdhsa_next_free_vgpr 512
  .amdhsa_next_free_sgpr 100
  .amdhsa_accum_offset 256
  .amdhsa_group_segment_fixed_size 0
  .amdhsa_kernarg_size 64
  .amdhsa_user_sgpr_count 2
  .amdhsa_user_sgpr_kernarg_segment_ptr 1
  .amdhsa_system_sgpr_workgroup_id_x 1
.end_amdhsa_kernel''' % NAME)
main()
```

```python
import sys, math, struct
from asmlib import *

OPT = dict(kpol='nt', vpol='nt', xwpol='-', wopol='-', stamps=0, la=14, qla=14, spin=0x8000, nokv=0, psleep=1, sigat=27,
           stagb=5, nowo=0, atm=0, pair=6, kv0at=9, dwg=0, lvalu=0, mx0=44, qpm=0, odep=2, ctouch=0, pad=0, qpad=0, opad=0)
for a_ in sys.argv[1:]:
    k, v = a_.split('=')
    assert k in OPT, k
    OPT[k] = v if not v.lstrip('-').isdigit() else int(v)
def pol(k): return str(OPT[k]).replace('+', ' ').replace('-', '')
def f32bits(x): return struct.unpack('<I', struct.pack('<f', x))[0]
QSCALE = f32bits(math.log2(math.e) / math.sqrt(128.0))
THRESH = f32bits(8.0)
def vr(b, n=1): return 'v%d' % b if n == 1 else 'v[%d:%d]' % (b, b + n - 1)
def ar(b, n=1): return 'a%d' % b if n == 1 else 'a[%d:%d]' % (b, b + n - 1)
def sr(b, n=1): return 's%d' % b if n == 1 else 's[%d:%d]' % (b, b + n - 1)
MFMA = 'v_mfma_f32_16x16x32_bf16'
NAME = 'standalone__mha_block_cached__near_ridge_kernel'

def is_valu(x): return x.startswith('v_') and not x.startswith('v_mfma')
def cost(x):
    if x.endswith(':'): return 0
    return 2 if x.startswith('v_exp') else 1

def sched(a, mf, reads, la, npre=0, fill=None, events=None, pair=2, evrange=None, maxrd=2):
    fill = fill or {}; events = events or {}
    st = dict(done=0, nxt=npre)
    def issue(cur, lim):
        n = 0
        while st['nxt'] < len(reads) and n < lim:
            k = st['nxt']; rd = reads[k]
            if rd['first'] > cur + la or rd.get('free', -1) > cur or k - st['done'] >= 15: break
            if k in events:
                if evrange is not None: assert evrange[0] <= cur <= evrange[1], ('event gap', cur, evrange)
                for x in events[k]: a(x)
            a(rd['t']); st['nxt'] += 1; n += 1
    def wait_for(i):
        us = mf[i]['uses']
        assert all(u < st['nxt'] for u in us), ('read not issued', i, mf[i], st)
        if us and max(us) + 1 > st['done']:
            pos = max(us) + 1
            for j in range(i + 1, min(i + pair, len(mf))):
                if mf[j]['uses'] and max(mf[j]['uses']) < st['nxt']: pos = max(pos, max(mf[j]['uses']) + 1)
            a('s_waitcnt lgkmcnt(%d)' % (st['nxt'] - pos)); st['done'] = pos
    def fillers(lst, cur, lim):
        if any(x.endswith(':') for x in lst):
            issue(cur, lim)
            for x in lst: a(x)
            return
        evgap = st['nxt'] in events
        if evgap: issue(cur, lim)
        for x in lst:
            if not is_valu(x): a(x)
        if not evgap: issue(cur, lim)
        for x in lst:
            if x.startswith('v_exp'): a(x)
        for x in lst:
            if is_valu(x) and not x.startswith('v_exp'): a(x)
    fillers(fill.get(-1, []), -1, 99)
    wait_for(0)
    for i, m in enumerate(mf):
        a(m['t'])
        if i + 1 < len(mf):
            if not all(u < st['nxt'] for u in mf[i + 1]['uses']): issue(i, 99)
            wait_for(i + 1)
        fillers(fill.get(i, []), i, maxrd if i + 1 < len(mf) else 99)
    assert st['nxt'] == len(reads), (st, len(reads))

def bsched(a, mf, reads, la, npre=0, events=None, fixed=None, streams=(), pair=2, evrange=None, cap=3):
    fixed = {k: list(v) for k, v in (fixed or {}).items()}
    n = len(mf)
    t = Asm(); sched(t, mf, reads, la, npre=npre, fill=fixed, events=events, pair=pair)
    load = {g: 0 for g in range(-1, n)}; g = -1
    for i in t.ins:
        if i.kind == 'mfma': g += 1
        elif i.kind != 'none': load[g] += cost(i.text)
    load[n - 1] += load[-1] + 1
    total = sum(load[g] for g in range(n)) + sum(cost(o[0]) for s_ in streams for o in s_)
    fill = {g: list(fixed.get(g, [])) for g in range(-1, n)}
    pos = [0] * len(streams); done = 0
    for g in range(n):
        done += load[g]; used = load[g]
        target = total * (g + 1.0) / n + 1.0
        while True:
            cand = sorted((streams[k][pos[k]][2], k) for k in range(len(streams)) if pos[k] < len(streams[k]) and streams[k][pos[k]][1] <= g)
            ok = False
            for dl, k in cand:
                c = cost(streams[k][pos[k]][0])
                if dl <= g or used + c <= 2 or (used + c <= cap and done + c <= target):
                    fill[g].append(streams[k][pos[k]][0]); used += c; done += c; pos[k] += 1; ok = True
                    break
            if not ok: break
    assert all(pos[k] == len(streams[k]) for k in range(len(streams))), pos
    sched(a, mf, reads, la, npre=npre, fill=fill, events=events, pair=pair, evrange=evrange)

STAMP_OFF = 496 * 1024 * 1024
NST = 24

def gen():
    a = Asm()
    a.raw('.globl %s\n.p2align 8\n.type %s,@function' % (NAME, NAME)); a.label(NAME)
    SX, SW, SK, SV, SWS, SWO, SOUT, SDBG, SST = 8, 12, 16, 20, 24, 56, 60, 64, 68
    sWave, sLdsW, sAoff, sBoff, sCnt, sH, sB, sT0, sT1, sOb, sKoff, sVoff, sThr = 29, 30, 31, 32, 33, 34, 35, 46, 47, 48, 49, 50, 51
    sQs, sJ, sKg, sPA, sPB = 52, 54, 55, 44, 45
    sWoP, sWoB, sF1, sF2, sSpin, sEx, sT2, sPb, sBlk = 72, 73, 74, 75, 76, 78, 80, 81, 83
    vKoff, vVoff, vWoOff, vOoff = 10, 12, 14, 15
    vKaddr, vTaddr, vWoAddr = 16, 20, 28
    vMax, vTmp, vTmp2, vDelta, vAlpha = 29, 30, 31, 32, 34
    vQ, vNegM, vLs, vS, vO = 40, 72, 80, [88, 120], 152
    POOL = [216 + 4 * i for i in range(8)]
    vOnes = 248
    vXoff, vWoff, vXaddr, vTw = vQ, vQ + 4, vQ + 22, vQ + 24
    vOaddr = vKaddr
    AUX, BB = 65536, 98304
    vs = lambda t: (t + 3) & 3
    WS_P, WS_F1, WS_F2 = 0x800000, 0x1800000, 0x1810000

    def stamp(idx, dyn=None):
        if not OPT['stamps']: return
        if OPT['stamps'] == 5 and idx not in (0, 9):
            if idx == 11: a.label('L_st11')
            return
        lab = 'L_st%d' % idx
        if OPT['stamps'] == 3:
            slot = {0: 0, 10: 1, 11: 2, 1: 3, 2: 4, 3: 5, 4: 6, 5: 7, 6: 8, 7: 9, 8: 10, 9: 11, 12: 12}[idx]
            a('s_cmp_lg_u32 s%d, 0' % sWave); a('s_cbranch_scc1 %s' % lab)
            a('s_cmp_lg_u32 s2, %d' % OPT['dwg']); a('s_cbranch_scc1 %s' % lab)
            if dyn is not None:
                a('s_cmp_gt_u32 s%d, 2' % dyn); a('s_cbranch_scc1 %s' % lab)
            if idx == 7: a('s_mov_b32 s84, s96')
            else:
                a('s_memrealtime s[84:85]'); a('s_waitcnt lgkmcnt(0)')
            a('v_mov_b32 v252, s84'); a('v_mov_b32 v254, 0')
            a('s_mov_b32 s86, %d' % (4 + 4 * slot))
            if dyn is not None:
                a('s_lshl_b32 s87, s%d, 2' % dyn); a('s_add_u32 s86, s86, s87')
            a('buffer_store_dword v252, v254, %s, s86 offen sc1' % sr(SDBG, 4))
            a.label(lab)
            return
        a('s_cmp_lg_u32 s%d, 0' % sWave); a('s_cbranch_scc1 %s' % lab)
        a('s_memtime s[84:85]' if OPT['stamps'] == 2 else 's_memrealtime s[84:85]')
        if OPT['stamps'] == 4:
            a('s_memtime s[86:87]'); a('s_waitcnt lgkmcnt(0)'); a('s_mov_b32 s85, s86')
        a('s_waitcnt lgkmcnt(0)')
        a('v_mov_b32 v252, s84'); a('v_mov_b32 v253, s85'); a('v_mov_b32 v254, 0')
        a('s_mul_i32 s86, s2, %d' % (NST * 8)); a('s_add_u32 s86, s86, %d' % (idx * 8))
        if dyn is not None:
            a('s_lshl_b32 s87, s%d, 3' % dyn); a('s_add_u32 s86, s86, s87')
        a('buffer_store_dwordx2 v[252:253], v254, %s, s86 offen' % sr(SST, 4))
        a.label(lab)
    def srd(d, lo, hi, off, size):
        if off is None:
            a('s_mov_b32 s%d, s%d' % (d, lo)); a('s_mov_b32 s%d, s%d' % (d + 1, hi))
        else:
            a('s_add_u32 s%d, s%d, %s' % (d, lo, off)); a('s_addc_u32 s%d, s%d, 0' % (d + 1, hi))
        if size is not None: a('s_mov_b32 s%d, %s' % (d + 2, size))
        a('s_mov_b32 s%d, 0x00020000' % (d + 3))

    if OPT['stamps'] == 3: a('s_memrealtime s[96:97]')
    a('s_cmp_ge_u32 s2, 256')
    a('s_cbranch_scc1 L_end')
    a('s_load_dwordx8 s[36:43], s[0:1], 0')
    a('s_load_dwordx8 s[88:95], s[0:1], 32')
    if OPT['ctouch']:
        a('s_getpc_b64 s[4:5]')
        a('s_and_b32 s4, s4, 0xffffff00')
        a('s_lshr_b32 s3, s2, 3'); a('s_lshl_b32 s3, s3, 10'); a('s_add_u32 s4, s4, s3'); a('s_addc_u32 s5, s5, 0')
        a('v_and_b32 v2, 7, v0'); a('v_lshlrev_b32 v2, 7, v2'); a('v_mov_b32 v3, s5'); a('v_add_co_u32 v2, vcc, s4, v2'); a('v_addc_co_u32 v3, vcc, 0, v3, vcc')
        a('global_load_dword v255, v[2:3], off')
    a('v_lshrrev_b32 v2, 6, v0')
    a('v_and_b32 v1, 63, v0')
    a('v_readfirstlane_b32 s%d, v2' % sWave)
    a('s_and_b32 s%d, s2, 3' % sKg); a('s_lshl_b32 s3, s%d, 3' % sKg); a('s_lshr_b32 s4, s2, 3'); a('s_and_b32 s%d, s4, 7' % sJ)
    a('s_add_u32 s%d, s3, s%d' % (sH, sJ)); a('s_and_b32 s3, s2, 4'); a('s_lshr_b32 s4, s4, 3'); a('s_add_u32 s%d, s3, s4' % sB)
    a('s_lshl_b32 s%d, s%d, 12' % (sLdsW, sWave))
    a('v_lshrrev_b32 v2, 4, v1')
    a('v_and_b32 v3, 15, v1')
    a('v_lshrrev_b32 v4, 3, v1')
    a('v_and_b32 v5, 7, v1')
    a('v_lshlrev_b32 v6, 1, v2'); a('v_xor_b32 v6, v6, v3'); a('v_lshlrev_b32 v6, 4, v6')
    a('v_xor_b32 v9, 0x80, v6')
    a('s_lshl_b32 s3, s%d, 17' % sWave)
    a('v_lshl_add_u32 v7, v2, 13, v6'); a('v_add_u32 v%d, s3, v7' % vWoff)
    a('v_add_u32 v%d, %d, v%d' % (vWoff + 1, 32768 - 1024, vWoff))
    a('v_lshl_add_u32 v7, v2, 13, v9'); a('v_add_u32 v7, s3, v7')
    a('v_add_u32 v%d, %d, v7' % (vWoff + 2, 2 * (32768 - 1024))); a('v_add_u32 v%d, %d, v7' % (vWoff + 3, 3 * (32768 - 1024)))
    a('s_lshl_b32 s3, s%d, 16' % sWave)
    a('v_xor_b32 v7, v2, v5'); a('v_xor_b32 v8, 4, v7')
    a('v_lshlrev_b32 v7, 4, v7'); a('v_lshlrev_b32 v8, 4, v8')
    a('v_lshl_add_u32 v7, v4, 11, v7'); a('v_lshl_add_u32 v8, v4, 11, v8')
    a('v_add_u32 v%d, s3, v7' % vXoff); a('v_add_u32 v8, s3, v8')
    a('v_add_u32 v%d, %d, v8' % (vXoff + 1, 1 * (16384 - 1024)))
    a('v_add_u32 v%d, %d, v%d' % (vXoff + 2, 2 * (16384 - 1024), vXoff))
    a('v_add_u32 v%d, %d, v8' % (vXoff + 3, 3 * (16384 - 1024)))
    a('s_lshl_b32 s3, s%d, 1' % sH); a('s_mul_i32 s4, s%d, %d' % (sB, OPT['stagb'])); a('s_add_u32 s3, s3, s4'); a('s_and_b32 s3, s3, 15')
    a('s_lshl_b32 s%d, s3, 7' % sAoff)
    a('s_lshl_b32 s5, s%d, 18' % sB); a('s_lshl_b32 s6, s%d, 8' % sH); a('s_sub_u32 s%d, 0x800000, s6' % (SW + 2))
    a('s_waitcnt lgkmcnt(0)')
    srd(SX, 36, 37, 's5', '0x40000'); srd(SW, 42, 43, 's6', None)

    XST = [16384, 32768, 49152, 65536]
    WST = [BB, BB + 16384, BB + 32768, BB - 16384]
    def dma_xw(st):
        out = ['s_add_u32 m0, s%d, %d' % (sLdsW, XST[st]), 's_lshl_b32 s%d, s%d, 12' % (sBoff, sAoff)]
        for i in range(4):
            out.append('buffer_load_dwordx4 v%d, %s, s%d offen offset:%d %s lds' % (vXoff + i, sr(SX, 4), sAoff, i * 1024, pol('xwpol')))
        out += ['s_add_u32 m0, s%d, %d' % (sLdsW, WST[st]), 's_add_u32 s%d, s%d, 128' % (sAoff, sAoff)]
        for i in range(4):
            out.append('buffer_load_dwordx4 v%d, %s, s%d offen offset:%d %s lds' % (vWoff + i, sr(SW, 4), sBoff, i * 1024, pol('xwpol')))
            if i == 0: out.append('s_and_b32 s%d, s%d, 0x7ff' % (sAoff, sAoff))
        return out
    def dma_kv(t, S, so, vo, base, p):
        out = ['s_add_u32 m0, s%d, %d' % (sLdsW, base), 's_cmp_lt_u32 s%d, 0x80000' % so, 's_cselect_b32 s%d, %s, 0' % (S + 2, '0' if OPT['nokv'] else '0x80000')]
        for i in range(4):
            out.append('buffer_load_dwordx4 v%d, %s, s%d offen offset:%d %s lds' % (vo + (i >> 1), sr(S, 4), so, i * 1024, pol(p)))
        out.append('s_add_u32 s%d, s%d, 0x4000' % (so, so))
        return out
    dma_k = lambda t: dma_kv(t, SK, sKoff, vKoff, (t & 3) * 16384, 'kpol')
    dma_v = lambda t: dma_kv(t, SV, sVoff, vVoff, BB + vs(t) * 16384, 'vpol')
    def dma_wo():
        out = ['s_lshl_b32 s%d, s%d, 18' % (sT2, sWoP), 's_add_u32 s%d, s%d, s%d' % (sT2, sT2, sWoB),
               's_lshl_b32 m0, s%d, 1' % sLdsW, 's_add_u32 m0, m0, %d' % AUX, 's_add_u32 s%d, s%d, 1' % (sWoP, sWoP)]
        for i in range(8):
            if i == 4: out.append('s_add_u32 m0, m0, 4096')
            if i: out.append('s_add_u32 s%d, s%d, %d' % (sT2, sT2, 8192 - 1024 + (4096 if i == 4 else 0)))
            out.append('buffer_load_dwordx4 v%d, %s, s%d offen offset:%d %s lds' % (vWoOff, sr(SWO, 4), sT2, (i & 3) * 1024, pol('wopol')))
        return out
    def groups(lst):
        gs = [[]]
        for x in lst:
            gs[-1].append(x)
            if x.startswith('buffer'): gs.append([])
        if gs[-1]: gs[-2] += gs[-1]
        return gs[:-1]
    def spread(fixed, lst, g0, step, per=2):
        g = g0
        for grp in groups(lst):
            pre = grp[:[x.startswith('buffer') for x in grp].index(True)]
            rest = grp[len(pre):]
            while len(pre) > 1:
                fixed.setdefault(g, []).extend(pre[:2]); pre = pre[2:]; g += 1
            fixed.setdefault(g, []).extend(pre + rest); g += step
        return g

    for x in dma_xw(0): a(x)
    a('s_lshl_b32 s3, s%d, 5' % sB); a('s_add_u32 s3, s3, s%d' % sH); a('s_lshl_b32 s3, s3, 19')
    srd(SK, 38, 39, 's3', '0x80000'); srd(SV, 40, 41, 's3', '0x80000')
    srd(SWS, 94, 95, None, '0x2000000'); srd(SWO, 88, 89, None, '0' if OPT['nowo'] else '0x800000'); srd(SOUT, 90, 91, None, '0x200000'); srd(SDBG, 92, 93, None, '256')
    if OPT['stamps']: srd(SST, 94, 95, str(STAMP_OFF), '0x100000')
    stamp(0)
    a('s_lshl_b32 s3, s%d, 2' % sB); a('s_add_u32 s3, s3, s%d' % sKg); a('s_lshl_b32 s3, s3, 10'); a('s_lshl_b32 s4, s%d, 8' % sWave)
    a('s_add_u32 s3, s3, s4'); a('s_add_u32 s%d, s3, 0x%x' % (sF1, WS_F1))
    a('s_lshl_b32 s3, s%d, 3' % sB); a('s_add_u32 s3, s3, s%d' % sJ); a('s_lshl_b32 s3, s3, 10')
    a('s_add_u32 s3, s3, s4'); a('s_add_u32 s%d, s3, 0x%x' % (sF2, WS_F2))
    a('s_lshl_b32 s3, s%d, 2' % sJ); a('s_lshl_b32 s4, s%d, 2' % sKg)
    a('v_mov_b32 v36, s3'); a('v_mov_b32 v37, s4'); a('v_mov_b32 v38, 0'); a('v_mov_b32 v39, 0')
    a('s_mov_b64 %s, exec' % sr(sEx, 2)); a('s_mov_b64 exec, 1')
    a('buffer_atomic_swap v38, v36, %s, s%d offen sc0 sc1' % (sr(SWS, 4), sF1))
    a('buffer_atomic_swap v39, v37, %s, s%d offen sc0 sc1' % (sr(SWS, 4), sF2))
    a('s_mov_b64 exec, %s' % sr(sEx, 2))
    a('s_mov_b32 s%d, 0' % sKoff); a('s_mov_b32 s%d, 0' % sVoff); a('s_mov_b32 s%d, 0' % sWoP)
    a('s_lshl_b32 s3, s%d, 21' % sKg); a('s_lshl_b32 s4, s%d, 16' % sWave); a('s_add_u32 s%d, s3, s4' % sWoB)
    a('s_lshr_b32 s3, s%d, 1' % sJ); a('s_and_b32 s4, s%d, 1' % sJ); a('s_lshl_b32 s4, s4, 2'); a('s_add_u32 s3, s3, s4')
    a('s_lshl_b32 s%d, s3, 7' % sPA)
    a('s_add_u32 s3, s3, 2'); a('s_and_b32 s3, s3, 7'); a('s_add_u32 s3, s3, 7'); a('s_lshl_b32 s%d, s3, 7' % sPB)
    a('v_lshl_add_u32 v7, v2, 8, v6'); a('v_add_u32 v%d, s%d, v7' % (vVoff, sLdsW))
    a('v_lshl_add_u32 v7, v2, 8, v9'); a('v_add_u32 v%d, s%d, v7' % (vVoff + 1, sLdsW))
    a('v_lshlrev_b32 v6, 2, v2'); a('v_xor_b32 v6, v6, v3'); a('v_lshlrev_b32 v6, 4, v6')
    a('v_lshl_add_u32 v%d, v2, 11, v6' % vWoOff)
    a('v_mov_b32 v7, s%d' % sPA); a('v_mov_b32 v8, s%d' % sPB); a('v_cmp_gt_u32 vcc, 128, v6'); a('s_nop 1')
    a('v_cndmask_b32 v7, v8, v7, vcc'); a('v_add_u32 v%d, v7, v%d' % (vWoOff, vWoOff))
    a('s_lshl_b32 s3, s%d, 3' % sWave); a('s_and_b32 s3, s3, 8')
    a('v_xor_b32 v6, v2, v3'); a('v_xor_b32 v6, s3, v6')
    for i in range(2):
        a('v_xor_b32 v7, %d, v6' % (4 * i)); a('v_lshlrev_b32 v7, 4, v7'); a('v_lshl_add_u32 v7, v2, 8, v7')
        a('v_add_u32 v%d, s%d, v7' % (vKoff + i, sLdsW))
    a('v_and_b32 v4, 12, v3'); a('v_and_b32 v5, 3, v3'); a('v_lshl_add_u32 v4, v4, 1, v5')
    a('v_and_b32 v5, 1, v2'); a('v_lshlrev_b32 v5, 1, v5'); a('v_lshrrev_b32 v6, 1, v2'); a('v_or_b32 v5, v5, v6'); a('v_xor_b32 v5, v5, v3')
    for m in range(4):
        a('v_xor_b32 v6, %d, v5' % (4 * m)); a('v_lshlrev_b32 v6, 4, v6'); a('v_lshl_add_u32 v%d, v4, 8, v6' % (vKaddr + m))
    a('v_lshrrev_b32 v5, 1, v3'); a('v_xor_b32 v5, v5, v2')
    for ks in range(2):
        a('v_xor_b32 v6, %d, v5' % (4 * ks)); a('v_lshlrev_b32 v6, 4, v6'); a('v_lshl_add_u32 v6, v3, 7, v6')
        a('v_add_u32 v6, s%d, v6' % sLdsW); a('v_add_u32 v%d, 0x4000, v6' % (vXaddr + ks))
    a('v_lshrrev_b32 v4, 2, v3')
    a('v_lshl_add_u32 v5, v2, 3, v4'); a('v_lshlrev_b32 v5, 8, v5')
    a('v_and_b32 v6, 1, v1'); a('v_lshl_add_u32 v5, v6, 3, v5'); a('v_add_u32 v5, %d, v5' % BB)
    a('v_and_b32 v6, 1, v2'); a('v_lshl_add_u32 v6, v6, 2, v4'); a('v_lshlrev_b32 v6, 1, v6')
    a('v_lshrrev_b32 v7, 1, v1'); a('v_and_b32 v7, 1, v7'); a('v_or_b32 v6, v6, v7')
    for db in range(8):
        a('v_xor_b32 v7, %d, v6' % (2 * db)); a('v_lshl_add_u32 v%d, v7, 4, v5' % (vTaddr + db))
        a('v_add_u32 v%d, -16384, v%d' % (vTw + db, vTaddr + db))
    a('v_lshl_add_u32 v5, v2, 2, v4'); a('v_lshlrev_b32 v5, 8, v5'); a('v_add_u32 v5, 0x%x, v5' % AUX)
    a('s_lshl_b32 s3, s%d, 2' % sWave)
    a('v_xor_b32 v6, s3, v3')
    a('v_lshl_add_u32 v%d, v6, 4, v5' % vWoAddr)
    a('v_lshlrev_b32 v%d, 4, v1' % vOoff)
    for i in range(64): a('v_mov_b32 v%d, 0' % (vS[0] + i))
    a('s_mov_b32 s%d, 0x%08x' % (sQs, QSCALE)); a('s_mov_b32 s%d, 0x%08x' % (sQs + 1, QSCALE)); a('s_mov_b32 s%d, 0x%08x' % (sThr, THRESH))
    for k in range(4): a('v_mov_b32 v%d, 0x3f803f80' % (vOnes + k))
    a('s_mov_b32 s%d, 0' % sCnt)

    LA = OPT['la']
    def tr2(buf, addr, off, first, free):
        return [dict(t='ds_read_b64_tr_b16 %s, v%d offset:%d' % (vr(buf, 2), addr, off), first=first, free=free),
                dict(t='ds_read_b64_tr_b16 %s, v%d offset:%d' % (vr(buf + 2, 2), addr, off + 1024), first=first + 1, free=free)]
    def qk_parts(slot, S, first, mbase=0, rbase=0):
        reads = []; mf = []
        for n in range(16):
            blk, m = n >> 2, n & 3; u, kb2 = blk >> 1, blk & 1
            buf = POOL[n & 7]
            reads.append(dict(t='ds_read_b128 %s, v%d offset:%d' % (vr(buf, 4), vKaddr + m, slot * 16384 + u * 8192 + kb2 * 1024), first=mbase + 2 * n, free=mbase + 2 * n - 15))
            for qb in range(2):
                acc = vr(S + 16 * qb + 4 * blk, 4)
                c = acc if m else ('0' if first else vr(vNegM + 4 * qb, 4))
                mf.append(dict(t='%s %s, %s, %s, %s' % (MFMA, acc, vr(buf, 4), vr(vQ + 8 * m + 4 * qb, 4), c), uses=[rbase + n]))
        return reads, mf
    def lsum(S, u, qb):
        return dict(t='%s %s, %s, %s, %s' % (MFMA, vr(vLs + 4 * qb, 4), vr(vOnes, 4), vr(S + 16 * qb + 8 * u, 4), vr(vLs + 4 * qb, 4)), uses=[])
    def pv_parts(t, S, mbase=0, rbase=0, prev=None):
        reads = []; mf = []; last = dict(prev or {})
        for n in range(16):
            u, db = n >> 3, n & 7
            buf = POOL[n & 7]
            i = mbase + len(mf)
            reads += tr2(buf, vTaddr + db, vs(t) * 16384 + u * 8192, i, last.get(n & 7, -1))
            for qb in range(2):
                acc = vr(vO + 8 * db + 4 * qb, 4)
                mf.append(dict(t='%s %s, %s, %s, %s' % (MFMA, acc, vr(buf, 4), vr(S + 16 * qb + 8 * u, 4), acc), uses=[rbase + 2 * n, rbase + 2 * n + 1]))
            last[n & 7] = i + 1
            if db in (2, 5) and not OPT['lvalu']: mf.append(lsum(S, u, 0 if db == 2 else 1))
        return reads, mf, last
    def softmax_ops(S):
        ops = []
        for u in range(2):
            for qb in range(2):
                b = S + 16 * qb + 8 * u
                for h4 in range(2):
                    q = b + 4 * h4
                    for j in range(4): ops.append(('v_exp_f32 v%d, v%d' % (q + j, q + j), u))
                    for j in range(2):
                        if OPT['lvalu']:
                            ops.append(('v_add_f32 v%d, v%d, v%d' % (vLs + 4 * qb, vLs + 4 * qb, q + 2 * j), u))
                            ops.append(('v_add_f32 v%d, v%d, v%d' % (vLs + 4 * qb, vLs + 4 * qb, q + 2 * j + 1), u))
                        ops.append(('v_cvt_pk_bf16_f32 v%d, v%d, v%d' % (b + 2 * h4 + j, q + 2 * j, q + 2 * j + 1), u))
        return ops
    def max_ops(S):
        regs = [(S + 16 * qb + 4 * blk + r, blk) for blk in range(4) for qb in range(2) for r in range(4)]
        ops = [('v_max3_f32 v%d, v%d, v%d, v%d' % (vMax, regs[0][0], regs[1][0], regs[2][0]), 0)]
        for j in range(3, 31, 2): ops.append(('v_max3_f32 v%d, v%d, v%d, v%d' % (vMax, vMax, regs[j][0], regs[j + 1][0]), regs[j + 1][1]))
        ops.append(('v_max_f32 v%d, v%d, v%d' % (vMax, vMax, regs[31][0]), 3))
        return ops
    def allgroups(v, op):
        for sw in ('v_permlane32_swap_b32', 'v_permlane16_swap_b32'):
            a('v_mov_b32 v%d, v%d' % (vTmp, v)); a('s_nop 1'); a('%s v%d, v%d' % (sw, v, vTmp)); a('s_nop 1'); a('%s v%d, v%d, v%d' % (op, v, v, vTmp))
    def rowmax(S, qb, d):
        b = S + 16 * qb
        a('v_max3_f32 v%d, v%d, v%d, v%d' % (d, b, b + 1, b + 2))
        for j in range(3, 15, 2): a('v_max3_f32 v%d, v%d, v%d, v%d' % (d, d, b + j, b + j + 1))
        a('v_max_f32 v%d, v%d, v%d' % (d, d, b + 15))
        allgroups(d, 'v_max_f32')
    def emit_reads(rs):
        for rd in rs: a(rd['t'])
    def npre_of(r, base, la): return min(13, len([x for x in r if x['first'] - base <= la - 1]))

    WP = [vO + 4 * i for i in range(16)]
    QLA = OPT['qla']
    def qp_reads(st, mbase=0, rbase=0, dbmajor=False):
        reads = []; mf = []; xi = {}
        XP = [vNegM + 4 * k for k in range(4)] if dbmajor else POOL[4 * (st & 1): 4 * (st & 1) + 4]
        order = [(ks, db) for db in range(8) for ks in range(2)] if dbmajor else [(ks, db) for ks in range(2) for db in range(8)]
        for n, (ks, db) in enumerate(order):
            i = mbase + 2 * n
            if ks not in xi:
                xi[ks] = rbase + len(reads)
                for qb in range(2):
                    reads.append(dict(t='ds_read_b128 %s, v%d offset:%d' % (vr(XP[2 * ks + qb], 4), vXaddr + ks, XST[st] - 16384 + qb * 2048), first=i))
            wi = rbase + len(reads)
            reads += tr2(WP[n], vTw + db, WST[st] - (BB - 16384) + ks * 8192, i, i - 31)
            for qb in range(2):
                acc = vr(vS[0] + 8 * db + 4 * qb, 4)
                mf.append(dict(t='%s %s, %s, %s, %s' % (MFMA, acc, vr(WP[n], 4), vr(XP[2 * ks + qb], 4), acc), uses=[wi, wi + 1, xi[ks], xi[ks] + 1]))
        return reads, mf
    gkv = lambda t: groups(dma_k(t) + dma_v(t))
    gxw = lambda c: groups(dma_xw(c & 3))
    def qp_body(c, early, late, tail=()):
        r0, mf = qp_reads(c & 3); r1, _ = qp_reads((c + 1) & 3, 32, dbmajor=(c == 14))
        fill = {}
        for k, g in enumerate(early): fill[4 * k] = list(g)
        for k, g in enumerate(late): fill[22 + 4 * k] = list(g)
        fill.setdefault(31, []); fill[31] += list(tail)
        ev = ['s_waitcnt vmcnt(8)', 's_barrier']
        k1 = OPT['kv0at'] + 1
        if c == k1 and c >= 12: ev = ['s_waitcnt vmcnt(16)', 's_barrier']
        elif c < 4 and k1 < 12 and c == (k1 & 3):
            ev = ['s_cmp_eq_u32 s%d, %d' % (sCnt, k1 >> 2), 's_cbranch_scc1 L_kvw', 's_waitcnt vmcnt(8)', 'L_kvw:', 's_waitcnt vmcnt(16)', 's_barrier']
        sched(a, mf, r0 + r1[:npre_of(r1, 32, QLA)], QLA, npre=npre_of(r0, 0, QLA), fill=fill, events={len(r0): ev}, evrange=(17, 22), pair=4)
    r0, _ = qp_reads(0)
    for g in groups(dma_xw(1)) + groups(dma_xw(2))[:3]:
        for x in g: a(x)
    a('s_waitcnt vmcnt(11)')
    a('s_barrier')
    stamp(10)
    emit_reads(r0[:npre_of(r0, 0, QLA)])
    a.label('L_qp')
    if OPT['stamps']:
        a('s_cmp_lg_u32 s%d, 2' % sCnt); a('s_cbranch_scc1 L_st11')
        stamp(11)
    for c in range(4):
        qp_body(c, gxw(c + 2)[3:], gxw(c + 3)[:3], ['s_add_u32 s%d, s%d, 1' % (sCnt, sCnt), 's_cmp_lt_u32 s%d, 3' % sCnt] if c == 3 else [])
        if c == 2:
            a('s_or_b32 s3, s%d, s%d' % (sWave, sCnt)); a('s_cbranch_scc1 L_noinit')
            a('v_mov_b32 v38, 1'); a('v_mov_b32 v39, 0')
            a('s_mov_b64 exec, 1')
            a('buffer_atomic_add v38, v39, %s, 0 offen sc1' % sr(SDBG, 4))
            a('s_mov_b64 exec, %s' % sr(sEx, 2))
            a.label('L_noinit')
        if c == OPT['kv0at'] & 3:
            a('s_cmp_lg_u32 s%d, %d' % (sCnt, (OPT['kv0at'] >> 2) + (1 if c == 3 else 0))); a('s_cbranch_scc1 L_nokv0')
            for x in dma_k(0) + dma_v(0): a(x)
            a('s_add_u32 m0, s%d, %d' % (sLdsW, XST[(c + 3) & 3]))
            a.label('L_nokv0')
            if c == 3: a('s_cmp_lt_u32 s%d, 3' % sCnt)
    a('s_cbranch_scc1 L_qp')
    if OPT['qpm']:
        n0 = [k for k, i in enumerate(a.ins) if i.text.startswith('L_qp:')][0]
        keep = []
        for i in a.ins[n0:]:
            if (OPT['qpm'] & 1) and i.kind == 'mfma': continue
            if (OPT['qpm'] & 2) and i.kind == 'ds': continue
            if (OPT['qpm'] & 4) and i.kind == 'vmem' and 'lds' in i.text: continue
            if (OPT['qpm'] & 16) and i.op == 's_barrier': continue
            keep.append(i)
        a.ins[n0:] = keep
    qp_body(12, gxw(14)[3:], gxw(15)[:3])
    qp_body(13, gxw(15)[3:], gkv(1)[:3])
    qp_body(14, gkv(1)[3:], gkv(2)[:3])
    def pack(m):
        out = []
        t = vS[0] + 16 * m
        for r in range(0, 16, 2): out.append('v_pk_mul_f32 %s, %s, %s' % (vr(t + r, 2), vr(t + r, 2), sr(sQs, 2)))
        for qb in range(2):
            for h in range(2):
                for k in range(2):
                    s_ = t + 8 * h + 4 * qb + 2 * k
                    out.append('v_cvt_pk_bf16_f32 v%d, v%d, v%d' % (vQ + 8 * m + 4 * qb + 2 * h + k, s_, s_ + 1))
        return out
    def qswap(m):
        return ['v_permlane16_swap_b32 v%d, v%d' % (vQ + 8 * m + 4 * qb + k, vQ + 8 * m + 4 * qb + 2 + k) for qb in range(2) for k in range(2)]
    r0, mf = qp_reads(3, dbmajor=True)
    rq, mq = qk_parts(0, vS[0], True)
    rq32, _ = qk_parts(0, vS[0], True, mbase=32)
    for x in rq32: x['free'] = -1
    NPK = npre_of(rq, 0, LA)
    gk3 = groups(dma_k(3))
    fill = {}
    for k, g in enumerate(gkv(2)[3:]): fill[4 * k] = list(g)
    for k in range(3): fill[22 + 4 * k] = list(gk3[k])
    st = [(x, 12, 31) for x in pack(0)] + [(x, 20, 31) for x in pack(1)[:8]]
    bsched(a, mf, r0 + rq32[:NPK], QLA, npre=npre_of(r0, 0, QLA), fixed=fill, events={len(r0): ['s_barrier']}, evrange=(17, 22), streams=[st], pair=4)
    stamp(1)
    for x in gk3[3]: a(x)
    for x in pack(1)[8:] + qswap(0) + pack(2) + qswap(1) + pack(3) + qswap(2) + ['s_nop 0'] + qswap(3): a(x)
    rn, _ = qk_parts(1, vS[1], False, mbase=32)
    zero = ['v_mov_b32 v%d, 0' % (vO + i) for i in range(64)]
    fill = {i: zero[2 * i: 2 * i + 2] for i in range(32)}
    sched(a, mq, rq + rn[:NPK], LA, npre=NPK, fill=fill, events={16: ['s_waitcnt vmcnt(16)', 's_barrier']}, pair=OPT['pair'])
    a('s_barrier')
    gk4 = groups(dma_k(4))
    for k in range(8): a('v_mov_b32 v%d, 0' % (vLs + k))
    for qb in range(2):
        for x in gk4[2 * qb]: a(x)
        rowmax(vS[0], qb, vDelta + qb)
        for x in gk4[2 * qb + 1]: a(x)
        for j in range(4): a('v_sub_f32 v%d, 0, v%d' % (vNegM + 4 * qb + j, vDelta + qb))
        for j in range(16): a('v_sub_f32 v%d, v%d, v%d' % (vS[0] + 16 * qb + j, vS[0] + 16 * qb + j, vDelta + qb))
    stamp(2)

    rare = []
    def iteration(j, vm, kind='mid', tag=''):
        cur, nxt = vS[j & 1], vS[(j + 1) & 1]
        sm = softmax_ops(cur)
        if kind != 'last':
            r1, m1 = qk_parts((j + 1) & 3, nxt, False)
            r2, m2, last = pv_parts(j, cur, 32, 16, prev={b: 2 * (8 + b) + 1 for b in range(8)})
            n = len(m1) + len(m2)
            if kind == 'mid':
                r3, _ = qk_parts((j + 2) & 3, cur, False, mbase=n)
                for k in range(8): r3[k]['free'] = last[k]
                r3 = r3[:NPK]
            else:
                r3, _, _ = pv_parts(j + 1, nxt, n, prev=last); r3 = r3[:NPV]
            reads, mf = r1 + r2 + r3, m1 + m2
            u1 = 32 + len(m2) // 2
            st1 = []; ne = 0
            for x, u in sm:
                if x.startswith('v_exp'): ne += 1
                st1.append((x, 0, min(29 if u == 0 else u1 - 3, (ne * (u1 - 4)) // 32 + (0 if x.startswith('v_exp') else 1))))
            st2 = [(x, max(8 * blk + 12, OPT['mx0']), n - 1) for x, blk in max_ops(nxt)] + [('v_cmp_lt_f32 vcc, s%d, v%d' % (sThr, vMax), 40, n - 1)]
            fixed = {}
            ev0 = n - LA
            if kind == 'mid':
                if j == 0: g = spread(fixed, dma_wo(), ev0 - 28, 3); assert g <= ev0 + 2, g
                g = spread(fixed, dma_v(j + 3) + dma_k(j + 1), ev0 + 2, 1); assert g - 1 < n, g
            bsched(a, mf, reads, LA, npre=NPK, events={len(r1) + len(r2): ['s_waitcnt vmcnt(%d)' % vm, 's_barrier']}, fixed=fixed, streams=[st1, st2],
                   pair=OPT['pair'], evrange=(ev0, ev0 + 2))
            lab = 'L_rare%d%s' % (j, tag)
            a('s_cbranch_vccnz %s' % lab)
            a.label(lab + '_ret')
            rare.append((lab, nxt))
        else:
            reads, mf, _ = pv_parts(j, cur)
            u1 = len(mf) // 2
            for x, u in sm:
                if u == 0: a(x)
            st1 = [(x, 0, u1 - 3) for x, u in sm if u == 1]
            bsched(a, mf, reads, LA, npre=NPV, streams=[st1], pair=OPT['pair'], cap=5)
    NPV = npre_of(pv_parts(0, vS[0])[0], 0, LA)

    def wo_block(p):
        for m in range(4):
            for nb in range(2):
                for h in range(2):
                    a('ds_read_b64_tr_b16 %s, v%d offset:%d' % (ar(32 * p + 8 * m + 4 * nb + 2 * h, 2), vWoAddr, m * 8192 + h * 4096 + nb * 8))
        a('s_waitcnt lgkmcnt(0)')
    def wo_chain(tag):
        a('s_sub_u32 s%d, s%d, s%d' % (sBlk, sCnt, sJ)); a('s_and_b32 s%d, s%d, 7' % (sBlk, sBlk))
        for p in range(8):
            if p < 7:
                a('s_cmp_lg_u32 s%d, %d' % (sBlk, p)); a('s_cbranch_scc1 L_wb%s%d' % (tag, p + 1))
            wo_block(p)
            if p < 7: a('s_branch L_wbdone%s' % tag)
            a.label('L_wb%s%d' % (tag, p + 1) if p < 7 else 'L_wbdone%s' % tag)
    a('s_mov_b32 s%d, 0' % sCnt)
    a.label('L_at')
    stamp(12, sCnt)
    iteration(0, 20)
    iteration(1, 20)
    a('s_cmp_eq_u32 s%d, 7' % sCnt)
    a('s_cbranch_scc1 L_at_last')
    iteration(2, 12)
    wo_chain('a')
    iteration(3, 12)
    a('s_add_u32 s%d, s%d, 1' % (sCnt, sCnt))
    a('s_branch L_at')
    if OPT['atm']:
        n0 = [k for k, i in enumerate(a.ins) if i.text.startswith('L_at:')][0]
        keep = []; m = OPT['atm']; c = 0
        for i in a.ins[n0:]:
            if (m & 1) and i.op == 'v_exp_f32': continue
            if (m & 2) and i.kind == 'ds':
                c += 1
                if (m & 256) == 0 or (c & 1): continue
            if (m & 32) and i.op.startswith('v_max'): continue
            if (m & 64) and i.op.startswith('v_cvt'): continue
            if (m & 128) and i.op == 's_waitcnt' and 'lgkm' in i.text and 'lgkmcnt(0)' not in i.text: continue
            if (m & 512) and i.kind == 'mfma' and min(x[1] for x in i.d) >= vO + 32: continue
            keep.append(i)
        a.ins[n0:] = keep
    a.label('L_at_last')
    iteration(2, 0, kind='pen', tag='p')
    wo_chain('b')
    iteration(3, 0, kind='last')
    stamp(3)

    a('s_lshl_b32 s3, s%d, 2' % sB); a('s_add_u32 s3, s3, s%d' % sWave); a('s_lshl_b32 s3, s3, 18')
    a('s_lshl_b32 s4, s%d, 16' % sKg); a('s_add_u32 s%d, s3, s4' % sOb)
    a('s_lshl_b32 s4, s%d, 13' % sJ); a('s_add_u32 s%d, s%d, s4' % (sT0, sOb)); a('s_add_u32 s%d, s%d, 4096' % (sT1, sT0))
    a('s_lshl_b32 s5, s%d, 1' % sLdsW)
    a('v_add_u32 v2, s5, v%d' % vOoff); a('v_add_u32 v2, 0x8000, v2')
    a('v_mov_b32 v39, 0')
    a('s_waitcnt vmcnt(0)')
    a('buffer_load_dword v38, v39, %s, 0 offen sc1' % sr(SDBG, 4))
    for qb in range(2):
        if OPT['lvalu']: allgroups(vLs + 4 * qb, 'v_add_f32')
        a('v_rcp_f32 v%d, v%d' % (6 + 2 * qb, vLs + 4 * qb))
    a('s_nop 0')
    for qb in range(2): a('v_mov_b32 v%d, v%d' % (7 + 2 * qb, 6 + 2 * qb))
    for m in range(4):
        for qb in range(2):
            f = vQ + 16 * qb + 4 * m
            for h in range(2):
                t = vO + 8 * (2 * m + h) + 4 * qb
                for k in range(2): a('v_pk_mul_f32 %s, %s, %s' % (vr(t + 2 * k, 2), vr(t + 2 * k, 2), vr(6 + 2 * qb, 2)))
            for h in range(2):
                t = vO + 8 * (2 * m + h) + 4 * qb
                for k in range(2): a('v_cvt_pk_bf16_f32 v%d, v%d, v%d' % (f + 2 * h + k, t + 2 * k, t + 2 * k + 1))
            a('buffer_store_dwordx4 %s, v%d, %s, s%d offen offset:%d sc1' % (vr(f, 4), vOoff, sr(SWS, 4), sT1 if qb else sT0, m * 1024))
    for m in range(4):
        for qb in range(2): a('ds_write_b128 v2, %s offset:%d' % (vr(vQ + 16 * qb + 4 * m, 4), qb * 4096 + m * 1024))
    for i in range(4):
        a('s_add_u32 s3, s%d, %d' % (sKg, i)); a('s_and_b32 s3, s3, 3'); a('s_lshl_b32 s3, s3, 13')
        a('v_add_u32 v%d, s3, v%d' % (vOaddr + i, vOoff))
    a('v_add_u32 v%d, 0x10000, v%d' % (vOaddr + 4, vOoff)); a('v_add_u32 v%d, 0x20000, v%d' % (vOaddr + 5, vOoff))
    SADDR = [vOoff, vOaddr + 4, vOaddr + 5]
    ACC = vS[0]
    STG = [None] + [(i, hf) for i in (1, 2, 3, 0) for hf in range(2)]
    OSLOT = [1, 0, 2, 3, 4, 1, 0, 2, 3]
    def op_parts(s_, mbase=0):
        slot = OSLOT[s_]
        reads = []; mf = []
        if s_ == 0: order = [(0, m, i, qb) for m in range(4) for i in range(4) for qb in range(2)]
        else:
            i, hf = STG[s_]
            order = [(1 + 4 * hf + u, m, i, qb) for u in range(4 - hf) for m in range(4) for qb in range(2)]
        for n, (p, m, i, qb) in enumerate(order):
            buf = POOL[n & 7]
            if s_ == 0: ad, off = vOaddr + i, 32768
            else: ad, off = SADDR[slot >> 1], (slot & 1) * 32768 + ((p - 1) & 3) * 8192
            reads.append(dict(t='ds_read_b128 %s, v%d offset:%d' % (vr(buf, 4), ad, off + qb * 4096 + m * 1024), first=mbase + 2 * n, free=mbase + 2 * n - 15))
            for nb in range(2):
                acc = vr(ACC + 16 * i + 8 * qb + 4 * nb, 4)
                mf.append(dict(t='%s %s, %s, %s, %s' % (MFMA, acc, ar(32 * p + 8 * m + 4 * nb, 4), vr(buf, 4), '0' if (p == 0 and m == 0) else acc), uses=[n]))
        return reads, mf
    def dma_o(s_):
        i, hf = STG[s_]
        out = ['s_add_u32 s3, s%d, %d' % (sKg, i), 's_and_b32 s3, s3, 3', 's_lshl_b32 s3, s3, 18', 's_add_u32 s%d, s3, s%d' % (sT0, sHd + hf),
               's_add_u32 m0, s5, %d' % (OSLOT[s_] * 32768), 's_add_u32 s%d, s%d, 4096' % (sT1, sT0)]
        S_ = SWS2 if hf else SWS
        for m in range(4): out.append('buffer_load_dwordx4 v%d, %s, s%d offen offset:%d sc1 lds' % (vOoff, sr(S_, 4), sT0, m * 1024))
        out += ['s_add_u32 m0, m0, 4096', 's_nop 0']
        for m in range(4): out.append('buffer_load_dwordx4 v%d, %s, s%d offen offset:%d sc1 lds' % (vOoff, sr(S_, 4), sT1, m * 1024))
        return out
    def signal(sF, vown, vpoll, cnt):
        return ['v_mov_b32 v38, 1', 's_mov_b64 exec, 1',
                'buffer_store_dword v38, v%d, %s, s%d offen sc1' % (vown, sr(SWS, 4), sF),
                's_mov_b64 exec, %d' % ((1 << cnt) - 2),
                'buffer_load_dword v39, v%d, %s, s%d offen sc1' % (vpoll, sr(SWS, 4), sF),
                's_mov_b64 exec, %s' % sr(sEx, 2)]
    def poll(n, sF, vpoll, cnt):
        a('s_mov_b64 exec, %d' % ((1 << cnt) - 2))
        a('s_mov_b32 s%d, 0' % sSpin)
        a.label('L_poll%d' % n)
        a('s_waitcnt vmcnt(0)')
        a('v_cmp_ne_u32 vcc, 1, v39')
        a('s_cbranch_vccz L_poll%d_out' % n)
        a('s_add_u32 s%d, s%d, 1' % (sSpin, sSpin)); a('s_cmp_ge_u32 s%d, %d' % (sSpin, OPT['spin'])); a('s_cbranch_scc1 L_poll%d_out' % n)
        if OPT['psleep']: a('s_sleep %d' % OPT['psleep'])
        a('buffer_load_dword v39, v%d, %s, s%d offen sc1' % (vpoll, sr(SWS, 4), sF))
        a('s_branch L_poll%d' % n)
        a.label('L_poll%d_out' % n)
        a('s_mov_b64 exec, %s' % sr(sEx, 2))
    a('v_add_u32 v3, s%d, v1' % sJ); a('v_and_b32 v3, 7, v3'); a('v_lshlrev_b32 v3, 2, v3')
    a('v_add_u32 v4, s%d, v1' % sKg); a('v_and_b32 v4, 3, v4'); a('v_lshlrev_b32 v4, 2, v4')
    sHd, SWS2 = 36, 40
    a('s_lshl_b32 s3, s%d, 20' % sB); a('s_lshl_b32 s4, s%d, 16' % sKg); a('s_add_u32 s7, s3, s4')
    for hf in range(2):
        a('s_add_u32 s3, s%d, s%d' % (sJ, sWave)); a('s_add_u32 s3, s3, %d' % (1 + 4 * hf)); a('s_and_b32 s3, s3, 7'); a('s_lshl_b32 s3, s3, 13')
        a('s_add_u32 s%d, s3, s7' % (sHd + hf))
    srd(SWS2, 94, 95, None, None)
    a('s_cmp_eq_u32 s%d, 3' % sWave); a('s_cselect_b32 s%d, 0, 0x2000000' % (SWS2 + 2))
    a('s_lshl_b32 s3, s%d, 3' % sB); a('s_add_u32 s3, s3, s%d' % sJ); a('s_lshl_b32 s3, s3, 18'); a('s_add_u32 s3, s3, s%d' % sLdsW)
    a('s_add_u32 s%d, s3, 0x%x' % (sPb, WS_P))
    a('s_lshl_b32 s6, s%d, 14' % sKg); a('s_add_u32 s6, s6, s%d' % sPb)
    for x in ['s_waitcnt vmcnt(0)', 's_mov_b32 s%d, 0' % sSpin, 'L_init:', 'v_readfirstlane_b32 s3, v38', 's_add_u32 s%d, s%d, 1' % (sSpin, sSpin),
              's_cmp_ge_u32 s3, 256', 's_cbranch_scc1 L_init_ok', 's_cmp_ge_u32 s%d, %d' % (sSpin, OPT['spin']), 's_cbranch_scc1 L_init_ok',
              'v_mov_b32 v39, 0', 'buffer_load_dword v38, v39, %s, 0 offen sc1' % sr(SDBG, 4), 's_waitcnt vmcnt(0)', 's_branch L_init', 'L_init_ok:'] + signal(sF1, 36, 3, 8): a(x)
    stamp(4)
    poll(1, sF1, 3, 8)
    a('s_waitcnt lgkmcnt(0)')
    a('s_barrier')
    stamp(5)
    r, _ = op_parts(0)
    emit_reads(r[:NPK])
    for k in range(1, OPT['odep']):
        for x in dma_o(k): a(x)
    def send(i):
        out = ['s_add_u32 s3, s%d, %d' % (sKg, i), 's_and_b32 s3, s3, 3', 's_lshl_b32 s3, s3, 16', 's_add_u32 s%d, s3, s6' % sT2]
        for g in range(4):
            out.append('buffer_store_dwordx4 %s, v%d, %s, s%d offen offset:%d sc1' % (vr(ACC + 16 * i + 4 * g, 4), vOoff, sr(SWS, 4), sT2, g * 1024))
        return out
    for s_ in range(9):
        r, m = op_parts(s_)
        n = len(m)
        fill = {}
        g = 0
        if s_ in (3, 5, 7): g = spread(fill, send(STG[s_ - 1][0]), 3, 2)
        if s_ < 8:
            rn, _ = op_parts(s_ + 1, n)
            D = OPT['odep']
            if s_ + D <= 8:
                g = spread(fill, dma_o(s_ + D), g, 3); assert g - 3 < n - LA, (s_, g)
            sched(a, m, r + rn[:NPK], LA, npre=NPK, fill=fill, events={len(r): ['s_waitcnt vmcnt(%d)' % (8 * (min(8, s_ + D) - s_ - 1)), 's_barrier']}, evrange=(n - LA, n - 1), pair=4)
        else:
            fill[1] = ['L_sig2:'] + signal(sF2, 37, 4, 4)
            sched(a, m, r, LA, npre=NPK, fill=fill, pair=4)
    stamp(6)
    stamp(7)
    poll(2, sF2, 4, 4)
    stamp(8)
    a('s_lshl_b32 s4, s%d, 16' % sKg); a('s_add_u32 s4, s4, s%d' % sPb)
    for i in range(1, 4):
        a('s_add_u32 s3, s%d, %d' % (sKg, i)); a('s_and_b32 s3, s3, 3'); a('s_lshl_b32 s3, s3, 14'); a('s_add_u32 s%d, s3, s4' % sT0)
        for g in range(4):
            a('buffer_load_dwordx4 %s, v%d, %s, s%d offen offset:%d sc1' % (vr(vO + 16 * i + 4 * g, 4), vOoff, sr(SWS, 4), sT0, g * 1024))
    a('v_and_b32 v2, 15, v1'); a('v_lshrrev_b32 v3, 4, v1'); a('v_lshlrev_b32 v2, 11, v2'); a('v_lshl_add_u32 v2, v3, 4, v2')
    a('s_lshl_b32 s3, s%d, 18' % sB); a('s_lshl_b32 s4, s%d, 16' % sKg); a('s_add_u32 s3, s3, s4')
    a('s_cmp_lt_u32 s%d, 2' % sWave); a('s_cselect_b32 s4, s%d, s%d' % (sPA, sPB))
    a('s_add_u32 s3, s3, s4'); a('s_lshl_b32 s4, s%d, 6' % sWave); a('s_add_u32 s3, s3, s4'); a('s_add_u32 s4, s3, 0x8000')
    for i in range(1, 4):
        a('s_waitcnt vmcnt(%d)' % (4 * (3 - i)))
        for r in range(16): a('v_add_f32 v%d, v%d, v%d' % (ACC + r, ACC + r, vO + 16 * i + r))
    for r in range(0, 16, 2): a('v_cvt_pk_bf16_f32 v%d, v%d, v%d' % (vQ + r // 2, ACC + r, ACC + r + 1))
    a('buffer_store_dwordx4 %s, v2, %s, s3 offen' % (vr(vQ, 4), sr(SOUT, 4)))
    a('buffer_store_dwordx4 %s, v2, %s, s4 offen' % (vr(vQ + 4, 4), sr(SOUT, 4)))
    if OPT['stamps']:
        a('s_waitcnt vmcnt(0)'); stamp(9)
    a.label('L_end')
    a('s_endpgm')
    for lab, S in rare:
        a.label(lab)
        a('s_nop 15')
        for qb in range(2):
            d, al = vDelta + qb, vAlpha + qb
            rowmax(S, qb, d)
            a('v_max_f32 v%d, 0, v%d' % (d, d))
            a('v_sub_f32 v%d, 0, v%d' % (vTmp, d))
            a('v_exp_f32 v%d, v%d' % (al, vTmp))
            for j in range(16): a('v_sub_f32 v%d, v%d, v%d' % (S + 16 * qb + j, S + 16 * qb + j, d))
            for j in range(4): a('v_sub_f32 v%d, v%d, v%d' % (vNegM + 4 * qb + j, vNegM + 4 * qb + j, d))
            for j in range(4): a('v_mul_f32 v%d, v%d, v%d' % (vLs + 4 * qb + j, vLs + 4 * qb + j, al))
            for db in range(8):
                for j in range(4): a('v_mul_f32 v%d, v%d, v%d' % (vO + 8 * db + 4 * qb + j, vO + 8 * db + 4 * qb + j, al))
        a('s_nop 3')
        a('s_branch %s_ret' % lab)
    return a

def padit(a, l0, l1, n, every):
    i0 = [k for k, i in enumerate(a.ins) if i.text.startswith(l0)][0]
    i1 = [k for k, i in enumerate(a.ins) if i.text.startswith(l1)][0]
    keep = []; c = 0
    for i in a.ins[i0:i1]:
        if i.kind == 'mfma':
            c += 1
            if c % every == 0: keep.append(Ins('s_nop %d' % (n - 1)))
        keep.append(i)
    a.ins[i0:i1] = keep

def main():
    a = gen()
    if OPT['pad']: padit(a, 'L_at:', 'L_at_last:', OPT['pad'], 2)
    if OPT['qpad']: padit(a, 'L_qp:', 'L_at:', OPT['qpad'], 2)
    if OPT['opad']: padit(a, 'L_poll1_out:', 'L_poll2:', OPT['opad'], 2)
    import io, contextlib
    buf = io.StringIO()
    with contextlib.redirect_stdout(buf):
        bad = check_program(a)
    sys.stderr.write(buf.getvalue())
    for b in bad: sys.stderr.write('BRANCH HAZARD %s\n' % (b,))
    print('; @launch grid=(256,1,1) block=(256,1,1) lds=163840')
    print('.amdgcn_target "amdgcn-amd-amdhsa--gfx950"\n.text')
    print(a.text())
    print('''.section .rodata,"a"
.p2align 6
.amdhsa_kernel %s
  .amdhsa_next_free_vgpr 512
  .amdhsa_next_free_sgpr 100
  .amdhsa_accum_offset 256
  .amdhsa_group_segment_fixed_size 0
  .amdhsa_kernarg_size 64
  .amdhsa_user_sgpr_count 2
  .amdhsa_user_sgpr_kernarg_segment_ptr 1
  .amdhsa_system_sgpr_workgroup_id_x 1
.end_amdhsa_kernel''' % NAME)
main()
```

```python
import sys, math, struct
from asmlib import *

OPT = dict(kpol='nt', vpol='nt', xwpol='-', wopol='-', stamps=0, la=14, qla=14, spin=0x8000, nokv=0, psleep=1, sigat=27,
           stagb=5, nowo=0, atm=0, pair=6, kv0at=9, dwg=0, lvalu=0, mx0=44, qpm=0, odep=2, ctouch=0)
for a_ in sys.argv[1:]:
    k, v = a_.split('=')
    assert k in OPT, k
    OPT[k] = v if not v.lstrip('-').isdigit() else int(v)
def pol(k): return str(OPT[k]).replace('+', ' ').replace('-', '')
def f32bits(x): return struct.unpack('<I', struct.pack('<f', x))[0]
QSCALE = f32bits(math.log2(math.e) / math.sqrt(128.0))
THRESH = f32bits(8.0)
def vr(b, n=1): return 'v%d' % b if n == 1 else 'v[%d:%d]' % (b, b + n - 1)
def ar(b, n=1): return 'a%d' % b if n == 1 else 'a[%d:%d]' % (b, b + n - 1)
def sr(b, n=1): return 's%d' % b if n == 1 else 's[%d:%d]' % (b, b + n - 1)
MFMA = 'v_mfma_f32_16x16x32_bf16'
NAME = 'standalone__mha_block_cached__near_ridge_kernel'

def is_valu(x): return x.startswith('v_') and not x.startswith('v_mfma')
def cost(x):
    if x.endswith(':'): return 0
    return 2 if x.startswith('v_exp') else 1

def sched(a, mf, reads, la, npre=0, fill=None, events=None, pair=2, evrange=None, maxrd=2):
    fill = fill or {}; events = events or {}
    st = dict(done=0, nxt=npre)
    def issue(cur, lim):
        n = 0
        while st['nxt'] < len(reads) and n < lim:
            k = st['nxt']; rd = reads[k]
            if rd['first'] > cur + la or rd.get('free', -1) > cur or k - st['done'] >= 15: break
            if k in events:
                if evrange is not None: assert evrange[0] <= cur <= evrange[1], ('event gap', cur, evrange)
                for x in events[k]: a(x)
            a(rd['t']); st['nxt'] += 1; n += 1
    def wait_for(i):
        us = mf[i]['uses']
        assert all(u < st['nxt'] for u in us), ('read not issued', i, mf[i], st)
        if us and max(us) + 1 > st['done']:
            pos = max(us) + 1
            for j in range(i + 1, min(i + pair, len(mf))):
                if mf[j]['uses'] and max(mf[j]['uses']) < st['nxt']: pos = max(pos, max(mf[j]['uses']) + 1)
            a('s_waitcnt lgkmcnt(%d)' % (st['nxt'] - pos)); st['done'] = pos
    def fillers(lst, cur, lim):
        if any(x.endswith(':') for x in lst):
            issue(cur, lim)
            for x in lst: a(x)
            return
        evgap = st['nxt'] in events
        if evgap: issue(cur, lim)
        for x in lst:
            if not is_valu(x): a(x)
        if not evgap: issue(cur, lim)
        for x in lst:
            if x.startswith('v_exp'): a(x)
        for x in lst:
            if is_valu(x) and not x.startswith('v_exp'): a(x)
    fillers(fill.get(-1, []), -1, 99)
    wait_for(0)
    for i, m in enumerate(mf):
        a(m['t'])
        if i + 1 < len(mf):
            if not all(u < st['nxt'] for u in mf[i + 1]['uses']): issue(i, 99)
            wait_for(i + 1)
        fillers(fill.get(i, []), i, maxrd if i + 1 < len(mf) else 99)
    assert st['nxt'] == len(reads), (st, len(reads))

def bsched(a, mf, reads, la, npre=0, events=None, fixed=None, streams=(), pair=2, evrange=None, cap=3):
    fixed = {k: list(v) for k, v in (fixed or {}).items()}
    n = len(mf)
    t = Asm(); sched(t, mf, reads, la, npre=npre, fill=fixed, events=events, pair=pair)
    load = {g: 0 for g in range(-1, n)}; g = -1
    for i in t.ins:
        if i.kind == 'mfma': g += 1
        elif i.kind != 'none': load[g] += cost(i.text)
    load[n - 1] += load[-1] + 1
    total = sum(load[g] for g in range(n)) + sum(cost(o[0]) for s_ in streams for o in s_)
    fill = {g: list(fixed.get(g, [])) for g in range(-1, n)}
    pos = [0] * len(streams); done = 0
    for g in range(n):
        done += load[g]; used = load[g]
        target = total * (g + 1.0) / n + 1.0
        while True:
            cand = sorted((streams[k][pos[k]][2], k) for k in range(len(streams)) if pos[k] < len(streams[k]) and streams[k][pos[k]][1] <= g)
            ok = False
            for dl, k in cand:
                c = cost(streams[k][pos[k]][0])
                if dl <= g or used + c <= 2 or (used + c <= cap and done + c <= target):
                    fill[g].append(streams[k][pos[k]][0]); used += c; done += c; pos[k] += 1; ok = True
                    break
            if not ok: break
    assert all(pos[k] == len(streams[k]) for k in range(len(streams))), pos
    sched(a, mf, reads, la, npre=npre, fill=fill, events=events, pair=pair, evrange=evrange)

STAMP_OFF = 496 * 1024 * 1024
NST = 24

def gen():
    a = Asm()
    a.raw('.globl %s\n.p2align 8\n.type %s,@function' % (NAME, NAME)); a.label(NAME)
    SX, SW, SK, SV, SWS, SWO, SOUT, SDBG, SST = 8, 12, 16, 20, 24, 56, 60, 64, 68
    sWave, sLdsW, sAoff, sBoff, sCnt, sH, sB, sT0, sT1, sOb, sKoff, sVoff, sThr = 29, 30, 31, 32, 33, 34, 35, 46, 47, 48, 49, 50, 51
    sQs, sJ, sKg, sPA, sPB = 52, 54, 55, 44, 45
    sWoP, sWoB, sF1, sF2, sSpin, sEx, sT2, sPb, sBlk = 72, 73, 74, 75, 76, 78, 80, 81, 83
    vKoff, vVoff, vWoOff, vOoff = 10, 12, 14, 15
    vKaddr, vTaddr, vWoAddr = 16, 20, 28
    vMax, vTmp, vTmp2, vDelta, vAlpha = 29, 30, 31, 32, 34
    vQ, vNegM, vLs, vS, vO = 40, 72, 80, [88, 120], 152
    POOL = [216 + 4 * i for i in range(8)]
    vOnes = 248
    vXoff, vWoff, vXaddr, vTw = vQ, vQ + 4, vQ + 22, vQ + 24
    vOaddr = vKaddr
    AUX, BB = 65536, 98304
    vs = lambda t: (t + 3) & 3
    WS_P, WS_F1, WS_F2 = 0x800000, 0x1800000, 0x1810000

    def stamp(idx, dyn=None):
        if not OPT['stamps']: return
        if OPT['stamps'] == 5 and idx not in (0, 9):
            if idx == 11: a.label('L_st11')
            return
        lab = 'L_st%d' % idx
        if OPT['stamps'] == 3:
            slot = {0: 0, 10: 1, 11: 2, 1: 3, 2: 4, 3: 5, 4: 6, 5: 7, 6: 8, 7: 9, 8: 10, 9: 11, 12: 12}[idx]
            a('s_cmp_lg_u32 s%d, 0' % sWave); a('s_cbranch_scc1 %s' % lab)
            a('s_cmp_lg_u32 s2, %d' % OPT['dwg']); a('s_cbranch_scc1 %s' % lab)
            if dyn is not None:
                a('s_cmp_gt_u32 s%d, 2' % dyn); a('s_cbranch_scc1 %s' % lab)
            if idx == 7: a('s_mov_b32 s84, s96')
            else:
                a('s_memrealtime s[84:85]'); a('s_waitcnt lgkmcnt(0)')
            a('v_mov_b32 v252, s84'); a('v_mov_b32 v254, 0')
            a('s_mov_b32 s86, %d' % (4 + 4 * slot))
            if dyn is not None:
                a('s_lshl_b32 s87, s%d, 2' % dyn); a('s_add_u32 s86, s86, s87')
            a('buffer_store_dword v252, v254, %s, s86 offen sc1' % sr(SDBG, 4))
            a.label(lab)
            return
        a('s_cmp_lg_u32 s%d, 0' % sWave); a('s_cbranch_scc1 %s' % lab)
        a('s_memtime s[84:85]' if OPT['stamps'] == 2 else 's_memrealtime s[84:85]')
        if OPT['stamps'] == 4:
            a('s_memtime s[86:87]'); a('s_waitcnt lgkmcnt(0)'); a('s_mov_b32 s85, s86')
        a('s_waitcnt lgkmcnt(0)')
        a('v_mov_b32 v252, s84'); a('v_mov_b32 v253, s85'); a('v_mov_b32 v254, 0')
        a('s_mul_i32 s86, s2, %d' % (NST * 8)); a('s_add_u32 s86, s86, %d' % (idx * 8))
        if dyn is not None:
            a('s_lshl_b32 s87, s%d, 3' % dyn); a('s_add_u32 s86, s86, s87')
        a('buffer_store_dwordx2 v[252:253], v254, %s, s86 offen' % sr(SST, 4))
        a.label(lab)
    def srd(d, lo, hi, off, size):
        if off is None:
            a('s_mov_b32 s%d, s%d' % (d, lo)); a('s_mov_b32 s%d, s%d' % (d + 1, hi))
        else:
            a('s_add_u32 s%d, s%d, %s' % (d, lo, off)); a('s_addc_u32 s%d, s%d, 0' % (d + 1, hi))
        if size is not None: a('s_mov_b32 s%d, %s' % (d + 2, size))
        a('s_mov_b32 s%d, 0x00020000' % (d + 3))

    if OPT['stamps'] == 3: a('s_memrealtime s[96:97]')
    a('s_cmp_ge_u32 s2, 256')
    a('s_cbranch_scc1 L_end')
    a('s_load_dwordx8 s[36:43], s[0:1], 0')
    a('s_load_dwordx8 s[88:95], s[0:1], 32')
    if OPT['ctouch']:
        a('s_getpc_b64 s[4:5]')
        a('s_and_b32 s4, s4, 0xffffff00')
        a('s_lshr_b32 s3, s2, 3'); a('s_lshl_b32 s3, s3, 10'); a('s_add_u32 s4, s4, s3'); a('s_addc_u32 s5, s5, 0')
        a('v_and_b32 v2, 7, v0'); a('v_lshlrev_b32 v2, 7, v2'); a('v_mov_b32 v3, s5'); a('v_add_co_u32 v2, vcc, s4, v2'); a('v_addc_co_u32 v3, vcc, 0, v3, vcc')
        a('global_load_dword v255, v[2:3], off')
    a('v_lshrrev_b32 v2, 6, v0')
    a('v_and_b32 v1, 63, v0')
    a('v_readfirstlane_b32 s%d, v2' % sWave)
    a('s_and_b32 s%d, s2, 3' % sKg); a('s_lshl_b32 s3, s%d, 3' % sKg); a('s_lshr_b32 s4, s2, 3'); a('s_and_b32 s%d, s4, 7' % sJ)
    a('s_add_u32 s%d, s3, s%d' % (sH, sJ)); a('s_and_b32 s3, s2, 4'); a('s_lshr_b32 s4, s4, 3'); a('s_add_u32 s%d, s3, s4' % sB)
    a('s_lshl_b32 s%d, s%d, 12' % (sLdsW, sWave))
    a('v_lshrrev_b32 v2, 4, v1')
    a('v_and_b32 v3, 15, v1')
    a('v_lshrrev_b32 v4, 3, v1')
    a('v_and_b32 v5, 7, v1')
    a('v_lshlrev_b32 v6, 1, v2'); a('v_xor_b32 v6, v6, v3'); a('v_lshlrev_b32 v6, 4, v6')
    a('v_xor_b32 v9, 0x80, v6')
    a('s_lshl_b32 s3, s%d, 17' % sWave)
    a('v_lshl_add_u32 v7, v2, 13, v6'); a('v_add_u32 v%d, s3, v7' % vWoff)
    a('v_add_u32 v%d, %d, v%d' % (vWoff + 1, 32768 - 1024, vWoff))
    a('v_lshl_add_u32 v7, v2, 13, v9'); a('v_add_u32 v7, s3, v7')
    a('v_add_u32 v%d, %d, v7' % (vWoff + 2, 2 * (32768 - 1024))); a('v_add_u32 v%d, %d, v7' % (vWoff + 3, 3 * (32768 - 1024)))
    a('s_lshl_b32 s3, s%d, 16' % sWave)
    a('v_xor_b32 v7, v2, v5'); a('v_xor_b32 v8, 4, v7')
    a('v_lshlrev_b32 v7, 4, v7'); a('v_lshlrev_b32 v8, 4, v8')
    a('v_lshl_add_u32 v7, v4, 11, v7'); a('v_lshl_add_u32 v8, v4, 11, v8')
    a('v_add_u32 v%d, s3, v7' % vXoff); a('v_add_u32 v8, s3, v8')
    a('v_add_u32 v%d, %d, v8' % (vXoff + 1, 1 * (16384 - 1024)))
    a('v_add_u32 v%d, %d, v%d' % (vXoff + 2, 2 * (16384 - 1024), vXoff))
    a('v_add_u32 v%d, %d, v8' % (vXoff + 3, 3 * (16384 - 1024)))
    a('s_lshl_b32 s3, s%d, 1' % sH); a('s_mul_i32 s4, s%d, %d' % (sB, OPT['stagb'])); a('s_add_u32 s3, s3, s4'); a('s_and_b32 s3, s3, 15')
    a('s_lshl_b32 s%d, s3, 7' % sAoff)
    a('s_lshl_b32 s5, s%d, 18' % sB); a('s_lshl_b32 s6, s%d, 8' % sH); a('s_sub_u32 s%d, 0x800000, s6' % (SW + 2))
    a('s_waitcnt lgkmcnt(0)')
    srd(SX, 36, 37, 's5', '0x40000'); srd(SW, 42, 43, 's6', None)

    XST = [16384, 32768, 49152, 65536]
    WST = [BB, BB + 16384, BB + 32768, BB - 16384]
    def dma_xw(st):
        out = ['s_add_u32 m0, s%d, %d' % (sLdsW, XST[st]), 's_lshl_b32 s%d, s%d, 12' % (sBoff, sAoff)]
        for i in range(4):
            out.append('buffer_load_dwordx4 v%d, %s, s%d offen offset:%d %s lds' % (vXoff + i, sr(SX, 4), sAoff, i * 1024, pol('xwpol')))
        out += ['s_add_u32 m0, s%d, %d' % (sLdsW, WST[st]), 's_add_u32 s%d, s%d, 128' % (sAoff, sAoff)]
        for i in range(4):
            out.append('buffer_load_dwordx4 v%d, %s, s%d offen offset:%d %s lds' % (vWoff + i, sr(SW, 4), sBoff, i * 1024, pol('xwpol')))
            if i == 0: out.append('s_and_b32 s%d, s%d, 0x7ff' % (sAoff, sAoff))
        return out
    def dma_kv(t, S, so, vo, base, p):
        out = ['s_add_u32 m0, s%d, %d' % (sLdsW, base), 's_cmp_lt_u32 s%d, 0x80000' % so, 's_cselect_b32 s%d, %s, 0' % (S + 2, '0' if OPT['nokv'] else '0x80000')]
        for i in range(4):
            out.append('buffer_load_dwordx4 v%d, %s, s%d offen offset:%d %s lds' % (vo + (i >> 1), sr(S, 4), so, i * 1024, pol(p)))
        out.append('s_add_u32 s%d, s%d, 0x4000' % (so, so))
        return out
    dma_k = lambda t: dma_kv(t, SK, sKoff, vKoff, (t & 3) * 16384, 'kpol')
    dma_v = lambda t: dma_kv(t, SV, sVoff, vVoff, BB + vs(t) * 16384, 'vpol')
    def dma_wo():
        out = ['s_lshl_b32 s%d, s%d, 18' % (sT2, sWoP), 's_add_u32 s%d, s%d, s%d' % (sT2, sT2, sWoB),
               's_lshl_b32 m0, s%d, 1' % sLdsW, 's_add_u32 m0, m0, %d' % AUX, 's_add_u32 s%d, s%d, 1' % (sWoP, sWoP)]
        for i in range(8):
            if i == 4: out.append('s_add_u32 m0, m0, 4096')
            if i: out.append('s_add_u32 s%d, s%d, %d' % (sT2, sT2, 8192 - 1024 + (4096 if i == 4 else 0)))
            out.append('buffer_load_dwordx4 v%d, %s, s%d offen offset:%d %s lds' % (vWoOff, sr(SWO, 4), sT2, (i & 3) * 1024, pol('wopol')))
        return out
    def groups(lst):
        gs = [[]]
        for x in lst:
            gs[-1].append(x)
            if x.startswith('buffer'): gs.append([])
        if gs[-1]: gs[-2] += gs[-1]
        return gs[:-1]
    def spread(fixed, lst, g0, step, per=2):
        g = g0
        for grp in groups(lst):
            pre = grp[:[x.startswith('buffer') for x in grp].index(True)]
            rest = grp[len(pre):]
            while len(pre) > 1:
                fixed.setdefault(g, []).extend(pre[:2]); pre = pre[2:]; g += 1
            fixed.setdefault(g, []).extend(pre + rest); g += step
        return g

    for x in dma_xw(0): a(x)
    a('s_lshl_b32 s3, s%d, 5' % sB); a('s_add_u32 s3, s3, s%d' % sH); a('s_lshl_b32 s3, s3, 19')
    srd(SK, 38, 39, 's3', '0x80000'); srd(SV, 40, 41, 's3', '0x80000')
    srd(SWS, 94, 95, None, '0x2000000'); srd(SWO, 88, 89, None, '0' if OPT['nowo'] else '0x800000'); srd(SOUT, 90, 91, None, '0x200000'); srd(SDBG, 92, 93, None, '256')
    if OPT['stamps']: srd(SST, 94, 95, str(STAMP_OFF), '0x100000')
    stamp(0)
    a('s_lshl_b32 s3, s%d, 2' % sB); a('s_add_u32 s3, s3, s%d' % sKg); a('s_lshl_b32 s3, s3, 10'); a('s_lshl_b32 s4, s%d, 8' % sWave)
    a('s_add_u32 s3, s3, s4'); a('s_add_u32 s%d, s3, 0x%x' % (sF1, WS_F1))
    a('s_lshl_b32 s3, s%d, 3' % sB); a('s_add_u32 s3, s3, s%d' % sJ); a('s_lshl_b32 s3, s3, 10')
    a('s_add_u32 s3, s3, s4'); a('s_add_u32 s%d, s3, 0x%x' % (sF2, WS_F2))
    a('s_lshl_b32 s3, s%d, 2' % sJ); a('s_lshl_b32 s4, s%d, 2' % sKg)
    a('v_mov_b32 v36, s3'); a('v_mov_b32 v37, s4'); a('v_mov_b32 v38, 0'); a('v_mov_b32 v39, 0')
    a('s_mov_b64 %s, exec' % sr(sEx, 2)); a('s_mov_b64 exec, 1')
    a('buffer_atomic_swap v38, v36, %s, s%d offen sc0 sc1' % (sr(SWS, 4), sF1))
    a('buffer_atomic_swap v39, v37, %s, s%d offen sc0 sc1' % (sr(SWS, 4), sF2))
    a('s_mov_b64 exec, %s' % sr(sEx, 2))
    a('s_mov_b32 s%d, 0' % sKoff); a('s_mov_b32 s%d, 0' % sVoff); a('s_mov_b32 s%d, 0' % sWoP)
    a('s_lshl_b32 s3, s%d, 21' % sKg); a('s_lshl_b32 s4, s%d, 16' % sWave); a('s_add_u32 s%d, s3, s4' % sWoB)
    a('s_lshr_b32 s3, s%d, 1' % sJ); a('s_and_b32 s4, s%d, 1' % sJ); a('s_lshl_b32 s4, s4, 2'); a('s_add_u32 s3, s3, s4')
    a('s_lshl_b32 s%d, s3, 7' % sPA)
    a('s_add_u32 s3, s3, 2'); a('s_and_b32 s3, s3, 7'); a('s_add_u32 s3, s3, 7'); a('s_lshl_b32 s%d, s3, 7' % sPB)
    a('v_lshl_add_u32 v7, v2, 8, v6'); a('v_add_u32 v%d, s%d, v7' % (vVoff, sLdsW))
    a('v_lshl_add_u32 v7, v2, 8, v9'); a('v_add_u32 v%d, s%d, v7' % (vVoff + 1, sLdsW))
    a('v_lshlrev_b32 v6, 2, v2'); a('v_xor_b32 v6, v6, v3'); a('v_lshlrev_b32 v6, 4, v6')
    a('v_lshl_add_u32 v%d, v2, 11, v6' % vWoOff)
    a('v_mov_b32 v7, s%d' % sPA); a('v_mov_b32 v8, s%d' % sPB); a('v_cmp_gt_u32 vcc, 128, v6'); a('s_nop 1')
    a('v_cndmask_b32 v7, v8, v7, vcc'); a('v_add_u32 v%d, v7, v%d' % (vWoOff, vWoOff))
    a('s_lshl_b32 s3, s%d, 3' % sWave); a('s_and_b32 s3, s3, 8')
    a('v_xor_b32 v6, v2, v3'); a('v_xor_b32 v6, s3, v6')
    for i in range(2):
        a('v_xor_b32 v7, %d, v6' % (4 * i)); a('v_lshlrev_b32 v7, 4, v7'); a('v_lshl_add_u32 v7, v2, 8, v7')
        a('v_add_u32 v%d, s%d, v7' % (vKoff + i, sLdsW))
    a('v_and_b32 v4, 12, v3'); a('v_and_b32 v5, 3, v3'); a('v_lshl_add_u32 v4, v4, 1, v5')
    a('v_and_b32 v5, 1, v2'); a('v_lshlrev_b32 v5, 1, v5'); a('v_lshrrev_b32 v6, 1, v2'); a('v_or_b32 v5, v5, v6'); a('v_xor_b32 v5, v5, v3')
    for m in range(4):
        a('v_xor_b32 v6, %d, v5' % (4 * m)); a('v_lshlrev_b32 v6, 4, v6'); a('v_lshl_add_u32 v%d, v4, 8, v6' % (vKaddr + m))
    a('v_lshrrev_b32 v5, 1, v3'); a('v_xor_b32 v5, v5, v2')
    for ks in range(2):
        a('v_xor_b32 v6, %d, v5' % (4 * ks)); a('v_lshlrev_b32 v6, 4, v6'); a('v_lshl_add_u32 v6, v3, 7, v6')
        a('v_add_u32 v6, s%d, v6' % sLdsW); a('v_add_u32 v%d, 0x4000, v6' % (vXaddr + ks))
    a('v_lshrrev_b32 v4, 2, v3')
    a('v_lshl_add_u32 v5, v2, 3, v4'); a('v_lshlrev_b32 v5, 8, v5')
    a('v_and_b32 v6, 1, v1'); a('v_lshl_add_u32 v5, v6, 3, v5'); a('v_add_u32 v5, %d, v5' % BB)
    a('v_and_b32 v6, 1, v2'); a('v_lshl_add_u32 v6, v6, 2, v4'); a('v_lshlrev_b32 v6, 1, v6')
    a('v_lshrrev_b32 v7, 1, v1'); a('v_and_b32 v7, 1, v7'); a('v_or_b32 v6, v6, v7')
    for db in range(8):
        a('v_xor_b32 v7, %d, v6' % (2 * db)); a('v_lshl_add_u32 v%d, v7, 4, v5' % (vTaddr + db))
        a('v_add_u32 v%d, -16384, v%d' % (vTw + db, vTaddr + db))
    a('v_lshl_add_u32 v5, v2, 2, v4'); a('v_lshlrev_b32 v5, 8, v5'); a('v_add_u32 v5, 0x%x, v5' % AUX)
    a('s_lshl_b32 s3, s%d, 2' % sWave)
    a('v_xor_b32 v6, s3, v3')
    a('v_lshl_add_u32 v%d, v6, 4, v5' % vWoAddr)
    a('v_lshlrev_b32 v%d, 4, v1' % vOoff)
    for i in range(64): a('v_mov_b32 v%d, 0' % (vS[0] + i))
    a('s_mov_b32 s%d, 0x%08x' % (sQs, QSCALE)); a('s_mov_b32 s%d, 0x%08x' % (sQs + 1, QSCALE)); a('s_mov_b32 s%d, 0x%08x' % (sThr, THRESH))
    for k in range(4): a('v_mov_b32 v%d, 0x3f803f80' % (vOnes + k))
    a('s_mov_b32 s%d, 0' % sCnt)

    LA = OPT['la']
    def tr2(buf, addr, off, first, free):
        return [dict(t='ds_read_b64_tr_b16 %s, v%d offset:%d' % (vr(buf, 2), addr, off), first=first, free=free),
                dict(t='ds_read_b64_tr_b16 %s, v%d offset:%d' % (vr(buf + 2, 2), addr, off + 1024), first=first + 1, free=free)]
    def qk_parts(slot, S, first, mbase=0, rbase=0):
        reads = []; mf = []
        for n in range(16):
            blk, m = n >> 2, n & 3; u, kb2 = blk >> 1, blk & 1
            buf = POOL[n & 7]
            reads.append(dict(t='ds_read_b128 %s, v%d offset:%d' % (vr(buf, 4), vKaddr + m, slot * 16384 + u * 8192 + kb2 * 1024), first=mbase + 2 * n, free=mbase + 2 * n - 15))
            for qb in range(2):
                acc = vr(S + 16 * qb + 4 * blk, 4)
                c = acc if m else ('0' if first else vr(vNegM + 4 * qb, 4))
                mf.append(dict(t='%s %s, %s, %s, %s' % (MFMA, acc, vr(buf, 4), vr(vQ + 8 * m + 4 * qb, 4), c), uses=[rbase + n]))
        return reads, mf
    def lsum(S, u, qb):
        return dict(t='%s %s, %s, %s, %s' % (MFMA, vr(vLs + 4 * qb, 4), vr(vOnes, 4), vr(S + 16 * qb + 8 * u, 4), vr(vLs + 4 * qb, 4)), uses=[])
    def pv_parts(t, S, mbase=0, rbase=0, prev=None):
        reads = []; mf = []; last = dict(prev or {})
        for n in range(16):
            u, db = n >> 3, n & 7
            buf = POOL[n & 7]
            i = mbase + len(mf)
            reads += tr2(buf, vTaddr + db, vs(t) * 16384 + u * 8192, i, last.get(n & 7, -1))
            for qb in range(2):
                acc = vr(vO + 8 * db + 4 * qb, 4)
                mf.append(dict(t='%s %s, %s, %s, %s' % (MFMA, acc, vr(buf, 4), vr(S + 16 * qb + 8 * u, 4), acc), uses=[rbase + 2 * n, rbase + 2 * n + 1]))
            last[n & 7] = i + 1
            if db in (2, 5) and not OPT['lvalu']: mf.append(lsum(S, u, 0 if db == 2 else 1))
        return reads, mf, last
    def softmax_ops(S):
        ops = []
        for u in range(2):
            for qb in range(2):
                b = S + 16 * qb + 8 * u
                for h4 in range(2):
                    q = b + 4 * h4
                    for j in range(4): ops.append(('v_exp_f32 v%d, v%d' % (q + j, q + j), u))
                    for j in range(2):
                        if OPT['lvalu']:
                            ops.append(('v_add_f32 v%d, v%d, v%d' % (vLs + 4 * qb, vLs + 4 * qb, q + 2 * j), u))
                            ops.append(('v_add_f32 v%d, v%d, v%d' % (vLs + 4 * qb, vLs + 4 * qb, q + 2 * j + 1), u))
                        ops.append(('v_cvt_pk_bf16_f32 v%d, v%d, v%d' % (b + 2 * h4 + j, q + 2 * j, q + 2 * j + 1), u))
        return ops
    def max_ops(S):
        regs = [(S + 16 * qb + 4 * blk + r, blk) for blk in range(4) for qb in range(2) for r in range(4)]
        ops = [('v_max3_f32 v%d, v%d, v%d, v%d' % (vMax, regs[0][0], regs[1][0], regs[2][0]), 0)]
        for j in range(3, 31, 2): ops.append(('v_max3_f32 v%d, v%d, v%d, v%d' % (vMax, vMax, regs[j][0], regs[j + 1][0]), regs[j + 1][1]))
        ops.append(('v_max_f32 v%d, v%d, v%d' % (vMax, vMax, regs[31][0]), 3))
        return ops
    def allgroups(v, op):
        for sw in ('v_permlane32_swap_b32', 'v_permlane16_swap_b32'):
            a('v_mov_b32 v%d, v%d' % (vTmp, v)); a('s_nop 1'); a('%s v%d, v%d' % (sw, v, vTmp)); a('s_nop 1'); a('%s v%d, v%d, v%d' % (op, v, v, vTmp))
    def rowmax(S, qb, d):
        b = S + 16 * qb
        a('v_max3_f32 v%d, v%d, v%d, v%d' % (d, b, b + 1, b + 2))
        for j in range(3, 15, 2): a('v_max3_f32 v%d, v%d, v%d, v%d' % (d, d, b + j, b + j + 1))
        a('v_max_f32 v%d, v%d, v%d' % (d, d, b + 15))
        allgroups(d, 'v_max_f32')
    def emit_reads(rs):
        for rd in rs: a(rd['t'])
    def npre_of(r, base, la): return min(13, len([x for x in r if x['first'] - base <= la - 1]))

    WP = [vO + 4 * i for i in range(16)]
    QLA = OPT['qla']
    def qp_reads(st, mbase=0, rbase=0, dbmajor=False):
        reads = []; mf = []; xi = {}
        XP = [vNegM + 4 * k for k in range(4)] if dbmajor else POOL[4 * (st & 1): 4 * (st & 1) + 4]
        order = [(ks, db) for db in range(8) for ks in range(2)] if dbmajor else [(ks, db) for ks in range(2) for db in range(8)]
        for n, (ks, db) in enumerate(order):
            i = mbase + 2 * n
            if ks not in xi:
                xi[ks] = rbase + len(reads)
                for qb in range(2):
                    reads.append(dict(t='ds_read_b128 %s, v%d offset:%d' % (vr(XP[2 * ks + qb], 4), vXaddr + ks, XST[st] - 16384 + qb * 2048), first=i))
            wi = rbase + len(reads)
            reads += tr2(WP[n], vTw + db, WST[st] - (BB - 16384) + ks * 8192, i, i - 31)
            for qb in range(2):
                acc = vr(vS[0] + 8 * db + 4 * qb, 4)
                mf.append(dict(t='%s %s, %s, %s, %s' % (MFMA, acc, vr(WP[n], 4), vr(XP[2 * ks + qb], 4), acc), uses=[wi, wi + 1, xi[ks], xi[ks] + 1]))
        return reads, mf
    gkv = lambda t: groups(dma_k(t) + dma_v(t))
    gxw = lambda c: groups(dma_xw(c & 3))
    def qp_body(c, early, late, tail=()):
        r0, mf = qp_reads(c & 3); r1, _ = qp_reads((c + 1) & 3, 32, dbmajor=(c == 14))
        fill = {}
        for k, g in enumerate(early): fill[4 * k] = list(g)
        for k, g in enumerate(late): fill[22 + 4 * k] = list(g)
        fill.setdefault(31, []); fill[31] += list(tail)
        ev = ['s_waitcnt vmcnt(8)', 's_barrier']
        k1 = OPT['kv0at'] + 1
        if c == k1 and c >= 12: ev = ['s_waitcnt vmcnt(16)', 's_barrier']
        elif c < 4 and k1 < 12 and c == (k1 & 3):
            ev = ['s_cmp_eq_u32 s%d, %d' % (sCnt, k1 >> 2), 's_cbranch_scc1 L_kvw', 's_waitcnt vmcnt(8)', 'L_kvw:', 's_waitcnt vmcnt(16)', 's_barrier']
        sched(a, mf, r0 + r1[:npre_of(r1, 32, QLA)], QLA, npre=npre_of(r0, 0, QLA), fill=fill, events={len(r0): ev}, evrange=(17, 22), pair=4)
    r0, _ = qp_reads(0)
    for g in groups(dma_xw(1)) + groups(dma_xw(2))[:3]:
        for x in g: a(x)
    a('s_waitcnt vmcnt(11)')
    a('s_barrier')
    stamp(10)
    emit_reads(r0[:npre_of(r0, 0, QLA)])
    a.label('L_qp')
    if OPT['stamps']:
        a('s_cmp_lg_u32 s%d, 2' % sCnt); a('s_cbranch_scc1 L_st11')
        stamp(11)
    for c in range(4):
        qp_body(c, gxw(c + 2)[3:], gxw(c + 3)[:3], ['s_add_u32 s%d, s%d, 1' % (sCnt, sCnt), 's_cmp_lt_u32 s%d, 3' % sCnt] if c == 3 else [])
        if c == 2:
            a('s_or_b32 s3, s%d, s%d' % (sWave, sCnt)); a('s_cbranch_scc1 L_noinit')
            a('v_mov_b32 v38, 1'); a('v_mov_b32 v39, 0')
            a('s_mov_b64 exec, 1')
            a('buffer_atomic_add v38, v39, %s, 0 offen sc1' % sr(SDBG, 4))
            a('s_mov_b64 exec, %s' % sr(sEx, 2))
            a.label('L_noinit')
        if c == OPT['kv0at'] & 3:
            a('s_cmp_lg_u32 s%d, %d' % (sCnt, (OPT['kv0at'] >> 2) + (1 if c == 3 else 0))); a('s_cbranch_scc1 L_nokv0')
            for x in dma_k(0) + dma_v(0): a(x)
            a('s_add_u32 m0, s%d, %d' % (sLdsW, XST[(c + 3) & 3]))
            a.label('L_nokv0')
            if c == 3: a('s_cmp_lt_u32 s%d, 3' % sCnt)
    a('s_cbranch_scc1 L_qp')
    if OPT['qpm']:
        n0 = [k for k, i in enumerate(a.ins) if i.text.startswith('L_qp:')][0]
        keep = []
        for i in a.ins[n0:]:
            if (OPT['qpm'] & 1) and i.kind == 'mfma': continue
            if (OPT['qpm'] & 2) and i.kind == 'ds': continue
            if (OPT['qpm'] & 4) and i.kind == 'vmem' and 'lds' in i.text: continue
            if (OPT['qpm'] & 16) and i.op == 's_barrier': continue
            keep.append(i)
        a.ins[n0:] = keep
    qp_body(12, gxw(14)[3:], gxw(15)[:3])
    qp_body(13, gxw(15)[3:], gkv(1)[:3])
    qp_body(14, gkv(1)[3:], gkv(2)[:3])
    def pack(m):
        out = []
        t = vS[0] + 16 * m
        for r in range(0, 16, 2): out.append('v_pk_mul_f32 %s, %s, %s' % (vr(t + r, 2), vr(t + r, 2), sr(sQs, 2)))
        for qb in range(2):
            for h in range(2):
                for k in range(2):
                    s_ = t + 8 * h + 4 * qb + 2 * k
                    out.append('v_cvt_pk_bf16_f32 v%d, v%d, v%d' % (vQ + 8 * m + 4 * qb + 2 * h + k, s_, s_ + 1))
        return out
    def qswap(m):
        return ['v_permlane16_swap_b32 v%d, v%d' % (vQ + 8 * m + 4 * qb + k, vQ + 8 * m + 4 * qb + 2 + k) for qb in range(2) for k in range(2)]
    r0, mf = qp_reads(3, dbmajor=True)
    rq, mq = qk_parts(0, vS[0], True)
    rq32, _ = qk_parts(0, vS[0], True, mbase=32)
    for x in rq32: x['free'] = -1
    NPK = npre_of(rq, 0, LA)
    gk3 = groups(dma_k(3))
    fill = {}
    for k, g in enumerate(gkv(2)[3:]): fill[4 * k] = list(g)
    for k in range(3): fill[22 + 4 * k] = list(gk3[k])
    st = [(x, 12, 31) for x in pack(0)] + [(x, 20, 31) for x in pack(1)[:8]]
    bsched(a, mf, r0 + rq32[:NPK], QLA, npre=npre_of(r0, 0, QLA), fixed=fill, events={len(r0): ['s_barrier']}, evrange=(17, 22), streams=[st], pair=4)
    stamp(1)
    for x in gk3[3]: a(x)
    for x in pack(1)[8:] + qswap(0) + pack(2) + qswap(1) + pack(3) + qswap(2) + ['s_nop 0'] + qswap(3): a(x)
    rn, _ = qk_parts(1, vS[1], False, mbase=32)
    zero = ['v_mov_b32 v%d, 0' % (vO + i) for i in range(64)]
    fill = {i: zero[2 * i: 2 * i + 2] for i in range(32)}
    sched(a, mq, rq + rn[:NPK], LA, npre=NPK, fill=fill, events={16: ['s_waitcnt vmcnt(16)', 's_barrier']}, pair=OPT['pair'])
    a('s_barrier')
    gk4 = groups(dma_k(4))
    for k in range(8): a('v_mov_b32 v%d, 0' % (vLs + k))
    for qb in range(2):
        for x in gk4[2 * qb]: a(x)
        rowmax(vS[0], qb, vDelta + qb)
        for x in gk4[2 * qb + 1]: a(x)
        for j in range(4): a('v_sub_f32 v%d, 0, v%d' % (vNegM + 4 * qb + j, vDelta + qb))
        for j in range(16): a('v_sub_f32 v%d, v%d, v%d' % (vS[0] + 16 * qb + j, vS[0] + 16 * qb + j, vDelta + qb))
    stamp(2)

    rare = []
    def iteration(j, vm, kind='mid', tag=''):
        cur, nxt = vS[j & 1], vS[(j + 1) & 1]
        sm = softmax_ops(cur)
        if kind != 'last':
            r1, m1 = qk_parts((j + 1) & 3, nxt, False)
            r2, m2, last = pv_parts(j, cur, 32, 16, prev={b: 2 * (8 + b) + 1 for b in range(8)})
            n = len(m1) + len(m2)
            if kind == 'mid':
                r3, _ = qk_parts((j + 2) & 3, cur, False, mbase=n)
                for k in range(8): r3[k]['free'] = last[k]
                r3 = r3[:NPK]
            else:
                r3, _, _ = pv_parts(j + 1, nxt, n, prev=last); r3 = r3[:NPV]
            reads, mf = r1 + r2 + r3, m1 + m2
            u1 = 32 + len(m2) // 2
            st1 = []; ne = 0
            for x, u in sm:
                if x.startswith('v_exp'): ne += 1
                st1.append((x, 0, min(29 if u == 0 else u1 - 3, (ne * (u1 - 4)) // 32 + (0 if x.startswith('v_exp') else 1))))
            st2 = [(x, max(8 * blk + 12, OPT['mx0']), n - 1) for x, blk in max_ops(nxt)] + [('v_cmp_lt_f32 vcc, s%d, v%d' % (sThr, vMax), 40, n - 1)]
            fixed = {}
            ev0 = n - LA
            if kind == 'mid':
                if j == 0: g = spread(fixed, dma_wo(), ev0 - 28, 3); assert g <= ev0 + 2, g
                g = spread(fixed, dma_v(j + 3) + dma_k(j + 1), ev0 + 2, 1); assert g - 1 < n, g
            bsched(a, mf, reads, LA, npre=NPK, events={len(r1) + len(r2): ['s_waitcnt vmcnt(%d)' % vm, 's_barrier']}, fixed=fixed, streams=[st1, st2],
                   pair=OPT['pair'], evrange=(ev0, ev0 + 2))
            lab = 'L_rare%d%s' % (j, tag)
            a('s_cbranch_vccnz %s' % lab)
            a.label(lab + '_ret')
            rare.append((lab, nxt))
        else:
            reads, mf, _ = pv_parts(j, cur)
            u1 = len(mf) // 2
            for x, u in sm:
                if u == 0: a(x)
            st1 = [(x, 0, u1 - 3) for x, u in sm if u == 1]
            bsched(a, mf, reads, LA, npre=NPV, streams=[st1], pair=OPT['pair'], cap=5)
    NPV = npre_of(pv_parts(0, vS[0])[0], 0, LA)

    def wo_block(p):
        for m in range(4):
            for nb in range(2):
                for h in range(2):
                    a('ds_read_b64_tr_b16 %s, v%d offset:%d' % (ar(32 * p + 8 * m + 4 * nb + 2 * h, 2), vWoAddr, m * 8192 + h * 4096 + nb * 8))
        a('s_waitcnt lgkmcnt(0)')
    def wo_chain(tag):
        a('s_sub_u32 s%d, s%d, s%d' % (sBlk, sCnt, sJ)); a('s_and_b32 s%d, s%d, 7' % (sBlk, sBlk))
        for p in range(8):
            if p < 7:
                a('s_cmp_lg_u32 s%d, %d' % (sBlk, p)); a('s_cbranch_scc1 L_wb%s%d' % (tag, p + 1))
            wo_block(p)
            if p < 7: a('s_branch L_wbdone%s' % tag)
            a.label('L_wb%s%d' % (tag, p + 1) if p < 7 else 'L_wbdone%s' % tag)
    a('s_mov_b32 s%d, 0' % sCnt)
    a.label('L_at')
    stamp(12, sCnt)
    iteration(0, 20)
    iteration(1, 20)
    a('s_cmp_eq_u32 s%d, 7' % sCnt)
    a('s_cbranch_scc1 L_at_last')
    iteration(2, 12)
    wo_chain('a')
    iteration(3, 12)
    a('s_add_u32 s%d, s%d, 1' % (sCnt, sCnt))
    a('s_branch L_at')
    if OPT['atm']:
        n0 = [k for k, i in enumerate(a.ins) if i.text.startswith('L_at:')][0]
        keep = []; m = OPT['atm']; c = 0
        for i in a.ins[n0:]:
            if (m & 1) and i.op == 'v_exp_f32': continue
            if (m & 2) and i.kind == 'ds':
                c += 1
                if (m & 256) == 0 or (c & 1): continue
            if (m & 32) and i.op.startswith('v_max'): continue
            if (m & 64) and i.op.startswith('v_cvt'): continue
            if (m & 128) and i.op == 's_waitcnt' and 'lgkm' in i.text and 'lgkmcnt(0)' not in i.text: continue
            if (m & 512) and i.kind == 'mfma' and min(x[1] for x in i.d) >= vO + 32: continue
            keep.append(i)
        a.ins[n0:] = keep
    a.label('L_at_last')
    iteration(2, 0, kind='pen', tag='p')
    wo_chain('b')
    iteration(3, 0, kind='last')
    stamp(3)

    a('s_lshl_b32 s3, s%d, 2' % sB); a('s_add_u32 s3, s3, s%d' % sWave); a('s_lshl_b32 s3, s3, 18')
    a('s_lshl_b32 s4, s%d, 16' % sKg); a('s_add_u32 s%d, s3, s4' % sOb)
    a('s_lshl_b32 s4, s%d, 13' % sJ); a('s_add_u32 s%d, s%d, s4' % (sT0, sOb)); a('s_add_u32 s%d, s%d, 4096' % (sT1, sT0))
    a('s_lshl_b32 s5, s%d, 1' % sLdsW)
    a('v_add_u32 v2, s5, v%d' % vOoff); a('v_add_u32 v2, 0x8000, v2')
    a('v_mov_b32 v39, 0')
    a('s_waitcnt vmcnt(0)')
    a('buffer_load_dword v38, v39, %s, 0 offen sc1' % sr(SDBG, 4))
    for qb in range(2):
        if OPT['lvalu']: allgroups(vLs + 4 * qb, 'v_add_f32')
        a('v_rcp_f32 v%d, v%d' % (6 + 2 * qb, vLs + 4 * qb))
    a('s_nop 0')
    for qb in range(2): a('v_mov_b32 v%d, v%d' % (7 + 2 * qb, 6 + 2 * qb))
    for m in range(4):
        for qb in range(2):
            f = vQ + 16 * qb + 4 * m
            for h in range(2):
                t = vO + 8 * (2 * m + h) + 4 * qb
                for k in range(2): a('v_pk_mul_f32 %s, %s, %s' % (vr(t + 2 * k, 2), vr(t + 2 * k, 2), vr(6 + 2 * qb, 2)))
            for h in range(2):
                t = vO + 8 * (2 * m + h) + 4 * qb
                for k in range(2): a('v_cvt_pk_bf16_f32 v%d, v%d, v%d' % (f + 2 * h + k, t + 2 * k, t + 2 * k + 1))
            a('buffer_store_dwordx4 %s, v%d, %s, s%d offen offset:%d sc1' % (vr(f, 4), vOoff, sr(SWS, 4), sT1 if qb else sT0, m * 1024))
    for m in range(4):
        for qb in range(2): a('ds_write_b128 v2, %s offset:%d' % (vr(vQ + 16 * qb + 4 * m, 4), qb * 4096 + m * 1024))
    for i in range(4):
        a('s_add_u32 s3, s%d, %d' % (sKg, i)); a('s_and_b32 s3, s3, 3'); a('s_lshl_b32 s3, s3, 13')
        a('v_add_u32 v%d, s3, v%d' % (vOaddr + i, vOoff))
    a('v_add_u32 v%d, 0x10000, v%d' % (vOaddr + 4, vOoff)); a('v_add_u32 v%d, 0x20000, v%d' % (vOaddr + 5, vOoff))
    SADDR = [vOoff, vOaddr + 4, vOaddr + 5]
    ACC = vS[0]
    STG = [None] + [(i, hf) for i in (1, 2, 3, 0) for hf in range(2)]
    OSLOT = [1, 0, 2, 3, 4, 1, 0, 2, 3]
    def op_parts(s_, mbase=0):
        slot = OSLOT[s_]
        reads = []; mf = []
        if s_ == 0: order = [(0, m, i, qb) for m in range(4) for i in range(4) for qb in range(2)]
        else:
            i, hf = STG[s_]
            order = [(1 + 4 * hf + u, m, i, qb) for u in range(4 - hf) for m in range(4) for qb in range(2)]
        for n, (p, m, i, qb) in enumerate(order):
            buf = POOL[n & 7]
            if s_ == 0: ad, off = vOaddr + i, 32768
            else: ad, off = SADDR[slot >> 1], (slot & 1) * 32768 + ((p - 1) & 3) * 8192
            reads.append(dict(t='ds_read_b128 %s, v%d offset:%d' % (vr(buf, 4), ad, off + qb * 4096 + m * 1024), first=mbase + 2 * n, free=mbase + 2 * n - 15))
            for nb in range(2):
                acc = vr(ACC + 16 * i + 8 * qb + 4 * nb, 4)
                mf.append(dict(t='%s %s, %s, %s, %s' % (MFMA, acc, ar(32 * p + 8 * m + 4 * nb, 4), vr(buf, 4), '0' if (p == 0 and m == 0) else acc), uses=[n]))
        return reads, mf
    def dma_o(s_):
        i, hf = STG[s_]
        out = ['s_add_u32 s3, s%d, %d' % (sKg, i), 's_and_b32 s3, s3, 3', 's_lshl_b32 s3, s3, 18', 's_add_u32 s%d, s3, s%d' % (sT0, sHd + hf),
               's_add_u32 m0, s5, %d' % (OSLOT[s_] * 32768), 's_add_u32 s%d, s%d, 4096' % (sT1, sT0)]
        S_ = SWS2 if hf else SWS
        for m in range(4): out.append('buffer_load_dwordx4 v%d, %s, s%d offen offset:%d sc1 lds' % (vOoff, sr(S_, 4), sT0, m * 1024))
        out += ['s_add_u32 m0, m0, 4096', 's_nop 0']
        for m in range(4): out.append('buffer_load_dwordx4 v%d, %s, s%d offen offset:%d sc1 lds' % (vOoff, sr(S_, 4), sT1, m * 1024))
        return out
    def signal(sF, vown, vpoll, cnt):
        return ['v_mov_b32 v38, 1', 's_mov_b64 exec, 1',
                'buffer_store_dword v38, v%d, %s, s%d offen sc1' % (vown, sr(SWS, 4), sF),
                's_mov_b64 exec, %d' % ((1 << cnt) - 2),
                'buffer_load_dword v39, v%d, %s, s%d offen sc1' % (vpoll, sr(SWS, 4), sF),
                's_mov_b64 exec, %s' % sr(sEx, 2)]
    def poll(n, sF, vpoll, cnt):
        a('s_mov_b64 exec, %d' % ((1 << cnt) - 2))
        a('s_mov_b32 s%d, 0' % sSpin)
        a.label('L_poll%d' % n)
        a('s_waitcnt vmcnt(0)')
        a('v_cmp_ne_u32 vcc, 1, v39')
        a('s_cbranch_vccz L_poll%d_out' % n)
        a('s_add_u32 s%d, s%d, 1' % (sSpin, sSpin)); a('s_cmp_ge_u32 s%d, %d' % (sSpin, OPT['spin'])); a('s_cbranch_scc1 L_poll%d_out' % n)
        if OPT['psleep']: a('s_sleep %d' % OPT['psleep'])
        a('buffer_load_dword v39, v%d, %s, s%d offen sc1' % (vpoll, sr(SWS, 4), sF))
        a('s_branch L_poll%d' % n)
        a.label('L_poll%d_out' % n)
        a('s_mov_b64 exec, %s' % sr(sEx, 2))
    a('v_add_u32 v3, s%d, v1' % sJ); a('v_and_b32 v3, 7, v3'); a('v_lshlrev_b32 v3, 2, v3')
    a('v_add_u32 v4, s%d, v1' % sKg); a('v_and_b32 v4, 3, v4'); a('v_lshlrev_b32 v4, 2, v4')
    sHd, SWS2 = 36, 40
    a('s_lshl_b32 s3, s%d, 20' % sB); a('s_lshl_b32 s4, s%d, 16' % sKg); a('s_add_u32 s7, s3, s4')
    for hf in range(2):
        a('s_add_u32 s3, s%d, s%d' % (sJ, sWave)); a('s_add_u32 s3, s3, %d' % (1 + 4 * hf)); a('s_and_b32 s3, s3, 7'); a('s_lshl_b32 s3, s3, 13')
        a('s_add_u32 s%d, s3, s7' % (sHd + hf))
    srd(SWS2, 94, 95, None, None)
    a('s_cmp_eq_u32 s%d, 3' % sWave); a('s_cselect_b32 s%d, 0, 0x2000000' % (SWS2 + 2))
    a('s_lshl_b32 s3, s%d, 3' % sB); a('s_add_u32 s3, s3, s%d' % sJ); a('s_lshl_b32 s3, s3, 18'); a('s_add_u32 s3, s3, s%d' % sLdsW)
    a('s_add_u32 s%d, s3, 0x%x' % (sPb, WS_P))
    a('s_lshl_b32 s6, s%d, 14' % sKg); a('s_add_u32 s6, s6, s%d' % sPb)
    for x in ['s_waitcnt vmcnt(0)', 's_mov_b32 s%d, 0' % sSpin, 'L_init:', 'v_readfirstlane_b32 s3, v38', 's_add_u32 s%d, s%d, 1' % (sSpin, sSpin),
              's_cmp_ge_u32 s3, 256', 's_cbranch_scc1 L_init_ok', 's_cmp_ge_u32 s%d, %d' % (sSpin, OPT['spin']), 's_cbranch_scc1 L_init_ok',
              'v_mov_b32 v39, 0', 'buffer_load_dword v38, v39, %s, 0 offen sc1' % sr(SDBG, 4), 's_waitcnt vmcnt(0)', 's_branch L_init', 'L_init_ok:'] + signal(sF1, 36, 3, 8): a(x)
    stamp(4)
    poll(1, sF1, 3, 8)
    a('s_waitcnt lgkmcnt(0)')
    a('s_barrier')
    stamp(5)
    r, _ = op_parts(0)
    emit_reads(r[:NPK])
    for k in range(1, OPT['odep']):
        for x in dma_o(k): a(x)
    def send(i):
        out = ['s_add_u32 s3, s%d, %d' % (sKg, i), 's_and_b32 s3, s3, 3', 's_lshl_b32 s3, s3, 16', 's_add_u32 s%d, s3, s6' % sT2]
        for g in range(4):
            out.append('buffer_store_dwordx4 %s, v%d, %s, s%d offen offset:%d sc1' % (vr(ACC + 16 * i + 4 * g, 4), vOoff, sr(SWS, 4), sT2, g * 1024))
        return out
    for s_ in range(9):
        r, m = op_parts(s_)
        n = len(m)
        fill = {}
        g = 0
        if s_ in (3, 5, 7): g = spread(fill, send(STG[s_ - 1][0]), 3, 2)
        if s_ < 8:
            rn, _ = op_parts(s_ + 1, n)
            D = OPT['odep']
            if s_ + D <= 8:
                g = spread(fill, dma_o(s_ + D), g, 3); assert g - 3 < n - LA, (s_, g)
            sched(a, m, r + rn[:NPK], LA, npre=NPK, fill=fill, events={len(r): ['s_waitcnt vmcnt(%d)' % (8 * (min(8, s_ + D) - s_ - 1)), 's_barrier']}, evrange=(n - LA, n - 1), pair=4)
        else:
            fill[1] = ['L_sig2:'] + signal(sF2, 37, 4, 4)
            sched(a, m, r, LA, npre=NPK, fill=fill, pair=4)
    stamp(6)
    stamp(7)
    poll(2, sF2, 4, 4)
    stamp(8)
    a('s_lshl_b32 s4, s%d, 16' % sKg); a('s_add_u32 s4, s4, s%d' % sPb)
    for i in range(1, 4):
        a('s_add_u32 s3, s%d, %d' % (sKg, i)); a('s_and_b32 s3, s3, 3'); a('s_lshl_b32 s3, s3, 14'); a('s_add_u32 s%d, s3, s4' % sT0)
        for g in range(4):
            a('buffer_load_dwordx4 %s, v%d, %s, s%d offen offset:%d sc1' % (vr(vO + 16 * i + 4 * g, 4), vOoff, sr(SWS, 4), sT0, g * 1024))
    a('v_and_b32 v2, 15, v1'); a('v_lshrrev_b32 v3, 4, v1'); a('v_lshlrev_b32 v2, 11, v2'); a('v_lshl_add_u32 v2, v3, 4, v2')
    a('s_lshl_b32 s3, s%d, 18' % sB); a('s_lshl_b32 s4, s%d, 16' % sKg); a('s_add_u32 s3, s3, s4')
    a('s_cmp_lt_u32 s%d, 2' % sWave); a('s_cselect_b32 s4, s%d, s%d' % (sPA, sPB))
    a('s_add_u32 s3, s3, s4'); a('s_lshl_b32 s4, s%d, 6' % sWave); a('s_add_u32 s3, s3, s4'); a('s_add_u32 s4, s3, 0x8000')
    for i in range(1, 4):
        a('s_waitcnt vmcnt(%d)' % (4 * (3 - i)))
        for r in range(16): a('v_add_f32 v%d, v%d, v%d' % (ACC + r, ACC + r, vO + 16 * i + r))
    for r in range(0, 16, 2): a('v_cvt_pk_bf16_f32 v%d, v%d, v%d' % (vQ + r // 2, ACC + r, ACC + r + 1))
    a('buffer_store_dwordx4 %s, v2, %s, s3 offen' % (vr(vQ, 4), sr(SOUT, 4)))
    a('buffer_store_dwordx4 %s, v2, %s, s4 offen' % (vr(vQ + 4, 4), sr(SOUT, 4)))
    if OPT['stamps']:
        a('s_waitcnt vmcnt(0)'); stamp(9)
    a.label('L_end')
    a('s_endpgm')
    for lab, S in rare:
        a.label(lab)
        a('s_nop 15')
        for qb in range(2):
            d, al = vDelta + qb, vAlpha + qb
            rowmax(S, qb, d)
            a('v_max_f32 v%d, 0, v%d' % (d, d))
            a('v_sub_f32 v%d, 0, v%d' % (vTmp, d))
            a('v_exp_f32 v%d, v%d' % (al, vTmp))
            for j in range(16): a('v_sub_f32 v%d, v%d, v%d' % (S + 16 * qb + j, S + 16 * qb + j, d))
            for j in range(4): a('v_sub_f32 v%d, v%d, v%d' % (vNegM + 4 * qb + j, vNegM + 4 * qb + j, d))
            for j in range(4): a('v_mul_f32 v%d, v%d, v%d' % (vLs + 4 * qb + j, vLs + 4 * qb + j, al))
            for db in range(8):
                for j in range(4): a('v_mul_f32 v%d, v%d, v%d' % (vO + 8 * db + 4 * qb + j, vO + 8 * db + 4 * qb + j, al))
        a('s_nop 3')
        a('s_branch %s_ret' % lab)
    return a

def main():
    a = gen()
    import io, contextlib
    buf = io.StringIO()
    with contextlib.redirect_stdout(buf):
        bad = check_program(a)
    sys.stderr.write(buf.getvalue())
    for b in bad: sys.stderr.write('BRANCH HAZARD %s\n' % (b,))
    print('; @launch grid=(256,1,1) block=(256,1,1) lds=163840')
    print('.amdgcn_target "amdgcn-amd-amdhsa--gfx950"\n.text')
    print(a.text())
    print('''.section .rodata,"a"
.p2align 6
.amdhsa_kernel %s
  .amdhsa_next_free_vgpr 512
  .amdhsa_next_free_sgpr 100
  .amdhsa_accum_offset 256
  .amdhsa_group_segment_fixed_size 0
  .amdhsa_kernarg_size 64
  .amdhsa_user_sgpr_count 2
  .amdhsa_user_sgpr_kernarg_segment_ptr 1
  .amdhsa_system_sgpr_workgroup_id_x 1
.end_amdhsa_kernel''' % NAME)
main()
```

```python
import sys, math, struct
from asmlib import *

OPT = dict(kpol='nt', vpol='nt', xwpol='-', wopol='-', stamps=0, la=14, qla=14, spin=0x8000, nokv=0, psleep=1, sigat=27,
           stagb=5, nowo=0, atm=0, pair=6, kv0at=9, dwg=0, lvalu=0, mx0=44, qpm=0, odep=2, ctouch=0, pad=0, qpad=0, opad=0, ptouch=0, ab=0, abbit=3, sent=0, ldat=28, opm=0, ostep=3, sig2=1, stg='')
for a_ in sys.argv[1:]:
    k, v = a_.split('=')
    assert k in OPT, k
    OPT[k] = v if not v.lstrip('-').isdigit() else int(v)
def pol(k): return str(OPT[k]).replace('+', ' ').replace('-', '')
def f32bits(x): return struct.unpack('<I', struct.pack('<f', x))[0]
QSCALE = f32bits(math.log2(math.e) / math.sqrt(128.0))
THRESH = f32bits(8.0)
def vr(b, n=1): return 'v%d' % b if n == 1 else 'v[%d:%d]' % (b, b + n - 1)
def ar(b, n=1): return 'a%d' % b if n == 1 else 'a[%d:%d]' % (b, b + n - 1)
def sr(b, n=1): return 's%d' % b if n == 1 else 's[%d:%d]' % (b, b + n - 1)
MFMA = 'v_mfma_f32_16x16x32_bf16'
NAME = 'standalone__mha_block_cached__near_ridge_kernel'

def is_valu(x): return x.startswith('v_') and not x.startswith('v_mfma')
def cost(x):
    if x.endswith(':'): return 0
    return 2 if x.startswith('v_exp') else 1

def sched(a, mf, reads, la, npre=0, fill=None, events=None, pair=2, evrange=None, maxrd=2):
    fill = fill or {}; events = events or {}
    st = dict(done=0, nxt=npre)
    def issue(cur, lim):
        n = 0
        while st['nxt'] < len(reads) and n < lim:
            k = st['nxt']; rd = reads[k]
            if rd['first'] > cur + la or rd.get('free', -1) > cur or k - st['done'] >= 15: break
            if k in events:
                if evrange is not None: assert evrange[0] <= cur <= evrange[1], ('event gap', cur, evrange)
                for x in events[k]: a(x)
            a(rd['t']); st['nxt'] += 1; n += 1
    def wait_for(i):
        us = mf[i]['uses']
        assert all(u < st['nxt'] for u in us), ('read not issued', i, mf[i], st)
        if us and max(us) + 1 > st['done']:
            pos = max(us) + 1
            for j in range(i + 1, min(i + pair, len(mf))):
                if mf[j]['uses'] and max(mf[j]['uses']) < st['nxt']: pos = max(pos, max(mf[j]['uses']) + 1)
            a('s_waitcnt lgkmcnt(%d)' % (st['nxt'] - pos)); st['done'] = pos
    def fillers(lst, cur, lim):
        if any(x.endswith(':') for x in lst):
            issue(cur, lim)
            for x in lst: a(x)
            return
        evgap = st['nxt'] in events
        if evgap: issue(cur, lim)
        for x in lst:
            if not is_valu(x): a(x)
        if not evgap: issue(cur, lim)
        for x in lst:
            if x.startswith('v_exp'): a(x)
        for x in lst:
            if is_valu(x) and not x.startswith('v_exp'): a(x)
    fillers(fill.get(-1, []), -1, 99)
    wait_for(0)
    for i, m in enumerate(mf):
        a(m['t'])
        if i + 1 < len(mf):
            if not all(u < st['nxt'] for u in mf[i + 1]['uses']): issue(i, 99)
            wait_for(i + 1)
        fillers(fill.get(i, []), i, maxrd if i + 1 < len(mf) else 99)
    assert st['nxt'] == len(reads), (st, len(reads))

def bsched(a, mf, reads, la, npre=0, events=None, fixed=None, streams=(), pair=2, evrange=None, cap=3):
    fixed = {k: list(v) for k, v in (fixed or {}).items()}
    n = len(mf)
    t = Asm(); sched(t, mf, reads, la, npre=npre, fill=fixed, events=events, pair=pair)
    load = {g: 0 for g in range(-1, n)}; g = -1
    for i in t.ins:
        if i.kind == 'mfma': g += 1
        elif i.kind != 'none': load[g] += cost(i.text)
    load[n - 1] += load[-1] + 1
    total = sum(load[g] for g in range(n)) + sum(cost(o[0]) for s_ in streams for o in s_)
    fill = {g: list(fixed.get(g, [])) for g in range(-1, n)}
    pos = [0] * len(streams); done = 0
    for g in range(n):
        done += load[g]; used = load[g]
        target = total * (g + 1.0) / n + 1.0
        while True:
            cand = sorted((streams[k][pos[k]][2], k) for k in range(len(streams)) if pos[k] < len(streams[k]) and streams[k][pos[k]][1] <= g)
            ok = False
            for dl, k in cand:
                c = cost(streams[k][pos[k]][0])
                if dl <= g or used + c <= 2 or (used + c <= cap and done + c <= target):
                    fill[g].append(streams[k][pos[k]][0]); used += c; done += c; pos[k] += 1; ok = True
                    break
            if not ok: break
    assert all(pos[k] == len(streams[k]) for k in range(len(streams))), pos
    sched(a, mf, reads, la, npre=npre, fill=fill, events=events, pair=pair, evrange=evrange)

STAMP_OFF = 496 * 1024 * 1024
NST = 24

def gen():
    a = Asm()
    a.raw('.globl %s\n.p2align 8\n.type %s,@function' % (NAME, NAME)); a.label(NAME)
    SX, SW, SK, SV, SWS, SWO, SOUT, SDBG, SST = 8, 12, 16, 20, 24, 56, 60, 64, 68
    sWave, sLdsW, sAoff, sBoff, sCnt, sH, sB, sT0, sT1, sOb, sKoff, sVoff, sThr = 29, 30, 31, 32, 33, 34, 35, 46, 47, 48, 49, 50, 51
    sQs, sJ, sKg, sPA, sPB = 52, 54, 55, 44, 45
    sWoP, sWoB, sF1, sF2, sSpin, sEx, sT2, sPb, sBlk = 72, 73, 74, 75, 76, 78, 80, 81, 83
    vKoff, vVoff, vWoOff, vOoff = 10, 12, 14, 15
    vKaddr, vTaddr, vWoAddr = 16, 20, 28
    vMax, vTmp, vTmp2, vDelta, vAlpha = 29, 30, 31, 32, 34
    vQ, vNegM, vLs, vS, vO = 40, 72, 80, [88, 120], 152
    POOL = [216 + 4 * i for i in range(8)]
    vOnes = 248
    STGAT = [int(x) for x in str(OPT['stg']).split('+') if x != '']
    AB = OPT['ab'] or len(STGAT)
    sGrp, sLim1, sMv, sMk, vStg = 28, 77, 82, 96, 31
    vXoff, vWoff, vXaddr, vTw = vQ, vQ + 4, vQ + 22, vQ + 24
    vOaddr = vKaddr
    AUX, BB = 65536, 98304
    vs = lambda t: (t + 3) & 3
    WS_P, WS_F1, WS_F2 = 0x200000, 0x100000, 0x110000

    def stamp(idx, dyn=None):
        if not OPT['stamps']: return
        if OPT['stamps'] == 5 and idx not in (0, 9):
            if idx == 11: a.label('L_st11')
            return
        lab = 'L_st%d' % idx
        if OPT['stamps'] == 3:
            slot = {0: 0, 10: 1, 11: 2, 1: 3, 2: 4, 3: 5, 4: 6, 5: 7, 6: 8, 7: 9, 8: 10, 9: 11, 12: 12}[idx]
            a('s_cmp_lg_u32 s%d, 0' % sWave); a('s_cbranch_scc1 %s' % lab)
            a('s_cmp_lg_u32 s2, %d' % OPT['dwg']); a('s_cbranch_scc1 %s' % lab)
            if dyn is not None:
                a('s_cmp_gt_u32 s%d, 2' % dyn); a('s_cbranch_scc1 %s' % lab)
            if idx == 7: a('s_mov_b32 s84, s96')
            else:
                a('s_memrealtime s[84:85]'); a('s_waitcnt lgkmcnt(0)')
            a('v_mov_b32 v252, s84'); a('v_mov_b32 v254, 0')
            a('s_mov_b32 s86, %d' % (4 + 4 * slot))
            if dyn is not None:
                a('s_lshl_b32 s87, s%d, 2' % dyn); a('s_add_u32 s86, s86, s87')
            a('buffer_store_dword v252, v254, %s, s86 offen sc1' % sr(SDBG, 4))
            a.label(lab)
            return
        a('s_cmp_lg_u32 s%d, 0' % sWave); a('s_cbranch_scc1 %s' % lab)
        a('s_memtime s[84:85]' if OPT['stamps'] == 2 else 's_memrealtime s[84:85]')
        if OPT['stamps'] == 4:
            a('s_memtime s[86:87]'); a('s_waitcnt lgkmcnt(0)'); a('s_mov_b32 s85, s86')
        a('s_waitcnt lgkmcnt(0)')
        a('v_mov_b32 v252, s84'); a('v_mov_b32 v253, s85'); a('v_mov_b32 v254, 0')
        a('s_mul_i32 s86, s2, %d' % (NST * 8)); a('s_add_u32 s86, s86, %d' % (idx * 8))
        if dyn is not None:
            a('s_lshl_b32 s87, s%d, 3' % dyn); a('s_add_u32 s86, s86, s87')
        a('buffer_store_dwordx2 v[252:253], v254, %s, s86 offen' % sr(SST, 4))
        a.label(lab)
    def srd(d, lo, hi, off, size):
        if off is None:
            a('s_mov_b32 s%d, s%d' % (d, lo)); a('s_mov_b32 s%d, s%d' % (d + 1, hi))
        else:
            a('s_add_u32 s%d, s%d, %s' % (d, lo, off)); a('s_addc_u32 s%d, s%d, 0' % (d + 1, hi))
        if size is not None: a('s_mov_b32 s%d, %s' % (d + 2, size))
        a('s_mov_b32 s%d, 0x00020000' % (d + 3))

    if OPT['stamps'] == 3: a('s_memrealtime s[96:97]')
    a('s_cmp_ge_u32 s2, 256')
    a('s_cbranch_scc1 L_end')
    a('s_load_dwordx8 s[36:43], s[0:1], 0')
    a('s_load_dwordx8 s[88:95], s[0:1], 32')
    if OPT['ctouch']:
        a('s_getpc_b64 s[4:5]')
        a('s_and_b32 s4, s4, 0xffffff00')
        a('s_lshr_b32 s3, s2, 3'); a('s_lshl_b32 s3, s3, 10'); a('s_add_u32 s4, s4, s3'); a('s_addc_u32 s5, s5, 0')
        a('v_and_b32 v2, 7, v0'); a('v_lshlrev_b32 v2, 7, v2'); a('v_mov_b32 v3, s5'); a('v_add_co_u32 v2, vcc, s4, v2'); a('v_addc_co_u32 v3, vcc, 0, v3, vcc')
        a('global_load_dword v255, v[2:3], off')
    a('v_lshrrev_b32 v2, 6, v0')
    a('v_and_b32 v1, 63, v0')
    a('v_readfirstlane_b32 s%d, v2' % sWave)
    a('s_and_b32 s%d, s2, 3' % sKg); a('s_lshl_b32 s3, s%d, 3' % sKg); a('s_lshr_b32 s4, s2, 3'); a('s_and_b32 s%d, s4, 7' % sJ)
    a('s_add_u32 s%d, s3, s%d' % (sH, sJ)); a('s_and_b32 s3, s2, 4'); a('s_lshr_b32 s4, s4, 3'); a('s_add_u32 s%d, s3, s4' % sB)
    a('s_lshl_b32 s%d, s%d, 12' % (sLdsW, sWave))
    a('v_lshrrev_b32 v2, 4, v1')
    a('v_and_b32 v3, 15, v1')
    a('v_lshrrev_b32 v4, 3, v1')
    a('v_and_b32 v5, 7, v1')
    a('v_lshlrev_b32 v6, 1, v2'); a('v_xor_b32 v6, v6, v3'); a('v_lshlrev_b32 v6, 4, v6')
    a('v_xor_b32 v9, 0x80, v6')
    a('s_lshl_b32 s3, s%d, 17' % sWave)
    a('v_lshl_add_u32 v7, v2, 13, v6'); a('v_add_u32 v%d, s3, v7' % vWoff)
    a('v_add_u32 v%d, %d, v%d' % (vWoff + 1, 32768 - 1024, vWoff))
    a('v_lshl_add_u32 v7, v2, 13, v9'); a('v_add_u32 v7, s3, v7')
    a('v_add_u32 v%d, %d, v7' % (vWoff + 2, 2 * (32768 - 1024))); a('v_add_u32 v%d, %d, v7' % (vWoff + 3, 3 * (32768 - 1024)))
    a('s_lshl_b32 s3, s%d, 16' % sWave)
    a('v_xor_b32 v7, v2, v5'); a('v_xor_b32 v8, 4, v7')
    a('v_lshlrev_b32 v7, 4, v7'); a('v_lshlrev_b32 v8, 4, v8')
    a('v_lshl_add_u32 v7, v4, 11, v7'); a('v_lshl_add_u32 v8, v4, 11, v8')
    a('v_add_u32 v%d, s3, v7' % vXoff); a('v_add_u32 v8, s3, v8')
    a('v_add_u32 v%d, %d, v8' % (vXoff + 1, 1 * (16384 - 1024)))
    a('v_add_u32 v%d, %d, v%d' % (vXoff + 2, 2 * (16384 - 1024), vXoff))
    a('v_add_u32 v%d, %d, v8' % (vXoff + 3, 3 * (16384 - 1024)))
    a('s_lshl_b32 s3, s%d, 1' % sH); a('s_mul_i32 s4, s%d, %d' % (sB, OPT['stagb'])); a('s_add_u32 s3, s3, s4'); a('s_and_b32 s3, s3, 15')
    a('s_lshl_b32 s%d, s3, 7' % sAoff)
    a('s_lshl_b32 s5, s%d, 18' % sB); a('s_lshl_b32 s6, s%d, 8' % sH); a('s_sub_u32 s%d, 0x800000, s6' % (SW + 2))
    a('s_waitcnt lgkmcnt(0)')
    srd(SX, 36, 37, 's5', '0x40000'); srd(SW, 42, 43, 's6', None)

    XST = [16384, 32768, 49152, 65536]
    WST = [BB, BB + 16384, BB + 32768, BB - 16384]
    def dma_xw(st):
        out = ['s_add_u32 m0, s%d, %d' % (sLdsW, XST[st]), 's_lshl_b32 s%d, s%d, 12' % (sBoff, sAoff)]
        for i in range(4):
            out.append('buffer_load_dwordx4 v%d, %s, s%d offen offset:%d %s lds' % (vXoff + i, sr(SX, 4), sAoff, i * 1024, pol('xwpol')))
        out += ['s_add_u32 m0, s%d, %d' % (sLdsW, WST[st]), 's_add_u32 s%d, s%d, 128' % (sAoff, sAoff)]
        for i in range(4):
            out.append('buffer_load_dwordx4 v%d, %s, s%d offen offset:%d %s lds' % (vWoff + i, sr(SW, 4), sBoff, i * 1024, pol('xwpol')))
            if i == 0: out.append('s_and_b32 s%d, s%d, 0x7ff' % (sAoff, sAoff))
        return out
    def dma_kv(t, S, so, vo, base, p, sm0=None):
        out = ['s_add_u32 m0, s%d, %d' % (sLdsW, base), 's_cmp_lt_u32 s%d, 0x80000' % so, 's_cselect_b32 s%d, %s, 0' % (S + 2, '0' if OPT['nokv'] else '0x80000')]
        if sm0 is not None:
            out = ['s_mov_b32 m0, s%d' % sm0, 's_cmp_lt_u32 s%d, s%d' % (so, sLim1), out[2]]
        for i in range(4):
            out.append('buffer_load_dwordx4 v%d, %s, s%d offen offset:%d %s lds' % (vo + (i >> 1), sr(S, 4), so, i * 1024, pol(p)))
        out.append('s_add_u32 s%d, s%d, 0x4000' % (so, so))
        return out
    dma_k = lambda t, sm0=None: dma_kv(t, SK, sKoff, vKoff, (t & 3) * 16384, 'kpol', sm0)
    dma_v = lambda t, sm0=None: dma_kv(t, SV, sVoff, vVoff, BB + vs(t) * 16384, 'vpol', sm0)
    def kv_setup():
        a('s_lshl_b32 s3, s%d, 5' % sB); a('s_add_u32 s3, s3, s%d' % sH); a('s_lshl_b32 s3, s3, 19')
        srd(SK, 38, 39, 's3', '0x80000'); srd(SV, 40, 41, 's3', '0x80000')
        a('v_lshl_add_u32 v7, v2, 8, v6'); a('v_add_u32 v%d, s%d, v7' % (vVoff, sLdsW))
        a('v_lshl_add_u32 v7, v2, 8, v9'); a('v_add_u32 v%d, s%d, v7' % (vVoff + 1, sLdsW))
        a('s_lshl_b32 s3, s%d, 3' % sWave); a('s_and_b32 s3, s3, 8')
        a('v_xor_b32 v8, v2, v3'); a('v_xor_b32 v8, s3, v8')
        for i in range(2):
            a('v_xor_b32 v7, %d, v8' % (4 * i)); a('v_lshlrev_b32 v7, 4, v7'); a('v_lshl_add_u32 v7, v2, 8, v7')
            a('v_add_u32 v%d, s%d, v7' % (vKoff + i, sLdsW))
    def dma_wo():
        out = ['s_and_b32 s%d, s%d, 0x1c0000' % (sT2, sWoP), 's_add_u32 s%d, s%d, s%d' % (sT2, sT2, sWoB),
               's_lshl_b32 m0, s%d, 1' % sLdsW, 's_add_u32 m0, m0, %d' % AUX, 's_add_u32 s%d, s%d, 0x40000' % (sWoP, sWoP)]
        for i in range(8):
            if i == 4: out.append('s_add_u32 m0, m0, 4096')
            if i: out.append('s_add_u32 s%d, s%d, %d' % (sT2, sT2, 8192 - 1024 + (4096 if i == 4 else 0)))
            out.append('buffer_load_dwordx4 v%d, %s, s%d offen offset:%d %s lds' % (vWoOff, sr(SWO, 4), sT2, (i & 3) * 1024, pol('wopol')))
        return out
    def groups(lst):
        gs = [[]]
        for x in lst:
            gs[-1].append(x)
            if x.startswith('buffer'): gs.append([])
        if gs[-1]: gs[-2] += gs[-1]
        return gs[:-1]
    def spread(fixed, lst, g0, step, per=2):
        g = g0
        for grp in groups(lst):
            pre = grp[:[x.startswith('buffer') for x in grp].index(True)]
            rest = grp[len(pre):]
            while len(pre) > 1:
                fixed.setdefault(g, []).extend(pre[:2]); pre = pre[2:]; g += 1
            fixed.setdefault(g, []).extend(pre + rest); g += step
        return g

    def stage_loads(p):
        out = ['s_mov_b32 s3, %d' % ((4 * p + 4) * 16384), 's_mov_b32 s4, %d' % ((4 * p + 6) * 16384)]
        for i in range(4): out.append('buffer_load_dwordx4 %s, v%d, %s, s3 offen offset:%d %s' % (ar(32 * p + 4 * i, 4), vVoff + (i >> 1), sr(SV, 4), i * 1024, pol('vpol')))
        for i in range(4): out.append('buffer_load_dwordx4 %s, v%d, %s, s4 offen offset:%d %s' % (ar(32 * p + 16 + 4 * i, 4), vKoff + (i >> 1), sr(SK, 4), i * 1024, pol('kpol')))
        return out
    if OPT['ab']:
        a('s_bitcmp1_b32 s2, %d' % (3 + OPT['abbit'])); a('s_cbranch_scc0 L_grpa')
        kv_setup()
        for p in range(AB):
            for x in stage_loads(p): a(x)
        a.label('L_grpa')
    for x in dma_xw(0): a(x)
    kv_setup()
    if AB:
        a('s_mov_b32 s5, 0x30000')
        a('s_bitcmp1_b32 s2, %d' % (3 + OPT['abbit']) if OPT['ab'] else 's_cmp_eq_u32 s5, s5')
        a('s_cselect_b32 s%d, 0, 0x80000' % sLim1); a('s_cselect_b32 s3, s5, %d' % (BB + 49152)); a('s_cselect_b32 s4, s5, 32768')
        a('s_add_u32 s%d, s%d, s3' % (sMv, sLdsW)); a('s_add_u32 s%d, s%d, s4' % (sMk, sLdsW))
        a('v_lshlrev_b32 v7, 4, v1'); a('v_add_u32 v7, s%d, v7' % sLdsW); a('v_add_u32 v%d, %d, v7' % (vStg, BB))
    a('s_lshl_b32 s3, s%d, 22' % sB)
    srd(SWS, 94, 95, 's3', '0x400000'); srd(SWO, 88, 89, None, '0' if OPT['nowo'] else '0x800000'); srd(SOUT, 90, 91, None, '0x200000'); srd(SDBG, 92, 93, None, '256')
    if OPT['stamps']: srd(SST, 94, 95, str(STAMP_OFF), '0x100000')
    stamp(0)
    a('s_mov_b64 %s, exec' % sr(sEx, 2))
    a('s_lshl_b32 s3, s%d, 10' % sKg); a('s_lshl_b32 s4, s%d, 8' % sWave); a('s_add_u32 s3, s3, s4'); a('s_add_u32 s%d, s3, 0x%x' % (sF1, WS_F1))
    a('s_lshl_b32 s3, s%d, 10' % sJ); a('s_add_u32 s3, s3, s4'); a('s_add_u32 s%d, s3, 0x%x' % (sF2, WS_F2))
    a('s_lshl_b32 s3, s%d, 2' % sJ); a('s_lshl_b32 s4, s%d, 2' % sKg)
    a('v_mov_b32 v36, s3'); a('v_mov_b32 v37, s4'); a('v_mov_b32 v38, 0'); a('v_mov_b32 v39, 0')
    a('s_lshl_b32 s3, s%d, 18' % sJ); a('s_add_u32 s3, s3, s%d' % sLdsW); a('s_add_u32 s%d, s3, 0x%x' % (sPb, WS_P))
    a('s_mul_i32 s3, s%d, 0x14000' % sKg); a('s_add_u32 s3, s3, s%d' % sPb)
    a('s_lshl_b32 s4, s%d, 18' % sB)
    a('s_mov_b64 exec, 1')
    a('buffer_atomic_swap v38, v36, %s, s%d offen sc0 sc1' % (sr(SWS, 4), sF1))
    a('buffer_atomic_swap v39, v37, %s, s%d offen sc0 sc1' % (sr(SWS, 4), sF2))
    if OPT['ptouch']:
        a('buffer_load_dword v255, v36, %s, s3 offen sc1' % sr(SWS, 4))
        a('buffer_load_dword v255, v36, %s, s4 offen sc1' % sr(SOUT, 4))
    a('s_mov_b64 exec, %s' % sr(sEx, 2))
    a('s_mov_b32 s%d, 0' % sKoff); a('s_mov_b32 s%d, 0' % sVoff); a('s_lshl_b32 s%d, s%d, 18' % (sWoP, sJ))
    a('s_lshl_b32 s3, s%d, 21' % sKg); a('s_lshl_b32 s4, s%d, 16' % sWave); a('s_add_u32 s%d, s3, s4' % sWoB)
    a('s_lshr_b32 s3, s%d, 1' % sJ); a('s_and_b32 s4, s%d, 1' % sJ); a('s_lshl_b32 s4, s4, 2'); a('s_add_u32 s3, s3, s4')
    a('s_lshl_b32 s%d, s3, 7' % sPA)
    a('s_add_u32 s3, s3, 2'); a('s_and_b32 s3, s3, 7'); a('s_add_u32 s3, s3, 7'); a('s_lshl_b32 s%d, s3, 7' % sPB)
    a('v_lshlrev_b32 v6, 2, v2'); a('v_xor_b32 v6, v6, v3'); a('v_lshlrev_b32 v6, 4, v6')
    a('v_lshl_add_u32 v%d, v2, 11, v6' % vWoOff)
    a('v_mov_b32 v7, s%d' % sPA); a('v_mov_b32 v8, s%d' % sPB); a('v_cmp_gt_u32 vcc, 128, v6'); a('s_nop 1')
    a('v_cndmask_b32 v7, v8, v7, vcc'); a('v_add_u32 v%d, v7, v%d' % (vWoOff, vWoOff))
    a('v_and_b32 v4, 12, v3'); a('v_and_b32 v5, 3, v3'); a('v_lshl_add_u32 v4, v4, 1, v5')
    a('v_and_b32 v5, 1, v2'); a('v_lshlrev_b32 v5, 1, v5'); a('v_lshrrev_b32 v6, 1, v2'); a('v_or_b32 v5, v5, v6'); a('v_xor_b32 v5, v5, v3')
    for m in range(4):
        a('v_xor_b32 v6, %d, v5' % (4 * m)); a('v_lshlrev_b32 v6, 4, v6'); a('v_lshl_add_u32 v%d, v4, 8, v6' % (vKaddr + m))
    a('v_lshrrev_b32 v5, 1, v3'); a('v_xor_b32 v5, v5, v2')
    for ks in range(2):
        a('v_xor_b32 v6, %d, v5' % (4 * ks)); a('v_lshlrev_b32 v6, 4, v6'); a('v_lshl_add_u32 v6, v3, 7, v6')
        a('v_add_u32 v6, s%d, v6' % sLdsW); a('v_add_u32 v%d, 0x4000, v6' % (vXaddr + ks))
    a('v_lshrrev_b32 v4, 2, v3')
    a('v_lshl_add_u32 v5, v2, 3, v4'); a('v_lshlrev_b32 v5, 8, v5')
    a('v_and_b32 v6, 1, v1'); a('v_lshl_add_u32 v5, v6, 3, v5'); a('v_add_u32 v5, %d, v5' % BB)
    a('v_and_b32 v6, 1, v2'); a('v_lshl_add_u32 v6, v6, 2, v4'); a('v_lshlrev_b32 v6, 1, v6')
    a('v_lshrrev_b32 v7, 1, v1'); a('v_and_b32 v7, 1, v7'); a('v_or_b32 v6, v6, v7')
    for db in range(8):
        a('v_xor_b32 v7, %d, v6' % (2 * db)); a('v_lshl_add_u32 v%d, v7, 4, v5' % (vTaddr + db))
        a('v_add_u32 v%d, -16384, v%d' % (vTw + db, vTaddr + db))
    a('v_lshl_add_u32 v5, v2, 2, v4'); a('v_lshlrev_b32 v5, 8, v5'); a('v_add_u32 v5, 0x%x, v5' % AUX)
    a('s_lshl_b32 s3, s%d, 2' % sWave)
    a('v_xor_b32 v6, s3, v3')
    a('v_lshl_add_u32 v%d, v6, 4, v5' % vWoAddr)
    a('v_lshlrev_b32 v%d, 4, v1' % vOoff)
    for i in range(64): a('v_mov_b32 v%d, 0' % (vS[0] + i))
    a('s_mov_b32 s%d, 0x%08x' % (sQs, QSCALE)); a('s_mov_b32 s%d, 0x%08x' % (sQs + 1, QSCALE)); a('s_mov_b32 s%d, 0x%08x' % (sThr, THRESH))
    for k in range(4): a('v_mov_b32 v%d, 0x3f803f80' % (vOnes + k))
    a('s_mov_b32 s%d, 0' % sCnt)

    LA = OPT['la']
    def tr2(buf, addr, off, first, free):
        return [dict(t='ds_read_b64_tr_b16 %s, v%d offset:%d' % (vr(buf, 2), addr, off), first=first, free=free),
                dict(t='ds_read_b64_tr_b16 %s, v%d offset:%d' % (vr(buf + 2, 2), addr, off + 1024), first=first + 1, free=free)]
    def qk_parts(slot, S, first, mbase=0, rbase=0):
        reads = []; mf = []
        for n in range(16):
            blk, m = n >> 2, n & 3; u, kb2 = blk >> 1, blk & 1
            buf = POOL[n & 7]
            reads.append(dict(t='ds_read_b128 %s, v%d offset:%d' % (vr(buf, 4), vKaddr + m, slot * 16384 + u * 8192 + kb2 * 1024), first=mbase + 2 * n, free=mbase + 2 * n - 15))
            for qb in range(2):
                acc = vr(S + 16 * qb + 4 * blk, 4)
                c = acc if m else ('0' if first else vr(vNegM + 4 * qb, 4))
                mf.append(dict(t='%s %s, %s, %s, %s' % (MFMA, acc, vr(buf, 4), vr(vQ + 8 * m + 4 * qb, 4), c), uses=[rbase + n]))
        return reads, mf
    def lsum(S, u, qb):
        return dict(t='%s %s, %s, %s, %s' % (MFMA, vr(vLs + 4 * qb, 4), vr(vOnes, 4), vr(S + 16 * qb + 8 * u, 4), vr(vLs + 4 * qb, 4)), uses=[])
    def pv_parts(t, S, mbase=0, rbase=0, prev=None):
        reads = []; mf = []; last = dict(prev or {})
        for n in range(16):
            u, db = n >> 3, n & 7
            buf = POOL[n & 7]
            i = mbase + len(mf)
            reads += tr2(buf, vTaddr + db, vs(t) * 16384 + u * 8192, i, last.get(n & 7, -1))
            for qb in range(2):
                acc = vr(vO + 8 * db + 4 * qb, 4)
                mf.append(dict(t='%s %s, %s, %s, %s' % (MFMA, acc, vr(buf, 4), vr(S + 16 * qb + 8 * u, 4), acc), uses=[rbase + 2 * n, rbase + 2 * n + 1]))
            last[n & 7] = i + 1
            if db in (2, 5) and not OPT['lvalu']: mf.append(lsum(S, u, 0 if db == 2 else 1))
        return reads, mf, last
    def softmax_ops(S):
        ops = []
        for u in range(2):
            for qb in range(2):
                b = S + 16 * qb + 8 * u
                for h4 in range(2):
                    q = b + 4 * h4
                    for j in range(4): ops.append(('v_exp_f32 v%d, v%d' % (q + j, q + j), u))
                    for j in range(2):
                        if OPT['lvalu']:
                            ops.append(('v_add_f32 v%d, v%d, v%d' % (vLs + 4 * qb, vLs + 4 * qb, q + 2 * j), u))
                            ops.append(('v_add_f32 v%d, v%d, v%d' % (vLs + 4 * qb, vLs + 4 * qb, q + 2 * j + 1), u))
                        ops.append(('v_cvt_pk_bf16_f32 v%d, v%d, v%d' % (b + 2 * h4 + j, q + 2 * j, q + 2 * j + 1), u))
        return ops
    def max_ops(S):
        regs = [(S + 16 * qb + 4 * blk + r, blk) for blk in range(4) for qb in range(2) for r in range(4)]
        ops = [('v_max3_f32 v%d, v%d, v%d, v%d' % (vMax, regs[0][0], regs[1][0], regs[2][0]), 0)]
        for j in range(3, 31, 2): ops.append(('v_max3_f32 v%d, v%d, v%d, v%d' % (vMax, vMax, regs[j][0], regs[j + 1][0]), regs[j + 1][1]))
        ops.append(('v_max_f32 v%d, v%d, v%d' % (vMax, vMax, regs[31][0]), 3))
        return ops
    def allgroups(v, op):
        for sw in ('v_permlane32_swap_b32', 'v_permlane16_swap_b32'):
            a('v_mov_b32 v%d, v%d' % (vTmp, v)); a('s_nop 1'); a('%s v%d, v%d' % (sw, v, vTmp)); a('s_nop 1'); a('%s v%d, v%d, v%d' % (op, v, v, vTmp))
    def rowmax(S, qb, d):
        b = S + 16 * qb
        a('v_max3_f32 v%d, v%d, v%d, v%d' % (d, b, b + 1, b + 2))
        for j in range(3, 15, 2): a('v_max3_f32 v%d, v%d, v%d, v%d' % (d, d, b + j, b + j + 1))
        a('v_max_f32 v%d, v%d, v%d' % (d, d, b + 15))
        allgroups(d, 'v_max_f32')
    def emit_reads(rs):
        for rd in rs: a(rd['t'])
    def npre_of(r, base, la): return min(13, len([x for x in r if x['first'] - base <= la - 1]))

    WP = [vO + 4 * i for i in range(16)]
    QLA = OPT['qla']
    def qp_reads(st, mbase=0, rbase=0, dbmajor=False):
        reads = []; mf = []; xi = {}
        XP = [vNegM + 4 * k for k in range(4)] if dbmajor else POOL[4 * (st & 1): 4 * (st & 1) + 4]
        order = [(ks, db) for db in range(8) for ks in range(2)] if dbmajor else [(ks, db) for ks in range(2) for db in range(8)]
        for n, (ks, db) in enumerate(order):
            i = mbase + 2 * n
            if ks not in xi:
                xi[ks] = rbase + len(reads)
                for qb in range(2):
                    reads.append(dict(t='ds_read_b128 %s, v%d offset:%d' % (vr(XP[2 * ks + qb], 4), vXaddr + ks, XST[st] - 16384 + qb * 2048), first=i))
            wi = rbase + len(reads)
            reads += tr2(WP[n], vTw + db, WST[st] - (BB - 16384) + ks * 8192, i, i - 31)
            for qb in range(2):
                acc = vr(vS[0] + 8 * db + 4 * qb, 4)
                mf.append(dict(t='%s %s, %s, %s, %s' % (MFMA, acc, vr(WP[n], 4), vr(XP[2 * ks + qb], 4), acc), uses=[wi, wi + 1, xi[ks], xi[ks] + 1]))
        return reads, mf
    gkv = lambda t: groups(dma_k(t) + dma_v(t))
    gxw = lambda c: groups(dma_xw(c & 3))
    EXTRA = {OPT['kv0at']: None}
    for p_, q in enumerate(STGAT): assert q not in EXTRA and q < 12; EXTRA[q] = p_
    def qp_body(c, early, late, tail=()):
        r0, mf = qp_reads(c & 3); r1, _ = qp_reads((c + 1) & 3, 32, dbmajor=(c == 14))
        fill = {}
        for k, g in enumerate(early): fill[4 * k] = list(g)
        for k, g in enumerate(late): fill[22 + 4 * k] = list(g)
        fill.setdefault(31, []); fill[31] += list(tail)
        ev = ['s_waitcnt vmcnt(8)', 's_barrier']
        nxt8 = [q + 1 for q in EXTRA]
        if c >= 12:
            if c in nxt8: ev = ['s_waitcnt vmcnt(16)', 's_barrier']
        else:
            ps = [q >> 2 for q in nxt8 if q < 12 and (q & 3) == c]
            if ps:
                ev = []
                for p_ in ps: ev += ['s_cmp_eq_u32 s%d, %d' % (sCnt, p_), 's_cbranch_scc1 L_kvw%d' % c]
                ev += ['s_waitcnt vmcnt(8)', 'L_kvw%d:' % c, 's_waitcnt vmcnt(16)', 's_barrier']
        sched(a, mf, r0 + r1[:npre_of(r1, 32, QLA)], QLA, npre=npre_of(r0, 0, QLA), fill=fill, events={len(r0): ev}, evrange=(17, 22), pair=4)
    r0, _ = qp_reads(0)
    for g in groups(dma_xw(1)) + groups(dma_xw(2))[:3]:
        for x in g: a(x)
    a('s_waitcnt vmcnt(11)')
    a('s_barrier')
    stamp(10)
    emit_reads(r0[:npre_of(r0, 0, QLA)])
    a.label('L_qp')
    if OPT['stamps']:
        a('s_cmp_lg_u32 s%d, 2' % sCnt); a('s_cbranch_scc1 L_st11')
        stamp(11)
    for c in range(4):
        qp_body(c, gxw(c + 2)[3:], gxw(c + 3)[:3], ['s_add_u32 s%d, s%d, 1' % (sCnt, sCnt), 's_cmp_lt_u32 s%d, 3' % sCnt] if c == 3 else [])
        if c == 2:
            a('s_or_b32 s3, s%d, s%d' % (sWave, sCnt)); a('s_cbranch_scc1 L_noinit')
            a('v_mov_b32 v38, 1'); a('v_mov_b32 v39, 0')
            a('s_mov_b64 exec, 1')
            a('buffer_atomic_add v38, v39, %s, 0 offen sc1' % sr(SDBG, 4))
            a('s_mov_b64 exec, %s' % sr(sEx, 2))
            a.label('L_noinit')
        for q in sorted(EXTRA):
            if (q & 3) != c: continue
            a('s_cmp_lg_u32 s%d, %d' % (sCnt, (q >> 2) + (1 if c == 3 else 0))); a('s_cbranch_scc1 L_nox%d' % q)
            if EXTRA[q] is None:
                for x in dma_k(0) + dma_v(0): a(x)
                a('s_add_u32 m0, s%d, %d' % (sLdsW, XST[(c + 3) & 3]))
            else:
                for x in stage_loads(EXTRA[q]): a(x)
            a.label('L_nox%d' % q)
        if c == 3 and any((q & 3) == 3 for q in EXTRA): a('s_cmp_lt_u32 s%d, 3' % sCnt)
    a('s_cbranch_scc1 L_qp')
    if OPT['qpm']:
        n0 = [k for k, i in enumerate(a.ins) if i.text.startswith('L_qp:')][0]
        keep = []
        for i in a.ins[n0:]:
            if (OPT['qpm'] & 1) and i.kind == 'mfma': continue
            if (OPT['qpm'] & 2) and i.kind == 'ds': continue
            if (OPT['qpm'] & 4) and i.kind == 'vmem' and 'lds' in i.text: continue
            if (OPT['qpm'] & 16) and i.op == 's_barrier': continue
            keep.append(i)
        a.ins[n0:] = keep
    qp_body(12, gxw(14)[3:], gxw(15)[:3])
    qp_body(13, gxw(15)[3:], gkv(1)[:3])
    qp_body(14, gkv(1)[3:], gkv(2)[:3])
    def pack(m):
        out = []
        t = vS[0] + 16 * m
        for r in range(0, 16, 2): out.append('v_pk_mul_f32 %s, %s, %s' % (vr(t + r, 2), vr(t + r, 2), sr(sQs, 2)))
        for qb in range(2):
            for h in range(2):
                for k in range(2):
                    s_ = t + 8 * h + 4 * qb + 2 * k
                    out.append('v_cvt_pk_bf16_f32 v%d, v%d, v%d' % (vQ + 8 * m + 4 * qb + 2 * h + k, s_, s_ + 1))
        return out
    def qswap(m):
        return ['v_permlane16_swap_b32 v%d, v%d' % (vQ + 8 * m + 4 * qb + k, vQ + 8 * m + 4 * qb + 2 + k) for qb in range(2) for k in range(2)]
    r0, mf = qp_reads(3, dbmajor=True)
    rq, mq = qk_parts(0, vS[0], True)
    rq32, _ = qk_parts(0, vS[0], True, mbase=32)
    for x in rq32: x['free'] = -1
    NPK = npre_of(rq, 0, LA)
    gk3 = groups(dma_k(3))
    fill = {}
    for k, g in enumerate(gkv(2)[3:]): fill[4 * k] = list(g)
    for k in range(3): fill[22 + 4 * k] = list(gk3[k])
    st = [(x, 12, 31) for x in pack(0)] + [(x, 20, 31) for x in pack(1)[:8]]
    bsched(a, mf, r0 + rq32[:NPK], QLA, npre=npre_of(r0, 0, QLA), fixed=fill, events={len(r0): ['s_barrier']}, evrange=(17, 22), streams=[st], pair=4)
    stamp(1)
    for x in gk3[3]: a(x)
    for x in pack(1)[8:] + qswap(0) + pack(2) + qswap(1) + pack(3) + qswap(2) + ['s_nop 0'] + qswap(3): a(x)
    rn, _ = qk_parts(1, vS[1], False, mbase=32)
    zero = ['v_mov_b32 v%d, 0' % (vO + i) for i in range(64)]
    fill = {i: zero[2 * i: 2 * i + 2] for i in range(32)}
    sched(a, mq, rq + rn[:NPK], LA, npre=NPK, fill=fill, events={16: ['s_waitcnt vmcnt(16)', 's_barrier']}, pair=OPT['pair'])
    a('s_barrier')
    gk4 = groups(dma_k(4))
    for k in range(8): a('v_mov_b32 v%d, 0' % (vLs + k))
    for qb in range(2):
        for x in gk4[2 * qb]: a(x)
        rowmax(vS[0], qb, vDelta + qb)
        for x in gk4[2 * qb + 1]: a(x)
        for j in range(4): a('v_sub_f32 v%d, 0, v%d' % (vNegM + 4 * qb + j, vDelta + qb))
        for j in range(16): a('v_sub_f32 v%d, v%d, v%d' % (vS[0] + 16 * qb + j, vS[0] + 16 * qb + j, vDelta + qb))
    stamp(2)

    rare = []
    def iteration(j, vm, kind='mid', tag=''):
        cur, nxt = vS[j & 1], vS[(j + 1) & 1]
        sm = softmax_ops(cur)
        if kind != 'last':
            r1, m1 = qk_parts((j + 1) & 3, nxt, False)
            r2, m2, last = pv_parts(j, cur, 32, 16, prev={b: 2 * (8 + b) + 1 for b in range(8)})
            n = len(m1) + len(m2)
            if kind == 'mid':
                r3, _ = qk_parts((j + 2) & 3, cur, False, mbase=n)
                for k in range(8): r3[k]['free'] = last[k]
                r3 = r3[:NPK]
            else:
                r3, _, _ = pv_parts(j + 1, nxt, n, prev=last); r3 = r3[:NPV]
            reads, mf = r1 + r2 + r3, m1 + m2
            u1 = 32 + len(m2) // 2
            st1 = []; ne = 0
            for x, u in sm:
                if x.startswith('v_exp'): ne += 1
                st1.append((x, 0, min(29 if u == 0 else u1 - 3, (ne * (u1 - 4)) // 32 + (0 if x.startswith('v_exp') else 1))))
            st2 = [(x, max(8 * blk + 12, OPT['mx0']), n - 1) for x, blk in max_ops(nxt)] + [('v_cmp_lt_f32 vcc, s%d, v%d' % (sThr, vMax), 40, n - 1)]
            fixed = {}
            ev0 = n - LA
            if kind == 'mid':
                if j == 0: g = spread(fixed, dma_wo(), ev0 - 28, 3); assert g <= ev0 + 2, g
                g = spread(fixed, (dma_v(j + 3, sMv) + dma_k(j + 1, sMk)) if (AB and j == 1) else (dma_v(j + 3) + dma_k(j + 1)), ev0 + 2, 1); assert g - 1 < n, g
            bsched(a, mf, reads, LA, npre=NPK, events={len(r1) + len(r2): ['s_waitcnt vmcnt(%d)' % vm, 's_barrier']}, fixed=fixed, streams=[st1, st2],
                   pair=OPT['pair'], evrange=(ev0, ev0 + 2))
            lab = 'L_rare%d%s' % (j, tag)
            a('s_cbranch_vccnz %s' % lab)
            a.label(lab + '_ret')
            rare.append((lab, nxt))
        else:
            reads, mf, _ = pv_parts(j, cur)
            u1 = len(mf) // 2
            for x, u in sm:
                if u == 0: a(x)
            st1 = [(x, 0, u1 - 3) for x, u in sm if u == 1]
            bsched(a, mf, reads, LA, npre=NPV, streams=[st1], pair=OPT['pair'], cap=5)
    NPV = npre_of(pv_parts(0, vS[0])[0], 0, LA)

    def wo_block(p):
        for m in range(4):
            for nb in range(2):
                for h in range(2):
                    a('ds_read_b64_tr_b16 %s, v%d offset:%d' % (ar(32 * p + 8 * m + 4 * nb + 2 * h, 2), vWoAddr, m * 8192 + h * 4096 + nb * 8))
        a('s_waitcnt lgkmcnt(0)')
    def wo_chain(tag):
        if tag == 'b': return wo_block(7)
        for p in range(7):
            if p < 6:
                a('s_cmp_lg_u32 s%d, %d' % (sCnt, p)); a('s_cbranch_scc1 L_wb%s%d' % (tag, p + 1))
            wo_block(p)
            if p < 6: a('s_branch L_wbdone%s' % tag)
            a.label('L_wb%s%d' % (tag, p + 1) if p < 6 else 'L_wbdone%s' % tag)
    def stage_chain():
        a('s_cmp_lg_u32 s%d, 0' % sLim1); a('s_cbranch_scc1 L_sgdone')
        for p in range(AB):
            if p < AB - 1:
                a('s_cmp_lg_u32 s%d, %d' % (sCnt, p)); a('s_cbranch_scc1 L_sg%d' % (p + 1))
            for i in range(4):
                a('ds_write_b128 v%d, %s offset:%d' % (vStg, ar(32 * p + 4 * i, 4), 49152 + i * 1024))
            a('v_add_u32 v%d, %d, v%d' % (vTmp, 32768 - BB, vStg))
            for i in range(4):
                a('ds_write_b128 v%d, %s offset:%d' % (vTmp, ar(32 * p + 16 + 4 * i, 4), i * 1024))
            a('s_waitcnt lgkmcnt(0)')
            if p == AB - 1:
                a('s_mov_b32 s%d, 0x80000' % sLim1)
                a('s_add_u32 s%d, s%d, %d' % (sMv, sLdsW, BB + 49152)); a('s_add_u32 s%d, s%d, 32768' % (sMk, sLdsW))
            else: a('s_branch L_sgdone')
            a.label('L_sg%d' % (p + 1) if p < AB - 1 else 'L_sgdone')
    a('s_mov_b32 s%d, 0' % sCnt)
    a.label('L_at')
    stamp(12, sCnt)
    iteration(0, 20)
    iteration(1, 20)
    if AB: stage_chain()
    a('s_cmp_eq_u32 s%d, 7' % sCnt)
    a('s_cbranch_scc1 L_at_last')
    iteration(2, 12)
    wo_chain('a')
    iteration(3, 12)
    a('s_add_u32 s%d, s%d, 1' % (sCnt, sCnt))
    a('s_branch L_at')
    if OPT['atm']:
        n0 = [k for k, i in enumerate(a.ins) if i.text.startswith('L_at:')][0]
        keep = []; m = OPT['atm']; c = 0
        for i in a.ins[n0:]:
            if (m & 1) and i.op == 'v_exp_f32': continue
            if (m & 2) and i.kind == 'ds':
                c += 1
                if (m & 256) == 0 or (c & 1): continue
            if (m & 32) and i.op.startswith('v_max'): continue
            if (m & 64) and i.op.startswith('v_cvt'): continue
            if (m & 128) and i.op == 's_waitcnt' and 'lgkm' in i.text and 'lgkmcnt(0)' not in i.text: continue
            if (m & 512) and i.kind == 'mfma' and min(x[1] for x in i.d) >= vO + 32: continue
            keep.append(i)
        a.ins[n0:] = keep
    a.label('L_at_last')
    iteration(2, 0, kind='pen', tag='p')
    wo_chain('b')
    iteration(3, 0, kind='last')
    stamp(3)

    a('s_lshl_b32 s3, s%d, 18' % sWave)
    a('s_lshl_b32 s4, s%d, 16' % sKg); a('s_add_u32 s%d, s3, s4' % sOb)
    a('s_lshl_b32 s4, s%d, 13' % sJ); a('s_add_u32 s%d, s%d, s4' % (sT0, sOb)); a('s_add_u32 s%d, s%d, 4096' % (sT1, sT0))
    a('s_lshl_b32 s5, s%d, 1' % sLdsW)
    a('v_add_u32 v2, s5, v%d' % vOoff); a('v_add_u32 v2, 0x8000, v2')
    a('v_mov_b32 v39, 0')
    a('s_waitcnt vmcnt(0)')
    a('buffer_load_dword v38, v39, %s, 0 offen sc1' % sr(SDBG, 4))
    for qb in range(2):
        if OPT['lvalu']: allgroups(vLs + 4 * qb, 'v_add_f32')
        a('v_rcp_f32 v%d, v%d' % (6 + 2 * qb, vLs + 4 * qb))
    a('s_nop 0')
    for qb in range(2): a('v_mov_b32 v%d, v%d' % (7 + 2 * qb, 6 + 2 * qb))
    for m in range(4):
        for qb in range(2):
            f = vQ + 16 * qb + 4 * m
            for h in range(2):
                t = vO + 8 * (2 * m + h) + 4 * qb
                for k in range(2): a('v_pk_mul_f32 %s, %s, %s' % (vr(t + 2 * k, 2), vr(t + 2 * k, 2), vr(6 + 2 * qb, 2)))
            for h in range(2):
                t = vO + 8 * (2 * m + h) + 4 * qb
                for k in range(2): a('v_cvt_pk_bf16_f32 v%d, v%d, v%d' % (f + 2 * h + k, t + 2 * k, t + 2 * k + 1))
            a('buffer_store_dwordx4 %s, v%d, %s, s%d offen offset:%d sc1' % (vr(f, 4), vOoff, sr(SWS, 4), sT1 if qb else sT0, m * 1024))
    for m in range(4):
        for qb in range(2): a('ds_write_b128 v2, %s offset:%d' % (vr(vQ + 16 * qb + 4 * m, 4), qb * 4096 + m * 1024))
    for i in range(4):
        a('s_add_u32 s3, s%d, %d' % (sKg, i)); a('s_and_b32 s3, s3, 3'); a('s_lshl_b32 s3, s3, 13')
        a('v_add_u32 v%d, s3, v%d' % (vOaddr + i, vOoff))
    a('v_add_u32 v%d, 0x10000, v%d' % (vOaddr + 4, vOoff)); a('v_add_u32 v%d, 0x20000, v%d' % (vOaddr + 5, vOoff))
    SADDR = [vOoff, vOaddr + 4, vOaddr + 5]
    ACC = vS[0]
    STG = [None] + [(i, hf) for i in (1, 2, 3, 0) for hf in range(2)]
    OSLOT = [1, 0, 2, 3, 4, 1, 0, 2, 3]
    def op_parts(s_, mbase=0):
        slot = OSLOT[s_]
        reads = []; mf = []
        if s_ == 0: order = [(0, m, i, qb) for m in range(4) for i in range(4) for qb in range(2)]
        else:
            i, hf = STG[s_]
            order = [(1 + 4 * hf + u, m, i, qb) for u in range(4 - hf) for m in range(4) for qb in range(2)]
        for n, (p, m, i, qb) in enumerate(order):
            buf = POOL[n & 7]
            if s_ == 0: ad, off = vOaddr + i, 32768
            else: ad, off = SADDR[slot >> 1], (slot & 1) * 32768 + ((p - 1) & 3) * 8192
            reads.append(dict(t='ds_read_b128 %s, v%d offset:%d' % (vr(buf, 4), ad, off + qb * 4096 + m * 1024), first=mbase + 2 * n, free=mbase + 2 * n - 15))
            for nb in range(2):
                acc = vr(ACC + 16 * i + 8 * qb + 4 * nb, 4)
                mf.append(dict(t='%s %s, %s, %s, %s' % (MFMA, acc, ar(32 * p + 8 * m + 4 * nb, 4), vr(buf, 4), '0' if (p == 0 and m == 0) else acc), uses=[n]))
        return reads, mf
    def dma_o(s_):
        i, hf = STG[s_]
        out = ['s_add_u32 s3, s%d, %d' % (sKg, i), 's_and_b32 s3, s3, 3', 's_lshl_b32 s3, s3, 18', 's_add_u32 s%d, s3, s%d' % (sT0, sHd + hf),
               's_add_u32 m0, s5, %d' % (OSLOT[s_] * 32768), 's_add_u32 s%d, s%d, 4096' % (sT1, sT0)]
        S_ = SWS2 if hf else SWS
        for m in range(4): out.append('buffer_load_dwordx4 v%d, %s, s%d offen offset:%d sc1 lds' % (vOoff, sr(S_, 4), sT0, m * 1024))
        out += ['s_add_u32 m0, m0, 4096', 's_nop 0']
        for m in range(4): out.append('buffer_load_dwordx4 v%d, %s, s%d offen offset:%d sc1 lds' % (vOoff, sr(S_, 4), sT1, m * 1024))
        return out
    def signal(sF, vown, vpoll, cnt):
        return ['v_mov_b32 v38, 1', 's_mov_b64 exec, 1',
                'buffer_store_dword v38, v%d, %s, s%d offen sc1' % (vown, sr(SWS, 4), sF),
                's_mov_b64 exec, %d' % ((1 << cnt) - 2),
                'buffer_load_dword v39, v%d, %s, s%d offen sc1' % (vpoll, sr(SWS, 4), sF),
                's_mov_b64 exec, %s' % sr(sEx, 2)]
    def poll(n, sF, vpoll, cnt):
        a('s_mov_b64 exec, %d' % ((1 << cnt) - 2))
        a('s_mov_b32 s%d, 0' % sSpin)
        a.label('L_poll%d' % n)
        a('s_waitcnt vmcnt(0)')
        a('v_cmp_ne_u32 vcc, 1, v39')
        a('s_cbranch_vccz L_poll%d_out' % n)
        a('s_add_u32 s%d, s%d, 1' % (sSpin, sSpin)); a('s_cmp_ge_u32 s%d, %d' % (sSpin, OPT['spin'])); a('s_cbranch_scc1 L_poll%d_out' % n)
        if OPT['psleep']: a('s_sleep %d' % OPT['psleep'])
        a('buffer_load_dword v39, v%d, %s, s%d offen sc1' % (vpoll, sr(SWS, 4), sF))
        a('s_branch L_poll%d' % n)
        a.label('L_poll%d_out' % n)
        a('s_mov_b64 exec, %s' % sr(sEx, 2))
    a('v_add_u32 v3, s%d, v1' % sJ); a('v_and_b32 v3, 7, v3'); a('v_lshlrev_b32 v3, 2, v3')
    a('v_add_u32 v4, s%d, v1' % sKg); a('v_and_b32 v4, 3, v4'); a('v_lshlrev_b32 v4, 2, v4')
    sHd, SWS2 = 36, 40
    a('s_lshl_b32 s7, s%d, 16' % sKg)
    for hf in range(2):
        a('s_add_u32 s3, s%d, s%d' % (sJ, sWave)); a('s_add_u32 s3, s3, %d' % (1 + 4 * hf)); a('s_and_b32 s3, s3, 7'); a('s_lshl_b32 s3, s3, 13')
        a('s_add_u32 s%d, s3, s7' % (sHd + hf))
    srd(SWS2, SWS, SWS + 1, None, None)
    a('s_cmp_eq_u32 s%d, 3' % sWave); a('s_cselect_b32 s%d, 0, 0x400000' % (SWS2 + 2))
    a('s_lshl_b32 s6, s%d, 14' % sKg); a('s_add_u32 s6, s6, s%d' % sPb)
    for x in ['s_waitcnt vmcnt(0)', 's_mov_b32 s%d, 0' % sSpin, 'L_init:', 'v_readfirstlane_b32 s3, v38', 's_add_u32 s%d, s%d, 1' % (sSpin, sSpin),
              's_cmp_ge_u32 s3, 256', 's_cbranch_scc1 L_init_ok', 's_cmp_ge_u32 s%d, %d' % (sSpin, OPT['spin']), 's_cbranch_scc1 L_init_ok',
              'v_mov_b32 v39, 0', 'buffer_load_dword v38, v39, %s, 0 offen sc1' % sr(SDBG, 4), 's_waitcnt vmcnt(0)', 's_branch L_init', 'L_init_ok:'] + signal(sF1, 36, 3, 8): a(x)
    if OPT['sent']:
        for k in range(4): a('v_mov_b32 v%d, -1' % (POOL[0] + k))
        a('s_add_u32 s3, s%d, 3' % sKg); a('s_and_b32 s3, s3, 3'); a('s_lshl_b32 s3, s3, 16'); a('s_add_u32 s3, s3, s6')
        for g in range(4): a('buffer_store_dwordx4 %s, v%d, %s, s3 offen offset:%d sc1' % (vr(POOL[0], 4), vOoff, sr(SWS, 4), g * 1024))
    stamp(4)
    poll(1, sF1, 3, 8)
    a('s_waitcnt lgkmcnt(0)')
    a('s_barrier')
    stamp(5)
    r, _ = op_parts(0)
    emit_reads(r[:NPK])
    for k in range(1, OPT['odep']):
        for x in dma_o(k): a(x)
    def send(i):
        out = ['s_add_u32 s3, s%d, %d' % (sKg, i), 's_and_b32 s3, s3, 3', 's_lshl_b32 s3, s3, 16', 's_add_u32 s%d, s3, s6' % sT2]
        for g in range(4):
            out.append('buffer_store_dwordx4 %s, v%d, %s, s%d offen offset:%d sc1' % (vr(ACC + 16 * i + 4 * g, 4), vOoff, sr(SWS, 4), sT2, g * 1024))
        return out
    SENT = OPT['sent']
    sRc = 36
    def recv(i, S_=SWS):
        return ['buffer_load_dwordx4 %s, v%d, %s, s%d offen offset:%d sc1' % (vr(vO + 16 * i + 4 * g, 4), vOoff, sr(S_, 4), sRc + i - 1, g * 1024) for g in range(4)]
    rsetup = ['s_lshl_b32 s4, s%d, 16' % sKg, 's_add_u32 s4, s4, s%d' % sPb]
    for i in range(1, 4):
        rsetup += ['s_add_u32 s3, s%d, %d' % (sKg, i), 's_and_b32 s3, s3, 3', 's_lshl_b32 s3, s3, 14', 's_add_u32 s%d, s3, s4' % (sRc + i - 1)]
    osetup = ['v_and_b32 v2, 15, v1', 'v_lshrrev_b32 v5, 4, v1', 'v_lshlrev_b32 v2, 11, v2', 'v_lshl_add_u32 v2, v5, 4, v2',
              's_lshl_b32 s3, s%d, 18' % sB, 's_lshl_b32 s4, s%d, 16' % sKg, 's_add_u32 s7, s3, s4',
              's_cmp_lt_u32 s%d, 2' % sWave, 's_cselect_b32 s4, s%d, s%d' % (sPA, sPB),
              's_add_u32 s7, s7, s4', 's_lshl_b32 s4, s%d, 6' % sWave, 's_add_u32 s7, s7, s4', 's_add_u32 s39, s7, 0x8000']
    pollreq = ['s_mov_b64 exec, 14', 'buffer_load_dword v39, v4, %s, s%d offen sc1' % (sr(SWS, 4), sF2), 's_mov_b64 exec, %s' % sr(sEx, 2)]
    D = OPT['odep']
    fifo = [k for k in range(1, D) for _ in range(8)]
    for s_ in range(9):
        r, m = op_parts(s_)
        n = len(m)
        fill = {}
        g = 0
        if s_ + D <= 8:
            g = spread(fill, dma_o(s_ + D), g, OPT['ostep']); fifo += [s_ + D] * 8
        if s_ in (3, 5, 7):
            g = spread(fill, send(STG[s_ - 1][0]), max(g, 3), 2); fifo += [0] * 4
        assert g - 2 < n - LA, (s_, g)
        if s_ < 8:
            rn, _ = op_parts(s_ + 1, n)
            vm = len(fifo) - 1 - max(k for k, x in enumerate(fifo) if x == s_ + 1)
            sched(a, m, r + rn[:NPK], LA, npre=NPK, fill=fill, events={len(r): ['s_waitcnt vmcnt(%d)' % vm, 's_barrier']}, evrange=(n - LA, n - 1), pair=4)
        else:
            for k, x in enumerate(rsetup + osetup): fill.setdefault(12 + k // 2, []).append(x)
            fill[OPT['sig2']] = ['L_sig2:', 's_waitcnt vmcnt(0)'] + signal(sF2, 37, 4, 4)
            sched(a, m, r, LA, npre=NPK, fill=fill, pair=4)
    stamp(6)
    stamp(7)
    if SENT:
        a('s_cmp_eq_u32 s%d, 0' % sBlk); a('s_cbranch_scc1 L_have')
        for x in pollreq: a(x)
    poll(2, sF2, 4, 4)
    for i in (3, 2, 1):
        for x in recv(i): a(x)
    a.label('L_have'); a('s_nop 3')
    stamp(8)
    a('s_mov_b32 s%d, 0' % sSpin)
    for i in (3, 2, 1):
        b = vO + 16 * i
        a('s_waitcnt vmcnt(%d)' % (4 * (i - 1)))
        if SENT and i == 1:
            a.label('L_rc%d' % i)
            a('v_max3_u32 v6, v%d, v%d, v%d' % (b, b + 1, b + 2))
            for k in range(3, 15, 2): a('v_max3_u32 v6, v6, v%d, v%d' % (b + k, b + k + 1))
            a('v_max_u32 v6, v6, v%d' % (b + 15))
            a('v_cmp_eq_u32 vcc, -1, v6')
            a('s_cbranch_vccz L_rc%d_ok' % i)
            a('s_add_u32 s%d, s%d, 1' % (sSpin, sSpin)); a('s_cmp_ge_u32 s%d, %d' % (sSpin, OPT['spin'])); a('s_cbranch_scc1 L_rc%d_ok' % i)
            for x in recv(i): a(x)
            a('s_waitcnt vmcnt(0)')
            a('s_branch L_rc%d' % i)
            a.label('L_rc%d_ok' % i)
        for r in range(16): a('v_add_f32 v%d, v%d, v%d' % (ACC + r, ACC + r, b + r))
    for r in range(0, 16, 2): a('v_cvt_pk_bf16_f32 v%d, v%d, v%d' % (vQ + r // 2, ACC + r, ACC + r + 1))
    a('buffer_store_dwordx4 %s, v2, %s, s7 offen' % (vr(vQ, 4), sr(SOUT, 4)))
    a('buffer_store_dwordx4 %s, v2, %s, s39 offen' % (vr(vQ + 4, 4), sr(SOUT, 4)))
    if OPT['stamps']:
        a('s_waitcnt vmcnt(0)'); stamp(9)
    a.label('L_end')
    a('s_endpgm')
    for lab, S in rare:
        a.label(lab)
        a('s_nop 15')
        for qb in range(2):
            d, al = vDelta + qb, vAlpha + qb
            rowmax(S, qb, d)
            a('v_max_f32 v%d, 0, v%d' % (d, d))
            a('v_sub_f32 v%d, 0, v%d' % (vTmp, d))
            a('v_exp_f32 v%d, v%d' % (al, vTmp))
            for j in range(16): a('v_sub_f32 v%d, v%d, v%d' % (S + 16 * qb + j, S + 16 * qb + j, d))
            for j in range(4): a('v_sub_f32 v%d, v%d, v%d' % (vNegM + 4 * qb + j, vNegM + 4 * qb + j, d))
            for j in range(4): a('v_mul_f32 v%d, v%d, v%d' % (vLs + 4 * qb + j, vLs + 4 * qb + j, al))
            for db in range(8):
                for j in range(4): a('v_mul_f32 v%d, v%d, v%d' % (vO + 8 * db + 4 * qb + j, vO + 8 * db + 4 * qb + j, al))
        a('s_nop 3')
        a('s_branch %s_ret' % lab)
    return a

def padit(a, l0, l1, n, every):
    i0 = [k for k, i in enumerate(a.ins) if i.text.startswith(l0)][0]
    i1 = [k for k, i in enumerate(a.ins) if i.text.startswith(l1)][0]
    keep = []; c = 0
    for i in a.ins[i0:i1]:
        if i.kind == 'mfma':
            c += 1
            if c % every == 0: keep.append(Ins('s_nop %d' % (n - 1)))
        keep.append(i)
    a.ins[i0:i1] = keep

def main():
    a = gen()
    if OPT['opm']:
        i0 = [k for k, i in enumerate(a.ins) if i.text.startswith('L_st5:')][0]
        i1 = [k for k, i in enumerate(a.ins) if i.text.startswith('L_st6:')][0] - 12
        keep = []
        for i in a.ins[i0:i1]:
            if (OPT['opm'] & 1) and i.kind == 'vmem' and 'lds' in i.text: continue
            if (OPT['opm'] & 2) and i.op == 's_barrier': continue
            if (OPT['opm'] & 4) and i.kind == 'vmem' and 'store_dwordx4' in i.text: continue
            if (OPT['opm'] & 8) and i.kind == 'ds': continue
            keep.append(i)
        a.ins[i0:i1] = keep
    if OPT['pad']: padit(a, 'L_at:', 'L_at_last:', OPT['pad'], 2)
    if OPT['qpad']: padit(a, 'L_qp:', 'L_at:', OPT['qpad'], 2)
    if OPT['opad']: padit(a, 'L_poll1_out:', 'L_end:', OPT['opad'], 2)
    import io, contextlib
    buf = io.StringIO()
    with contextlib.redirect_stdout(buf):
        bad = check_program(a)
    sys.stderr.write(buf.getvalue())
    for b in bad: sys.stderr.write('BRANCH HAZARD %s\n' % (b,))
    print('; @launch grid=(256,1,1) block=(256,1,1) lds=163840')
    print('.amdgcn_target "amdgcn-amd-amdhsa--gfx950"\n.text')
    print(a.text())
    print('''.section .rodata,"a"
.p2align 6
.amdhsa_kernel %s
  .amdhsa_next_free_vgpr 512
  .amdhsa_next_free_sgpr 100
  .amdhsa_accum_offset 256
  .amdhsa_group_segment_fixed_size 0
  .amdhsa_kernarg_size 64
  .amdhsa_user_sgpr_count 2
  .amdhsa_user_sgpr_kernarg_segment_ptr 1
  .amdhsa_system_sgpr_workgroup_id_x 1
.end_amdhsa_kernel''' % NAME)
main()
```

```python
import sys, math, struct
from asmlib import *

OPT = dict(kpol='nt', vpol='nt', xwpol='-', wopol='-', stamps=0, la=14, qla=14, spin=0x8000, nokv=0, psleep=1, sigat=27,
           stagb=5, nowo=0, atm=0, pair=6, kv0at=9, dwg=0, lvalu=0, mx0=44, qpm=0, odep=2, ctouch=0, pad=0, qpad=0, opad=0, ptouch=0, ab=0, abbit=3, sent=0, ldat=28, opm=0, ostep=3, sig2=1, stg='', unr=0, nst=4, st0=4, stper=4, stp='', kvtouch=0, wabs=1, sfirst=0, abm=1)
for a_ in sys.argv[1:]:
    k, v = a_.split('=')
    assert k in OPT, k
    OPT[k] = v if not v.lstrip('-').isdigit() else int(v)
def pol(k): return str(OPT[k]).replace('+', ' ').replace('-', '')
def f32bits(x): return struct.unpack('<I', struct.pack('<f', x))[0]
QSCALE = f32bits(math.log2(math.e) / math.sqrt(128.0))
THRESH = f32bits(8.0)
def vr(b, n=1): return 'v%d' % b if n == 1 else 'v[%d:%d]' % (b, b + n - 1)
def ar(b, n=1): return 'a%d' % b if n == 1 else 'a[%d:%d]' % (b, b + n - 1)
def sr(b, n=1): return 's%d' % b if n == 1 else 's[%d:%d]' % (b, b + n - 1)
MFMA = 'v_mfma_f32_16x16x32_bf16'
NAME = 'standalone__mha_block_cached__near_ridge_kernel'

def is_valu(x): return x.startswith('v_') and not x.startswith('v_mfma')
def cost(x):
    if x.endswith(':'): return 0
    return 2 if x.startswith('v_exp') else 1

def sched(a, mf, reads, la, npre=0, fill=None, events=None, pair=2, evrange=None, maxrd=2):
    fill = fill or {}; events = events or {}
    st = dict(done=0, nxt=npre)
    def issue(cur, lim):
        n = 0
        while st['nxt'] < len(reads) and n < lim:
            k = st['nxt']; rd = reads[k]
            if rd['first'] > cur + la or rd.get('free', -1) > cur or k - st['done'] >= 15: break
            if k in events:
                if evrange is not None: assert evrange[0] <= cur <= evrange[1], ('event gap', cur, evrange)
                for x in events[k]: a(x)
            a(rd['t']); st['nxt'] += 1; n += 1
    def wait_for(i):
        us = mf[i]['uses']
        assert all(u < st['nxt'] for u in us), ('read not issued', i, mf[i], st)
        if us and max(us) + 1 > st['done']:
            pos = max(us) + 1
            for j in range(i + 1, min(i + pair, len(mf))):
                if mf[j]['uses'] and max(mf[j]['uses']) < st['nxt']: pos = max(pos, max(mf[j]['uses']) + 1)
            a('s_waitcnt lgkmcnt(%d)' % (st['nxt'] - pos)); st['done'] = pos
    def fillers(lst, cur, lim):
        if any(x.endswith(':') for x in lst):
            issue(cur, lim)
            for x in lst: a(x)
            return
        evgap = st['nxt'] in events
        if evgap: issue(cur, lim)
        for x in lst:
            if not is_valu(x): a(x)
        if not evgap: issue(cur, lim)
        for x in lst:
            if x.startswith('v_exp'): a(x)
        for x in lst:
            if is_valu(x) and not x.startswith('v_exp'): a(x)
    fillers(fill.get(-1, []), -1, 99)
    wait_for(0)
    for i, m in enumerate(mf):
        a(m['t'])
        if i + 1 < len(mf):
            if not all(u < st['nxt'] for u in mf[i + 1]['uses']): issue(i, 99)
            wait_for(i + 1)
        fillers(fill.get(i, []), i, maxrd if i + 1 < len(mf) else 99)
    assert st['nxt'] == len(reads), (st, len(reads))

def bsched(a, mf, reads, la, npre=0, events=None, fixed=None, streams=(), pair=2, evrange=None, cap=3):
    fixed = {k: list(v) for k, v in (fixed or {}).items()}
    n = len(mf)
    t = Asm(); sched(t, mf, reads, la, npre=npre, fill=fixed, events=events, pair=pair)
    load = {g: 0 for g in range(-1, n)}; g = -1
    for i in t.ins:
        if i.kind == 'mfma': g += 1
        elif i.kind != 'none': load[g] += cost(i.text)
    load[n - 1] += load[-1] + 1
    total = sum(load[g] for g in range(n)) + sum(cost(o[0]) for s_ in streams for o in s_)
    fill = {g: list(fixed.get(g, [])) for g in range(-1, n)}
    pos = [0] * len(streams); done = 0
    for g in range(n):
        done += load[g]; used = load[g]
        target = total * (g + 1.0) / n + 1.0
        while True:
            cand = sorted((streams[k][pos[k]][2], k) for k in range(len(streams)) if pos[k] < len(streams[k]) and streams[k][pos[k]][1] <= g)
            ok = False
            for dl, k in cand:
                c = cost(streams[k][pos[k]][0])
                if dl <= g or used + c <= 2 or (used + c <= cap and done + c <= target):
                    fill[g].append(streams[k][pos[k]][0]); used += c; done += c; pos[k] += 1; ok = True
                    break
            if not ok: break
    assert all(pos[k] == len(streams[k]) for k in range(len(streams))), pos
    sched(a, mf, reads, la, npre=npre, fill=fill, events=events, pair=pair, evrange=evrange)

STAMP_OFF = 496 * 1024 * 1024
NST = 24

def gen():
    a = Asm()
    a.raw('.globl %s\n.p2align 8\n.type %s,@function' % (NAME, NAME)); a.label(NAME)
    SX, SW, SK, SV, SWS, SWO, SOUT, SDBG, SST = 8, 12, 16, 20, 24, 56, 60, 64, 68
    sWave, sLdsW, sAoff, sBoff, sCnt, sH, sB, sT0, sT1, sOb, sKoff, sVoff, sThr = 29, 30, 31, 32, 33, 34, 35, 46, 47, 48, 49, 50, 51
    sQs, sJ, sKg, sPA, sPB = 52, 54, 55, 44, 45
    sWoP, sWoB, sF1, sF2, sSpin, sEx, sT2, sPb, sBlk = 72, 73, 74, 75, 76, 78, 80, 81, 83
    vKoff, vVoff, vWoOff, vOoff = 10, 12, 14, 15
    vKaddr, vTaddr, vWoAddr = 16, 20, 28
    vMax, vTmp, vTmp2, vDelta, vAlpha = 29, 30, 31, 32, 34
    vQ, vNegM, vLs, vS, vO = 40, 72, 80, [88, 120], 152
    POOL = [216 + 4 * i for i in range(8)]
    vOnes = 248
    STGAT = [int(x) for x in str(OPT['stg']).split('+') if x != '']
    AB = OPT['ab'] or len(STGAT) or (OPT['nst'] if OPT['unr'] else 0)
    STP = [int(x) for x in str(OPT['stp']).split('+') if x != ''] or list(range(AB))
    assert len(STP) == AB
    WABS = OPT['wabs'] and not AB
    sGrp, sLim1, sMv, sMk, vStg = 28, 77, 82, 96, 31
    vXoff, vWoff, vXaddr, vTw = vQ, vQ + 4, vQ + 22, vQ + 24
    vOaddr = vKaddr
    AUX, BB = 65536, 98304
    vs = lambda t: (t + 3) & 3
    WS_P, WS_F1, WS_F2 = 0x800000, 0x1800000, 0x1810000

    def stamp(idx, dyn=None):
        if not OPT['stamps']: return
        if OPT['stamps'] == 5 and idx not in (0, 9):
            if idx == 11: a.label('L_st11')
            return
        lab = 'L_st%d' % idx
        if OPT['stamps'] == 3:
            slot = {0: 0, 10: 1, 11: 2, 1: 3, 2: 4, 3: 5, 4: 6, 5: 7, 6: 8, 7: 9, 8: 10, 9: 11, 12: 12}[idx]
            a('s_cmp_lg_u32 s%d, 0' % sWave); a('s_cbranch_scc1 %s' % lab)
            a('s_cmp_lg_u32 s2, %d' % OPT['dwg']); a('s_cbranch_scc1 %s' % lab)
            if dyn is not None:
                a('s_cmp_gt_u32 s%d, 2' % dyn); a('s_cbranch_scc1 %s' % lab)
            if idx == 7: a('s_mov_b32 s84, s96')
            else:
                a('s_memrealtime s[84:85]'); a('s_waitcnt lgkmcnt(0)')
            a('v_mov_b32 v252, s84'); a('v_mov_b32 v254, 0')
            a('s_mov_b32 s86, %d' % (4 + 4 * slot))
            if dyn is not None:
                a('s_lshl_b32 s87, s%d, 2' % dyn); a('s_add_u32 s86, s86, s87')
            a('buffer_store_dword v252, v254, %s, s86 offen sc1' % sr(SDBG, 4))
            a.label(lab)
            return
        a('s_cmp_lg_u32 s%d, 0' % sWave); a('s_cbranch_scc1 %s' % lab)
        a('s_memtime s[84:85]' if OPT['stamps'] == 2 else 's_memrealtime s[84:85]')
        if OPT['stamps'] == 4:
            a('s_memtime s[86:87]'); a('s_waitcnt lgkmcnt(0)'); a('s_mov_b32 s85, s86')
        a('s_waitcnt lgkmcnt(0)')
        a('v_mov_b32 v252, s84'); a('v_mov_b32 v253, s85'); a('v_mov_b32 v254, 0')
        a('s_mul_i32 s86, s2, %d' % (NST * 8)); a('s_add_u32 s86, s86, %d' % (idx * 8))
        if dyn is not None:
            a('s_lshl_b32 s87, s%d, 3' % dyn); a('s_add_u32 s86, s86, s87')
        a('buffer_store_dwordx2 v[252:253], v254, %s, s86 offen' % sr(SST, 4))
        a.label(lab)
    def srd(d, lo, hi, off, size):
        if off is None:
            a('s_mov_b32 s%d, s%d' % (d, lo)); a('s_mov_b32 s%d, s%d' % (d + 1, hi))
        else:
            a('s_add_u32 s%d, s%d, %s' % (d, lo, off)); a('s_addc_u32 s%d, s%d, 0' % (d + 1, hi))
        if size is not None: a('s_mov_b32 s%d, %s' % (d + 2, size))
        a('s_mov_b32 s%d, 0x00020000' % (d + 3))

    if OPT['stamps'] == 3: a('s_memrealtime s[96:97]')
    a('s_cmp_ge_u32 s2, 256')
    a('s_cbranch_scc1 L_end')
    a('s_load_dwordx8 s[36:43], s[0:1], 0')
    a('s_load_dwordx8 s[88:95], s[0:1], 32')
    if OPT['ctouch']:
        a('s_getpc_b64 s[4:5]')
        a('s_and_b32 s4, s4, 0xffffff00')
        a('s_lshr_b32 s3, s2, 3'); a('s_lshl_b32 s3, s3, 10'); a('s_add_u32 s4, s4, s3'); a('s_addc_u32 s5, s5, 0')
        a('v_and_b32 v2, 7, v0'); a('v_lshlrev_b32 v2, 7, v2'); a('v_mov_b32 v3, s5'); a('v_add_co_u32 v2, vcc, s4, v2'); a('v_addc_co_u32 v3, vcc, 0, v3, vcc')
        a('global_load_dword v255, v[2:3], off')
    a('v_lshrrev_b32 v2, 6, v0')
    a('v_and_b32 v1, 63, v0')
    a('v_readfirstlane_b32 s%d, v2' % sWave)
    a('s_and_b32 s%d, s2, 3' % sKg); a('s_lshl_b32 s3, s%d, 3' % sKg); a('s_lshr_b32 s4, s2, 3'); a('s_and_b32 s%d, s4, 7' % sJ)
    a('s_add_u32 s%d, s3, s%d' % (sH, sJ)); a('s_and_b32 s3, s2, 4'); a('s_lshr_b32 s4, s4, 3'); a('s_add_u32 s%d, s3, s4' % sB)
    a('s_lshl_b32 s%d, s%d, 12' % (sLdsW, sWave))
    a('v_lshrrev_b32 v2, 4, v1')
    a('v_and_b32 v3, 15, v1')
    a('v_lshrrev_b32 v4, 3, v1')
    a('v_and_b32 v5, 7, v1')
    a('v_lshlrev_b32 v6, 1, v2'); a('v_xor_b32 v6, v6, v3'); a('v_lshlrev_b32 v6, 4, v6')
    a('v_xor_b32 v9, 0x80, v6')
    a('s_lshl_b32 s3, s%d, 17' % sWave)
    a('v_lshl_add_u32 v7, v2, 13, v6'); a('v_add_u32 v%d, s3, v7' % vWoff)
    a('v_add_u32 v%d, %d, v%d' % (vWoff + 1, 32768 - 1024, vWoff))
    a('v_lshl_add_u32 v7, v2, 13, v9'); a('v_add_u32 v7, s3, v7')
    a('v_add_u32 v%d, %d, v7' % (vWoff + 2, 2 * (32768 - 1024))); a('v_add_u32 v%d, %d, v7' % (vWoff + 3, 3 * (32768 - 1024)))
    a('s_lshl_b32 s3, s%d, 16' % sWave)
    a('v_xor_b32 v7, v2, v5'); a('v_xor_b32 v8, 4, v7')
    a('v_lshlrev_b32 v7, 4, v7'); a('v_lshlrev_b32 v8, 4, v8')
    a('v_lshl_add_u32 v7, v4, 11, v7'); a('v_lshl_add_u32 v8, v4, 11, v8')
    a('v_add_u32 v%d, s3, v7' % vXoff); a('v_add_u32 v8, s3, v8')
    a('v_add_u32 v%d, %d, v8' % (vXoff + 1, 1 * (16384 - 1024)))
    a('v_add_u32 v%d, %d, v%d' % (vXoff + 2, 2 * (16384 - 1024), vXoff))
    a('v_add_u32 v%d, %d, v8' % (vXoff + 3, 3 * (16384 - 1024)))
    a('s_lshl_b32 s3, s%d, 1' % sH); a('s_mul_i32 s4, s%d, %d' % (sB, OPT['stagb'])); a('s_add_u32 s3, s3, s4'); a('s_and_b32 s3, s3, 15')
    a('s_lshl_b32 s%d, s3, 7' % sAoff)
    a('s_lshl_b32 s5, s%d, 18' % sB); a('s_lshl_b32 s6, s%d, 8' % sH); a('s_sub_u32 s%d, 0x800000, s6' % (SW + 2))
    a('s_waitcnt lgkmcnt(0)')
    srd(SX, 36, 37, 's5', '0x40000'); srd(SW, 42, 43, 's6', None)

    XST = [16384, 32768, 49152, 65536]
    WST = [BB, BB + 16384, BB + 32768, BB - 16384]
    def dma_xw(st):
        out = ['s_add_u32 m0, s%d, %d' % (sLdsW, XST[st]), 's_lshl_b32 s%d, s%d, 12' % (sBoff, sAoff)]
        for i in range(4):
            out.append('buffer_load_dwordx4 v%d, %s, s%d offen offset:%d %s lds' % (vXoff + i, sr(SX, 4), sAoff, i * 1024, pol('xwpol')))
        out += ['s_add_u32 m0, s%d, %d' % (sLdsW, WST[st]), 's_add_u32 s%d, s%d, 128' % (sAoff, sAoff)]
        for i in range(4):
            out.append('buffer_load_dwordx4 v%d, %s, s%d offen offset:%d %s lds' % (vWoff + i, sr(SW, 4), sBoff, i * 1024, pol('xwpol')))
            if i == 0: out.append('s_and_b32 s%d, s%d, 0x7ff' % (sAoff, sAoff))
        return out
    def dma_kv(t, S, so, vo, base, p, sm0=None):
        out = ['s_add_u32 m0, s%d, %d' % (sLdsW, base), 's_cmp_lt_u32 s%d, 0x80000' % so, 's_cselect_b32 s%d, %s, 0' % (S + 2, '0' if OPT['nokv'] else '0x80000')]
        if sm0 is not None:
            out = ['s_mov_b32 m0, s%d' % sm0, 's_cmp_lt_u32 s%d, s%d' % (so, sLim1), out[2]]
        for i in range(4):
            out.append('buffer_load_dwordx4 v%d, %s, s%d offen offset:%d %s lds' % (vo + (i >> 1), sr(S, 4), so, i * 1024, pol(p)))
        out.append('s_add_u32 s%d, s%d, 0x4000' % (so, so))
        return out
    dma_k = lambda t, sm0=None: dma_kv(t, SK, sKoff, vKoff, (t & 3) * 16384, 'kpol', sm0)
    dma_v = lambda t, sm0=None: dma_kv(t, SV, sVoff, vVoff, BB + vs(t) * 16384, 'vpol', sm0)
    def kv_setup():
        a('s_lshl_b32 s3, s%d, 5' % sB); a('s_add_u32 s3, s3, s%d' % sH); a('s_lshl_b32 s3, s3, 19')
        srd(SK, 38, 39, 's3', '0x80000'); srd(SV, 40, 41, 's3', '0x80000')
        a('v_lshl_add_u32 v7, v2, 8, v6'); a('v_add_u32 v%d, s%d, v7' % (vVoff, sLdsW))
        a('v_lshl_add_u32 v7, v2, 8, v9'); a('v_add_u32 v%d, s%d, v7' % (vVoff + 1, sLdsW))
        a('s_lshl_b32 s3, s%d, 3' % sWave); a('s_and_b32 s3, s3, 8')
        a('v_xor_b32 v8, v2, v3'); a('v_xor_b32 v8, s3, v8')
        for i in range(2):
            a('v_xor_b32 v7, %d, v8' % (4 * i)); a('v_lshlrev_b32 v7, 4, v7'); a('v_lshl_add_u32 v7, v2, 8, v7')
            a('v_add_u32 v%d, s%d, v7' % (vKoff + i, sLdsW))
    def dma_wo():
        out = ['s_and_b32 s%d, s%d, 0x1c0000' % (sT2, sWoP), 's_add_u32 s%d, s%d, s%d' % (sT2, sT2, sWoB),
               's_lshl_b32 m0, s%d, 1' % sLdsW, 's_add_u32 m0, m0, %d' % AUX, 's_add_u32 s%d, s%d, 0x40000' % (sWoP, sWoP)]
        for i in range(8):
            if i == 4: out.append('s_add_u32 m0, m0, 4096')
            if i: out.append('s_add_u32 s%d, s%d, %d' % (sT2, sT2, 8192 - 1024 + (4096 if i == 4 else 0)))
            out.append('buffer_load_dwordx4 v%d, %s, s%d offen offset:%d %s lds' % (vWoOff, sr(SWO, 4), sT2, (i & 3) * 1024, pol('wopol')))
        return out
    def groups(lst):
        gs = [[]]
        for x in lst:
            gs[-1].append(x)
            if x.startswith('buffer'): gs.append([])
        if gs[-1]: gs[-2] += gs[-1]
        return gs[:-1]
    def spread(fixed, lst, g0, step, per=2):
        g = g0
        for grp in groups(lst):
            pre = grp[:[x.startswith('buffer') for x in grp].index(True)]
            rest = grp[len(pre):]
            while len(pre) > 1:
                fixed.setdefault(g, []).extend(pre[:2]); pre = pre[2:]; g += 1
            fixed.setdefault(g, []).extend(pre + rest); g += step
        return g

    def stage_loads(p):
        p = STP[p]
        out = ['s_mov_b32 s3, %d' % ((4 * p + 4) * 16384), 's_mov_b32 s4, %d' % ((4 * p + 6) * 16384)]
        for i in range(4): out.append('buffer_load_dwordx4 %s, v%d, %s, s3 offen offset:%d %s' % (ar(32 * p + 4 * i, 4), vVoff + (i >> 1), sr(SV, 4), i * 1024, pol('vpol')))
        for i in range(4): out.append('buffer_load_dwordx4 %s, v%d, %s, s4 offen offset:%d %s' % (ar(32 * p + 16 + 4 * i, 4), vKoff + (i >> 1), sr(SK, 4), i * 1024, pol('kpol')))
        return out
    if OPT['ab']:
        a('s_mov_b32 s%d, 0' % sGrp)
        a('s_lshr_b32 s7, s2, %d' % (3 + OPT['abbit'])); a('s_and_b32 s7, s7, %d' % OPT['abm']); a('s_cbranch_scc0 L_grpa')
        a('s_mul_i32 s7, s7, %d' % (AB // OPT['abm']))
        kv_setup()
        for p in range(AB):
            if p and p % (AB // OPT['abm']) == 0:
                a('s_cmp_le_u32 s7, %d' % p); a('s_cbranch_scc1 L_grpa')
            for x in stage_loads(p): a(x)
            a('s_or_b32 s%d, s%d, %d' % (sGrp, sGrp, 1 << STP[p]))
        a.label('L_grpa')
    for x in dma_xw(0): a(x)
    if OPT['kvtouch']: kv_setup()
    if AB:
        if not OPT['ab']: a('s_mov_b32 s%d, %d' % (sGrp, sum(1 << p for p in STP)))
        a('v_lshlrev_b32 v7, 4, v1'); a('v_add_u32 v7, s%d, v7' % sLdsW); a('v_add_u32 v%d, %d, v7' % (vStg, BB))
    srd(SWS, 94, 95, None, '0x2000000'); srd(SWO, 88, 89, None, '0' if OPT['nowo'] else '0x800000'); srd(SOUT, 90, 91, None, '0x200000'); srd(SDBG, 92, 93, None, '256')
    if OPT['stamps']: srd(SST, 94, 95, str(STAMP_OFF), '0x100000')
    stamp(0)
    a('s_mov_b64 %s, exec' % sr(sEx, 2))
    a('s_lshl_b32 s3, s%d, 2' % sB); a('s_add_u32 s3, s3, s%d' % sKg); a('s_lshl_b32 s3, s3, 10'); a('s_lshl_b32 s4, s%d, 8' % sWave)
    a('s_add_u32 s3, s3, s4'); a('s_add_u32 s%d, s3, 0x%x' % (sF1, WS_F1))
    a('s_lshl_b32 s3, s%d, 3' % sB); a('s_add_u32 s5, s3, s%d' % sJ); a('s_lshl_b32 s3, s5, 10')
    a('s_add_u32 s3, s3, s4'); a('s_add_u32 s%d, s3, 0x%x' % (sF2, WS_F2))
    a('s_lshl_b32 s3, s%d, 2' % sJ); a('s_lshl_b32 s4, s%d, 2' % sKg)
    a('v_mov_b32 v36, s3'); a('v_mov_b32 v37, s4'); a('v_mov_b32 v38, 0'); a('v_mov_b32 v39, 0')
    a('s_lshl_b32 s3, s5, 18'); a('s_add_u32 s3, s3, s%d' % sLdsW); a('s_add_u32 s%d, s3, 0x%x' % (sPb, WS_P))
    a('s_mul_i32 s3, s%d, 0x14000' % sKg); a('s_add_u32 s3, s3, s%d' % sPb)
    a('s_lshl_b32 s4, s%d, 18' % sB)
    a('s_mov_b64 exec, 1')
    a('buffer_atomic_swap v38, v36, %s, s%d offen sc0 sc1' % (sr(SWS, 4), sF1))
    a('buffer_atomic_swap v39, v37, %s, s%d offen sc0 sc1' % (sr(SWS, 4), sF2))
    if OPT['kvtouch']:
        a('s_lshl_b32 s7, s%d, 21' % sKg)
        a('buffer_load_dword v255, v36, %s, 0 offen nt' % sr(SK, 4))
        a('buffer_load_dword v255, v36, %s, 0 offen nt' % sr(SV, 4))
        a('buffer_load_dword v255, v36, %s, s7 offen' % sr(SWO, 4))
    if OPT['ptouch']:
        a('buffer_load_dword v255, v36, %s, s3 offen sc1' % sr(SWS, 4))
        a('buffer_load_dword v255, v36, %s, s4 offen sc1' % sr(SOUT, 4))
    a('s_mov_b64 exec, %s' % sr(sEx, 2))
    if not OPT['kvtouch']: kv_setup()
    a('s_mov_b32 s%d, 0' % sKoff); a('s_mov_b32 s%d, 0' % sVoff); a('s_mov_b32 s%d, 0' % sWoP if WABS else 's_lshl_b32 s%d, s%d, 18' % (sWoP, sJ))
    a('s_lshl_b32 s3, s%d, 21' % sKg); a('s_lshl_b32 s4, s%d, 16' % sWave); a('s_add_u32 s%d, s3, s4' % sWoB)
    a('s_lshr_b32 s3, s%d, 1' % sJ); a('s_and_b32 s4, s%d, 1' % sJ); a('s_lshl_b32 s4, s4, 2'); a('s_add_u32 s3, s3, s4')
    a('s_lshl_b32 s%d, s3, 7' % sPA)
    a('s_add_u32 s3, s3, 2'); a('s_and_b32 s3, s3, 7'); a('s_add_u32 s3, s3, 7'); a('s_lshl_b32 s%d, s3, 7' % sPB)
    a('v_lshlrev_b32 v6, 2, v2'); a('v_xor_b32 v6, v6, v3'); a('v_lshlrev_b32 v6, 4, v6')
    a('v_lshl_add_u32 v%d, v2, 11, v6' % vWoOff)
    a('v_mov_b32 v7, s%d' % sPA); a('v_mov_b32 v8, s%d' % sPB); a('v_cmp_gt_u32 vcc, 128, v6'); a('s_nop 1')
    a('v_cndmask_b32 v7, v8, v7, vcc'); a('v_add_u32 v%d, v7, v%d' % (vWoOff, vWoOff))
    a('v_and_b32 v4, 12, v3'); a('v_and_b32 v5, 3, v3'); a('v_lshl_add_u32 v4, v4, 1, v5')
    a('v_and_b32 v5, 1, v2'); a('v_lshlrev_b32 v5, 1, v5'); a('v_lshrrev_b32 v6, 1, v2'); a('v_or_b32 v5, v5, v6'); a('v_xor_b32 v5, v5, v3')
    for m in range(4):
        a('v_xor_b32 v6, %d, v5' % (4 * m)); a('v_lshlrev_b32 v6, 4, v6'); a('v_lshl_add_u32 v%d, v4, 8, v6' % (vKaddr + m))
    a('v_lshrrev_b32 v5, 1, v3'); a('v_xor_b32 v5, v5, v2')
    for ks in range(2):
        a('v_xor_b32 v6, %d, v5' % (4 * ks)); a('v_lshlrev_b32 v6, 4, v6'); a('v_lshl_add_u32 v6, v3, 7, v6')
        a('v_add_u32 v6, s%d, v6' % sLdsW); a('v_add_u32 v%d, 0x4000, v6' % (vXaddr + ks))
    a('v_lshrrev_b32 v4, 2, v3')
    a('v_lshl_add_u32 v5, v2, 3, v4'); a('v_lshlrev_b32 v5, 8, v5')
    a('v_and_b32 v6, 1, v1'); a('v_lshl_add_u32 v5, v6, 3, v5'); a('v_add_u32 v5, %d, v5' % BB)
    a('v_and_b32 v6, 1, v2'); a('v_lshl_add_u32 v6, v6, 2, v4'); a('v_lshlrev_b32 v6, 1, v6')
    a('v_lshrrev_b32 v7, 1, v1'); a('v_and_b32 v7, 1, v7'); a('v_or_b32 v6, v6, v7')
    for db in range(8):
        a('v_xor_b32 v7, %d, v6' % (2 * db)); a('v_lshl_add_u32 v%d, v7, 4, v5' % (vTaddr + db))
        a('v_add_u32 v%d, -16384, v%d' % (vTw + db, vTaddr + db))
    a('v_lshl_add_u32 v5, v2, 2, v4'); a('v_lshlrev_b32 v5, 8, v5'); a('v_add_u32 v5, 0x%x, v5' % AUX)
    a('s_lshl_b32 s3, s%d, 2' % sWave)
    a('v_xor_b32 v6, s3, v3')
    a('v_lshl_add_u32 v%d, v6, 4, v5' % vWoAddr)
    a('v_lshlrev_b32 v%d, 4, v1' % vOoff)
    for i in range(64): a('v_mov_b32 v%d, 0' % (vS[0] + i))
    a('s_mov_b32 s%d, 0x%08x' % (sQs, QSCALE)); a('s_mov_b32 s%d, 0x%08x' % (sQs + 1, QSCALE)); a('s_mov_b32 s%d, 0x%08x' % (sThr, THRESH))
    for k in range(4): a('v_mov_b32 v%d, 0x3f803f80' % (vOnes + k))
    a('s_mov_b32 s%d, 0' % sCnt)

    LA = OPT['la']
    def tr2(buf, addr, off, first, free):
        return [dict(t='ds_read_b64_tr_b16 %s, v%d offset:%d' % (vr(buf, 2), addr, off), first=first, free=free),
                dict(t='ds_read_b64_tr_b16 %s, v%d offset:%d' % (vr(buf + 2, 2), addr, off + 1024), first=first + 1, free=free)]
    def qk_parts(slot, S, first, mbase=0, rbase=0):
        reads = []; mf = []
        for n in range(16):
            blk, m = n >> 2, n & 3; u, kb2 = blk >> 1, blk & 1
            buf = POOL[n & 7]
            reads.append(dict(t='ds_read_b128 %s, v%d offset:%d' % (vr(buf, 4), vKaddr + m, slot * 16384 + u * 8192 + kb2 * 1024), first=mbase + 2 * n, free=mbase + 2 * n - 15))
            for qb in range(2):
                acc = vr(S + 16 * qb + 4 * blk, 4)
                c = acc if m else ('0' if first else vr(vNegM + 4 * qb, 4))
                mf.append(dict(t='%s %s, %s, %s, %s' % (MFMA, acc, vr(buf, 4), vr(vQ + 8 * m + 4 * qb, 4), c), uses=[rbase + n]))
        return reads, mf
    def lsum(S, u, qb):
        return dict(t='%s %s, %s, %s, %s' % (MFMA, vr(vLs + 4 * qb, 4), vr(vOnes, 4), vr(S + 16 * qb + 8 * u, 4), vr(vLs + 4 * qb, 4)), uses=[])
    def pv_parts(t, S, mbase=0, rbase=0, prev=None):
        reads = []; mf = []; last = dict(prev or {})
        for n in range(16):
            u, db = n >> 3, n & 7
            buf = POOL[n & 7]
            i = mbase + len(mf)
            reads += tr2(buf, vTaddr + db, vs(t) * 16384 + u * 8192, i, last.get(n & 7, -1))
            for qb in range(2):
                acc = vr(vO + 8 * db + 4 * qb, 4)
                mf.append(dict(t='%s %s, %s, %s, %s' % (MFMA, acc, vr(buf, 4), vr(S + 16 * qb + 8 * u, 4), acc), uses=[rbase + 2 * n, rbase + 2 * n + 1]))
            last[n & 7] = i + 1
            if db in (2, 5) and not OPT['lvalu']: mf.append(lsum(S, u, 0 if db == 2 else 1))
        return reads, mf, last
    def softmax_ops(S):
        ops = []
        for u in range(2):
            for qb in range(2):
                b = S + 16 * qb + 8 * u
                for h4 in range(2):
                    q = b + 4 * h4
                    for j in range(4): ops.append(('v_exp_f32 v%d, v%d' % (q + j, q + j), u))
                    for j in range(2):
                        if OPT['lvalu']:
                            ops.append(('v_add_f32 v%d, v%d, v%d' % (vLs + 4 * qb, vLs + 4 * qb, q + 2 * j), u))
                            ops.append(('v_add_f32 v%d, v%d, v%d' % (vLs + 4 * qb, vLs + 4 * qb, q + 2 * j + 1), u))
                        ops.append(('v_cvt_pk_bf16_f32 v%d, v%d, v%d' % (b + 2 * h4 + j, q + 2 * j, q + 2 * j + 1), u))
        return ops
    def max_ops(S):
        regs = [(S + 16 * qb + 4 * blk + r, blk) for blk in range(4) for qb in range(2) for r in range(4)]
        ops = [('v_max3_f32 v%d, v%d, v%d, v%d' % (vMax, regs[0][0], regs[1][0], regs[2][0]), 0)]
        for j in range(3, 31, 2): ops.append(('v_max3_f32 v%d, v%d, v%d, v%d' % (vMax, vMax, regs[j][0], regs[j + 1][0]), regs[j + 1][1]))
        ops.append(('v_max_f32 v%d, v%d, v%d' % (vMax, vMax, regs[31][0]), 3))
        return ops
    def allgroups(v, op):
        for sw in ('v_permlane32_swap_b32', 'v_permlane16_swap_b32'):
            a('v_mov_b32 v%d, v%d' % (vTmp, v)); a('s_nop 1'); a('%s v%d, v%d' % (sw, v, vTmp)); a('s_nop 1'); a('%s v%d, v%d, v%d' % (op, v, v, vTmp))
    def rowmax(S, qb, d):
        b = S + 16 * qb
        a('v_max3_f32 v%d, v%d, v%d, v%d' % (d, b, b + 1, b + 2))
        for j in range(3, 15, 2): a('v_max3_f32 v%d, v%d, v%d, v%d' % (d, d, b + j, b + j + 1))
        a('v_max_f32 v%d, v%d, v%d' % (d, d, b + 15))
        allgroups(d, 'v_max_f32')
    def emit_reads(rs):
        for rd in rs: a(rd['t'])
    def npre_of(r, base, la): return min(13, len([x for x in r if x['first'] - base <= la - 1]))

    WP = [vO + 4 * i for i in range(16)]
    QLA = OPT['qla']
    def qp_reads(st, mbase=0, rbase=0, dbmajor=False):
        reads = []; mf = []; xi = {}
        XP = [vNegM + 4 * k for k in range(4)] if dbmajor else POOL[4 * (st & 1): 4 * (st & 1) + 4]
        order = [(ks, db) for db in range(8) for ks in range(2)] if dbmajor else [(ks, db) for ks in range(2) for db in range(8)]
        for n, (ks, db) in enumerate(order):
            i = mbase + 2 * n
            if ks not in xi:
                xi[ks] = rbase + len(reads)
                for qb in range(2):
                    reads.append(dict(t='ds_read_b128 %s, v%d offset:%d' % (vr(XP[2 * ks + qb], 4), vXaddr + ks, XST[st] - 16384 + qb * 2048), first=i))
            wi = rbase + len(reads)
            reads += tr2(WP[n], vTw + db, WST[st] - (BB - 16384) + ks * 8192, i, i - 31)
            for qb in range(2):
                acc = vr(vS[0] + 8 * db + 4 * qb, 4)
                mf.append(dict(t='%s %s, %s, %s, %s' % (MFMA, acc, vr(WP[n], 4), vr(XP[2 * ks + qb], 4), acc), uses=[wi, wi + 1, xi[ks], xi[ks] + 1]))
        return reads, mf
    gkv = lambda t: groups(dma_k(t) + dma_v(t))
    gxw = lambda c: groups(dma_xw(c & 3))
    EXTRA = {OPT['kv0at']: None}
    for p_, q in enumerate(STGAT): assert q not in EXTRA and q < 12; EXTRA[q] = p_
    def qp_body(c, early, late, tail=()):
        r0, mf = qp_reads(c & 3); r1, _ = qp_reads((c + 1) & 3, 32, dbmajor=(c == 14))
        fill = {}
        for k, g in enumerate(early): fill[4 * k] = list(g)
        for k, g in enumerate(late): fill[22 + 4 * k] = list(g)
        fill.setdefault(31, []); fill[31] += list(tail)
        ev = ['s_waitcnt vmcnt(8)', 's_barrier']
        nxt8 = [q + 1 for q in EXTRA]
        if c >= 12:
            if c in nxt8: ev = ['s_waitcnt vmcnt(16)', 's_barrier']
        else:
            ps = [q >> 2 for q in nxt8 if q < 12 and (q & 3) == c]
            if ps:
                ev = []
                for p_ in ps: ev += ['s_cmp_eq_u32 s%d, %d' % (sCnt, p_), 's_cbranch_scc1 L_kvw%d' % c]
                ev += ['s_waitcnt vmcnt(8)', 'L_kvw%d:' % c, 's_waitcnt vmcnt(16)', 's_barrier']
        sched(a, mf, r0 + r1[:npre_of(r1, 32, QLA)], QLA, npre=npre_of(r0, 0, QLA), fill=fill, events={len(r0): ev}, evrange=(17, 22), pair=4)
    r0, _ = qp_reads(0)
    for g in groups(dma_xw(1)):
        for x in g: a(x + (' ; T:i1' if x.startswith('buffer') else ''))
    for g in groups(dma_xw(2))[:3]:
        for x in g: a(x)
    a('s_waitcnt vmcnt(11)')
    a('s_barrier')
    stamp(10)
    emit_reads(r0[:npre_of(r0, 0, QLA)])
    if OPT['unr']:
        tag = lambda gs, t: [[x + ' ; T:%s' % t if x.startswith('buffer') else x for x in g] for g in gs]
        item = lambda k: tag(gxw(k), 'i%d' % k) if k < 16 else tag(gkv(k - 15), 'i%d' % k)
        extra = []
        for p_ in range(AB):
            sl = stage_loads(p_)
            extra += groups([sl[0].replace('s3', 's6')] + [x.replace(', s3 ', ', s6 ') for x in sl[2:6]] + [sl[1].replace('s4', 's6')] + [x.replace(', s4 ', ', s6 ') for x in sl[6:]])
        a.label('L_qp')
        n_start = len(a.ins)
        for c in range(15):
            if c == 8: stamp(11)
            r0, mf = qp_reads(c & 3); r1, _ = qp_reads((c + 1) & 3, 32, dbmajor=(c == 14))
            fill = {}
            for k, g in enumerate(item(c + 2)[3:]): fill[4 * k] = list(g)
            for k, g in enumerate(item(c + 3)[:3]): fill[22 + 4 * k] = list(g)
            if c in (OPT['kv0at'], OPT['kv0at'] + 1):
                for k, g in enumerate(groups(dma_k(0) if c == OPT['kv0at'] else dma_v(0))): fill[17 + k] = list(g)
            elif c >= OPT['st0']:
                for gp in (2, 10, 24, 6, 14, 28, 18, 20)[:OPT['stper']][::1]:
                    pass
                for gp in sorted((2, 10, 24, 18, 6, 14, 28, 20)[:OPT['stper']]):
                    if extra: fill[gp] = extra.pop(0)
            sched(a, mf, r0 + r1[:npre_of(r1, 32, QLA)], QLA, npre=npre_of(r0, 0, QLA), fill=fill, events={len(r0): ['s_waitcnt vmcnt(0) ; W:i%d' % (c + 1), 's_barrier']}, evrange=(17, 22), pair=4)
            if c == 2:
                a('s_cmp_lg_u32 s%d, 0' % sWave); a('s_cbranch_scc1 L_noinit')
                a('v_mov_b32 v38, 1'); a('v_mov_b32 v39, 0')
                a('s_mov_b64 exec, 1')
                a('buffer_atomic_add v38, v39, %s, 0 offen sc1' % sr(SDBG, 4))
                a('s_mov_b64 exec, %s' % sr(sEx, 2))
                a.label('L_noinit')
        assert not extra
        for k in range(n_start, len(a.ins)):
            t = a.ins[k].text
            if '; W:' in t:
                want = 'T:' + t.split('W:')[1].strip(); n = 0; j = k - 1
                while j >= 0 and not a.ins[j].text.endswith(want):
                    if a.ins[j].op.startswith('buffer_load'): n += 1
                    j -= 1
                assert j >= 0 and n < 60, (t, n)
                a.ins[k] = Ins('s_waitcnt vmcnt(%d)' % n)
    else:
        a.label('L_qp')
        if OPT['stamps']:
            a('s_cmp_lg_u32 s%d, 2' % sCnt); a('s_cbranch_scc1 L_st11')
            stamp(11)
        for c in range(4):
            qp_body(c, gxw(c + 2)[3:], gxw(c + 3)[:3], ['s_add_u32 s%d, s%d, 1' % (sCnt, sCnt), 's_cmp_lt_u32 s%d, 3' % sCnt] if c == 3 else [])
            if c == 2:
                a('s_or_b32 s3, s%d, s%d' % (sWave, sCnt)); a('s_cbranch_scc1 L_noinit')
                a('v_mov_b32 v38, 1'); a('v_mov_b32 v39, 0')
                a('s_mov_b64 exec, 1')
                a('buffer_atomic_add v38, v39, %s, 0 offen sc1' % sr(SDBG, 4))
                a('s_mov_b64 exec, %s' % sr(sEx, 2))
                a.label('L_noinit')
            for q in sorted(EXTRA):
                if (q & 3) != c: continue
                a('s_cmp_lg_u32 s%d, %d' % (sCnt, (q >> 2) + (1 if c == 3 else 0))); a('s_cbranch_scc1 L_nox%d' % q)
                if EXTRA[q] is None:
                    for x in dma_k(0) + dma_v(0): a(x)
                    a('s_add_u32 m0, s%d, %d' % (sLdsW, XST[(c + 3) & 3]))
                else:
                    for x in stage_loads(EXTRA[q]): a(x)
                a.label('L_nox%d' % q)
            if c == 3 and any((q & 3) == 3 for q in EXTRA): a('s_cmp_lt_u32 s%d, 3' % sCnt)
        a('s_cbranch_scc1 L_qp')
        if OPT['qpm']:
            n0 = [k for k, i in enumerate(a.ins) if i.text.startswith('L_qp:')][0]
            keep = []
            for i in a.ins[n0:]:
                if (OPT['qpm'] & 1) and i.kind == 'mfma': continue
                if (OPT['qpm'] & 2) and i.kind == 'ds': continue
                if (OPT['qpm'] & 4) and i.kind == 'vmem' and 'lds' in i.text: continue
                if (OPT['qpm'] & 16) and i.op == 's_barrier': continue
                keep.append(i)
            a.ins[n0:] = keep
        qp_body(12, gxw(14)[3:], gxw(15)[:3])
        qp_body(13, gxw(15)[3:], gkv(1)[:3])
        qp_body(14, gkv(1)[3:], gkv(2)[:3])
    def pack(m):
        out = []
        t = vS[0] + 16 * m
        for r in range(0, 16, 2): out.append('v_pk_mul_f32 %s, %s, %s' % (vr(t + r, 2), vr(t + r, 2), sr(sQs, 2)))
        for qb in range(2):
            for h in range(2):
                for k in range(2):
                    s_ = t + 8 * h + 4 * qb + 2 * k
                    out.append('v_cvt_pk_bf16_f32 v%d, v%d, v%d' % (vQ + 8 * m + 4 * qb + 2 * h + k, s_, s_ + 1))
        return out
    def qswap(m):
        return ['v_permlane16_swap_b32 v%d, v%d' % (vQ + 8 * m + 4 * qb + k, vQ + 8 * m + 4 * qb + 2 + k) for qb in range(2) for k in range(2)]
    r0, mf = qp_reads(3, dbmajor=True)
    rq, mq = qk_parts(0, vS[0], True)
    rq32, _ = qk_parts(0, vS[0], True, mbase=32)
    for x in rq32: x['free'] = -1
    NPK = npre_of(rq, 0, LA)
    gk3 = groups(dma_k(3))
    fill = {}
    for k, g in enumerate(gkv(2)[3:]): fill[4 * k] = list(g)
    for k in range(3): fill[22 + 4 * k] = list(gk3[k])
    st = [(x, 12, 31) for x in pack(0)] + [(x, 20, 31) for x in pack(1)[:8]]
    bsched(a, mf, r0 + rq32[:NPK], QLA, npre=npre_of(r0, 0, QLA), fixed=fill, events={len(r0): ['s_barrier']}, evrange=(17, 22), streams=[st], pair=4)
    stamp(1)
    for x in gk3[3]: a(x)
    for x in pack(1)[8:] + qswap(0) + pack(2) + qswap(1) + pack(3) + qswap(2) + ['s_nop 0'] + qswap(3): a(x)
    rn, _ = qk_parts(1, vS[1], False, mbase=32)
    zero = ['v_mov_b32 v%d, 0' % (vO + i) for i in range(64)]
    fill = {i: zero[2 * i: 2 * i + 2] for i in range(32)}
    sched(a, mq, rq + rn[:NPK], LA, npre=NPK, fill=fill, events={16: ['s_waitcnt vmcnt(16)', 's_barrier']}, pair=OPT['pair'])
    a('s_barrier')
    gk4 = groups(dma_k(4))
    for k in range(8): a('v_mov_b32 v%d, 0' % (vLs + k))
    for qb in range(2):
        for x in gk4[2 * qb]: a(x)
        rowmax(vS[0], qb, vDelta + qb)
        for x in gk4[2 * qb + 1]: a(x)
        for j in range(4): a('v_sub_f32 v%d, 0, v%d' % (vNegM + 4 * qb + j, vDelta + qb))
        for j in range(16): a('v_sub_f32 v%d, v%d, v%d' % (vS[0] + 16 * qb + j, vS[0] + 16 * qb + j, vDelta + qb))
    stamp(2)

    rare = []
    def iteration(j, vm, kind='mid', tag=''):
        cur, nxt = vS[j & 1], vS[(j + 1) & 1]
        sm = softmax_ops(cur)
        if kind != 'last':
            r1, m1 = qk_parts((j + 1) & 3, nxt, False)
            r2, m2, last = pv_parts(j, cur, 32, 16, prev={b: 2 * (8 + b) + 1 for b in range(8)})
            n = len(m1) + len(m2)
            if kind == 'mid':
                r3, _ = qk_parts((j + 2) & 3, cur, False, mbase=n)
                for k in range(8): r3[k]['free'] = last[k]
                r3 = r3[:NPK]
            else:
                r3, _, _ = pv_parts(j + 1, nxt, n, prev=last); r3 = r3[:NPV]
            reads, mf = r1 + r2 + r3, m1 + m2
            u1 = 32 + len(m2) // 2
            st1 = []; ne = 0
            for x, u in sm:
                if x.startswith('v_exp'): ne += 1
                st1.append((x, 0, min(29 if u == 0 else u1 - 3, (ne * (u1 - 4)) // 32 + (0 if x.startswith('v_exp') else 1))))
            st2 = [(x, max(8 * blk + 12, OPT['mx0']), n - 1) for x, blk in max_ops(nxt)] + [('v_cmp_lt_f32 vcc, s%d, v%d' % (sThr, vMax), 40, n - 1)]
            fixed = {}
            ev0 = n - LA
            if kind == 'mid':
                if j == 0: g = spread(fixed, dma_wo(), ev0 - 28, 3); assert g <= ev0 + 2, g
                g = spread(fixed, (dma_v(j + 3, sMv) + dma_k(j + 1, sMk)) if (AB and j == 1) else (dma_v(j + 3) + dma_k(j + 1)), ev0 + 2, 1); assert g - 1 < n, g
            bsched(a, mf, reads, LA, npre=NPK, events={len(r1) + len(r2): ['s_waitcnt vmcnt(%d)' % vm, 's_barrier']}, fixed=fixed, streams=[st1, st2],
                   pair=OPT['pair'], evrange=(ev0, ev0 + 2))
            lab = 'L_rare%d%s' % (j, tag)
            a('s_cbranch_vccnz %s' % lab)
            a.label(lab + '_ret')
            rare.append((lab, nxt))
        else:
            reads, mf, _ = pv_parts(j, cur)
            u1 = len(mf) // 2
            for x, u in sm:
                if u == 0: a(x)
            st1 = [(x, 0, u1 - 3) for x, u in sm if u == 1]
            bsched(a, mf, reads, LA, npre=NPV, streams=[st1], pair=OPT['pair'], cap=5)
    NPV = npre_of(pv_parts(0, vS[0])[0], 0, LA)

    def wo_block(p):
        for m in range(4):
            for nb in range(2):
                for h in range(2):
                    a('ds_read_b64_tr_b16 %s, v%d offset:%d' % (ar(32 * p + 8 * m + 4 * nb + 2 * h, 2), vWoAddr, m * 8192 + h * 4096 + nb * 8))
        a('s_waitcnt lgkmcnt(0)')
    def wo_chain(tag):
        if WABS:
            a('s_sub_u32 s%d, s%d, s%d' % (sBlk, sCnt, sJ)); a('s_and_b32 s%d, s%d, 7' % (sBlk, sBlk))
            for p in range(8):
                if p < 7:
                    a('s_cmp_lg_u32 s%d, %d' % (sBlk, p)); a('s_cbranch_scc1 L_wb%s%d' % (tag, p + 1))
                wo_block(p)
                if p < 7: a('s_branch L_wbdone%s' % tag)
                a.label('L_wb%s%d' % (tag, p + 1) if p < 7 else 'L_wbdone%s' % tag)
            return
        if tag == 'b': return wo_block(7)
        for p in range(7):
            if p < 6:
                a('s_cmp_lg_u32 s%d, %d' % (sCnt, p)); a('s_cbranch_scc1 L_wb%s%d' % (tag, p + 1))
            wo_block(p)
            if p < 6: a('s_branch L_wbdone%s' % tag)
            a.label('L_wb%s%d' % (tag, p + 1) if p < 6 else 'L_wbdone%s' % tag)
    def stage_sel():
        a('s_mov_b32 s5, 0x30000')
        a('s_bitcmp1_b32 s%d, s%d' % (sGrp, sCnt))
        a('s_cselect_b32 s%d, 0, 0x80000' % sLim1); a('s_cselect_b32 s3, s5, %d' % (BB + 49152)); a('s_cselect_b32 s4, s5, 32768')
        a('s_add_u32 s%d, s%d, s3' % (sMv, sLdsW)); a('s_add_u32 s%d, s%d, s4' % (sMk, sLdsW))
    def stage_chain():
        a('s_cmp_lg_u32 s%d, 0' % sLim1); a('s_cbranch_scc1 L_sgdone')
        for k, p in enumerate(STP):
            if k < AB - 1:
                a('s_cmp_lg_u32 s%d, %d' % (sCnt, p)); a('s_cbranch_scc1 L_sg%d' % (k + 1))
            for i in range(4):
                a('ds_write_b128 v%d, %s offset:%d' % (vStg, ar(32 * p + 4 * i, 4), 49152 + i * 1024))
            a('v_add_u32 v%d, %d, v%d' % (vTmp, 32768 - BB, vStg))
            for i in range(4):
                a('ds_write_b128 v%d, %s offset:%d' % (vTmp, ar(32 * p + 16 + 4 * i, 4), i * 1024))
            a('s_waitcnt lgkmcnt(0)')
            if k < AB - 1: a('s_branch L_sgdone')
            a.label('L_sg%d' % (k + 1) if k < AB - 1 else 'L_sgdone')
    a('s_mov_b32 s%d, 0' % sCnt)
    a.label('L_at')
    stamp(12, sCnt)
    iteration(0, 20)
    if AB: stage_sel()
    iteration(1, 20)
    if AB: stage_chain()
    a('s_cmp_eq_u32 s%d, 7' % sCnt)
    a('s_cbranch_scc1 L_at_last')
    iteration(2, 12)
    wo_chain('a')
    iteration(3, 12)
    a('s_add_u32 s%d, s%d, 1' % (sCnt, sCnt))
    a('s_branch L_at')
    if OPT['atm']:
        n0 = [k for k, i in enumerate(a.ins) if i.text.startswith('L_at:')][0]
        keep = []; m = OPT['atm']; c = 0
        for i in a.ins[n0:]:
            if (m & 1) and i.op == 'v_exp_f32': continue
            if (m & 2) and i.kind == 'ds':
                c += 1
                if (m & 256) == 0 or (c & 1): continue
            if (m & 32) and i.op.startswith('v_max'): continue
            if (m & 64) and i.op.startswith('v_cvt'): continue
            if (m & 128) and i.op == 's_waitcnt' and 'lgkm' in i.text and 'lgkmcnt(0)' not in i.text: continue
            if (m & 512) and i.kind == 'mfma' and min(x[1] for x in i.d) >= vO + 32: continue
            keep.append(i)
        a.ins[n0:] = keep
    a.label('L_at_last')
    iteration(2, 0, kind='pen', tag='p')
    wo_chain('b')
    iteration(3, 0, kind='last')
    stamp(3)

    a('s_lshl_b32 s3, s%d, 2' % sB); a('s_add_u32 s3, s3, s%d' % sWave); a('s_lshl_b32 s3, s3, 18')
    a('s_lshl_b32 s4, s%d, 16' % sKg); a('s_add_u32 s%d, s3, s4' % sOb)
    a('s_lshl_b32 s4, s%d, 13' % sJ); a('s_add_u32 s%d, s%d, s4' % (sT0, sOb)); a('s_add_u32 s%d, s%d, 4096' % (sT1, sT0))
    a('s_lshl_b32 s5, s%d, 1' % sLdsW)
    a('v_add_u32 v2, s5, v%d' % vOoff); a('v_add_u32 v2, 0x8000, v2')
    a('v_mov_b32 v39, 0')
    a('s_waitcnt vmcnt(0)')
    a('buffer_load_dword v38, v39, %s, 0 offen sc1' % sr(SDBG, 4))
    for qb in range(2):
        if OPT['lvalu']: allgroups(vLs + 4 * qb, 'v_add_f32')
        a('v_rcp_f32 v%d, v%d' % (6 + 2 * qb, vLs + 4 * qb))
    a('s_nop 0')
    for qb in range(2): a('v_mov_b32 v%d, v%d' % (7 + 2 * qb, 6 + 2 * qb))
    for m in range(4):
        for qb in range(2):
            f = vQ + 16 * qb + 4 * m
            for h in range(2):
                t = vO + 8 * (2 * m + h) + 4 * qb
                for k in range(2): a('v_pk_mul_f32 %s, %s, %s' % (vr(t + 2 * k, 2), vr(t + 2 * k, 2), vr(6 + 2 * qb, 2)))
            for h in range(2):
                t = vO + 8 * (2 * m + h) + 4 * qb
                for k in range(2): a('v_cvt_pk_bf16_f32 v%d, v%d, v%d' % (f + 2 * h + k, t + 2 * k, t + 2 * k + 1))
            a('buffer_store_dwordx4 %s, v%d, %s, s%d offen offset:%d sc1' % (vr(f, 4), vOoff, sr(SWS, 4), sT1 if qb else sT0, m * 1024))
    for m in range(4):
        for qb in range(2): a('ds_write_b128 v2, %s offset:%d' % (vr(vQ + 16 * qb + 4 * m, 4), qb * 4096 + m * 1024))
    for i in range(4):
        a('s_add_u32 s3, s%d, %d' % (sKg, i)); a('s_and_b32 s3, s3, 3'); a('s_lshl_b32 s3, s3, 13')
        a('v_add_u32 v%d, s3, v%d' % (vOaddr + i, vOoff))
    a('v_add_u32 v%d, 0x10000, v%d' % (vOaddr + 4, vOoff)); a('v_add_u32 v%d, 0x20000, v%d' % (vOaddr + 5, vOoff))
    SADDR = [vOoff, vOaddr + 4, vOaddr + 5]
    ACC = vS[0]
    STG = [None] + [(i, hf) for i in (1, 2, 3, 0) for hf in range(2)]
    OSLOT = [1, 0, 2, 3, 4, 1, 0, 2, 3]
    def op_parts(s_, mbase=0):
        slot = OSLOT[s_]
        reads = []; mf = []
        if s_ == 0: order = [(0, m, i, qb) for m in range(4) for i in range(4) for qb in range(2)]
        else:
            i, hf = STG[s_]
            order = [(1 + 4 * hf + u, m, i, qb) for u in range(4 - hf) for m in range(4) for qb in range(2)]
        for n, (p, m, i, qb) in enumerate(order):
            buf = POOL[n & 7]
            if s_ == 0: ad, off = vOaddr + i, 32768
            else: ad, off = SADDR[slot >> 1], (slot & 1) * 32768 + ((p - 1) & 3) * 8192
            reads.append(dict(t='ds_read_b128 %s, v%d offset:%d' % (vr(buf, 4), ad, off + qb * 4096 + m * 1024), first=mbase + 2 * n, free=mbase + 2 * n - 15))
            for nb in range(2):
                acc = vr(ACC + 16 * i + 8 * qb + 4 * nb, 4)
                mf.append(dict(t='%s %s, %s, %s, %s' % (MFMA, acc, ar(32 * p + 8 * m + 4 * nb, 4), vr(buf, 4), '0' if (p == 0 and m == 0) else acc), uses=[n]))
        return reads, mf
    def dma_o(s_):
        i, hf = STG[s_]
        out = ['s_add_u32 s3, s%d, %d' % (sKg, i), 's_and_b32 s3, s3, 3', 's_lshl_b32 s3, s3, 18', 's_add_u32 s%d, s3, s%d' % (sT0, sHd + hf),
               's_add_u32 m0, s5, %d' % (OSLOT[s_] * 32768), 's_add_u32 s%d, s%d, 4096' % (sT1, sT0)]
        S_ = SWS2 if hf else SWS
        for m in range(4): out.append('buffer_load_dwordx4 v%d, %s, s%d offen offset:%d sc1 lds' % (vOoff, sr(S_, 4), sT0, m * 1024))
        out += ['s_add_u32 m0, m0, 4096', 's_nop 0']
        for m in range(4): out.append('buffer_load_dwordx4 v%d, %s, s%d offen offset:%d sc1 lds' % (vOoff, sr(S_, 4), sT1, m * 1024))
        return out
    def signal(sF, vown, vpoll, cnt):
        return ['v_mov_b32 v38, 1', 's_mov_b64 exec, 1',
                'buffer_store_dword v38, v%d, %s, s%d offen sc1' % (vown, sr(SWS, 4), sF),
                's_mov_b64 exec, %d' % ((1 << cnt) - 2),
                'buffer_load_dword v39, v%d, %s, s%d offen sc1' % (vpoll, sr(SWS, 4), sF),
                's_mov_b64 exec, %s' % sr(sEx, 2)]
    def poll(n, sF, vpoll, cnt):
        a('s_mov_b64 exec, %d' % ((1 << cnt) - 2))
        a('s_mov_b32 s%d, 0' % sSpin)
        a.label('L_poll%d' % n)
        a('s_waitcnt vmcnt(0)')
        a('v_cmp_ne_u32 vcc, 1, v39')
        a('s_cbranch_vccz L_poll%d_out' % n)
        a('s_add_u32 s%d, s%d, 1' % (sSpin, sSpin)); a('s_cmp_ge_u32 s%d, %d' % (sSpin, OPT['spin'])); a('s_cbranch_scc1 L_poll%d_out' % n)
        if OPT['psleep']: a('s_sleep %d' % OPT['psleep'])
        a('buffer_load_dword v39, v%d, %s, s%d offen sc1' % (vpoll, sr(SWS, 4), sF))
        a('s_branch L_poll%d' % n)
        a.label('L_poll%d_out' % n)
        a('s_mov_b64 exec, %s' % sr(sEx, 2))
    a('v_add_u32 v3, s%d, v1' % sJ); a('v_and_b32 v3, 7, v3'); a('v_lshlrev_b32 v3, 2, v3')
    a('v_add_u32 v4, s%d, v1' % sKg); a('v_and_b32 v4, 3, v4'); a('v_lshlrev_b32 v4, 2, v4')
    sHd, SWS2 = 36, 40
    a('s_lshl_b32 s3, s%d, 20' % sB); a('s_lshl_b32 s4, s%d, 16' % sKg); a('s_add_u32 s7, s3, s4')
    for hf in range(2):
        a('s_add_u32 s3, s%d, s%d' % (sJ, sWave)); a('s_add_u32 s3, s3, %d' % (1 + 4 * hf)); a('s_and_b32 s3, s3, 7'); a('s_lshl_b32 s3, s3, 13')
        a('s_add_u32 s%d, s3, s7' % (sHd + hf))
    srd(SWS2, SWS, SWS + 1, None, None)
    a('s_cmp_eq_u32 s%d, 3' % sWave); a('s_cselect_b32 s%d, 0, 0x2000000' % (SWS2 + 2))
    a('s_lshl_b32 s6, s%d, 14' % sKg); a('s_add_u32 s6, s6, s%d' % sPb)
    for x in ['s_waitcnt vmcnt(0)', 's_mov_b32 s%d, 0' % sSpin, 'L_init:', 'v_readfirstlane_b32 s3, v38', 's_add_u32 s%d, s%d, 1' % (sSpin, sSpin),
              's_cmp_ge_u32 s3, 256', 's_cbranch_scc1 L_init_ok', 's_cmp_ge_u32 s%d, %d' % (sSpin, OPT['spin']), 's_cbranch_scc1 L_init_ok',
              'v_mov_b32 v39, 0', 'buffer_load_dword v38, v39, %s, 0 offen sc1' % sr(SDBG, 4), 's_waitcnt vmcnt(0)', 's_branch L_init', 'L_init_ok:'] + signal(sF1, 36, 3, 8): a(x)
    if OPT['sent']:
        for k in range(4): a('v_mov_b32 v%d, -1' % (POOL[0] + k))
        a('s_add_u32 s3, s%d, 3' % sKg); a('s_and_b32 s3, s3, 3'); a('s_lshl_b32 s3, s3, 16'); a('s_add_u32 s3, s3, s6')
        for g in range(4): a('buffer_store_dwordx4 %s, v%d, %s, s3 offen offset:%d sc1' % (vr(POOL[0], 4), vOoff, sr(SWS, 4), g * 1024))
    stamp(4)
    poll(1, sF1, 3, 8)
    a('s_waitcnt lgkmcnt(0)')
    a('s_barrier')
    stamp(5)
    r, _ = op_parts(0)
    emit_reads(r[:NPK])
    for k in range(1, OPT['odep']):
        for x in dma_o(k): a(x)
    def send(i):
        out = ['s_add_u32 s3, s%d, %d' % (sKg, i), 's_and_b32 s3, s3, 3', 's_lshl_b32 s3, s3, 16', 's_add_u32 s%d, s3, s6' % sT2]
        for g in range(4):
            out.append('buffer_store_dwordx4 %s, v%d, %s, s%d offen offset:%d sc1' % (vr(ACC + 16 * i + 4 * g, 4), vOoff, sr(SWS, 4), sT2, g * 1024))
        return out
    SENT = OPT['sent']
    sRc = 36
    def recv(i, S_=SWS):
        return ['buffer_load_dwordx4 %s, v%d, %s, s%d offen offset:%d sc1' % (vr(vO + 16 * i + 4 * g, 4), vOoff, sr(S_, 4), sRc + i - 1, g * 1024) for g in range(4)]
    rsetup = ['s_lshl_b32 s4, s%d, 16' % sKg, 's_add_u32 s4, s4, s%d' % sPb]
    for i in range(1, 4):
        rsetup += ['s_add_u32 s3, s%d, %d' % (sKg, i), 's_and_b32 s3, s3, 3', 's_lshl_b32 s3, s3, 14', 's_add_u32 s%d, s3, s4' % (sRc + i - 1)]
    osetup = ['v_and_b32 v2, 15, v1', 'v_lshrrev_b32 v5, 4, v1', 'v_lshlrev_b32 v2, 11, v2', 'v_lshl_add_u32 v2, v5, 4, v2',
              's_lshl_b32 s3, s%d, 18' % sB, 's_lshl_b32 s4, s%d, 16' % sKg, 's_add_u32 s7, s3, s4',
              's_cmp_lt_u32 s%d, 2' % sWave, 's_cselect_b32 s4, s%d, s%d' % (sPA, sPB),
              's_add_u32 s7, s7, s4', 's_lshl_b32 s4, s%d, 6' % sWave, 's_add_u32 s7, s7, s4', 's_add_u32 s39, s7, 0x8000']
    pollreq = ['s_mov_b64 exec, 14', 'buffer_load_dword v39, v4, %s, s%d offen sc1' % (sr(SWS, 4), sF2), 's_mov_b64 exec, %s' % sr(sEx, 2)]
    D = OPT['odep']
    fifo = [k for k in range(1, D) for _ in range(8)]
    for s_ in range(9):
        r, m = op_parts(s_)
        n = len(m)
        fill = {}
        g = 0
        if s_ in (3, 5, 7) and OPT['sfirst']:
            g = spread(fill, send(STG[s_ - 1][0]), 3, 2); fifo += [0] * 4
        if s_ + D <= 8:
            g = spread(fill, dma_o(s_ + D), g, OPT['ostep']); fifo += [s_ + D] * 8
        if s_ in (3, 5, 7) and not OPT['sfirst']:
            g = spread(fill, send(STG[s_ - 1][0]), max(g, 3), 2); fifo += [0] * 4
        assert g - 3 < n - LA, (s_, g)
        if s_ < 8:
            rn, _ = op_parts(s_ + 1, n)
            vm = len(fifo) - 1 - max(k for k, x in enumerate(fifo) if x == s_ + 1)
            sched(a, m, r + rn[:NPK], LA, npre=NPK, fill=fill, events={len(r): ['s_waitcnt vmcnt(%d)' % vm, 's_barrier']}, evrange=(n - LA, n - 1), pair=4)
        else:
            for k, x in enumerate(rsetup + osetup): fill.setdefault(12 + k // 2, []).append(x)
            fill[OPT['sig2']] = ['L_sig2:', 's_waitcnt vmcnt(0)'] + signal(sF2, 37, 4, 4)
            sched(a, m, r, LA, npre=NPK, fill=fill, pair=4)
    stamp(6)
    stamp(7)
    if SENT:
        a('s_cmp_eq_u32 s%d, 0' % sBlk); a('s_cbranch_scc1 L_have')
        for x in pollreq: a(x)
    poll(2, sF2, 4, 4)
    for i in (3, 2, 1):
        for x in recv(i): a(x)
    a.label('L_have'); a('s_nop 3')
    stamp(8)
    a('s_mov_b32 s%d, 0' % sSpin)
    for i in (3, 2, 1):
        b = vO + 16 * i
        a('s_waitcnt vmcnt(%d)' % (4 * (i - 1)))
        if SENT and i == 1:
            a.label('L_rc%d' % i)
            a('v_max3_u32 v6, v%d, v%d, v%d' % (b, b + 1, b + 2))
            for k in range(3, 15, 2): a('v_max3_u32 v6, v6, v%d, v%d' % (b + k, b + k + 1))
            a('v_max_u32 v6, v6, v%d' % (b + 15))
            a('v_cmp_eq_u32 vcc, -1, v6')
            a('s_cbranch_vccz L_rc%d_ok' % i)
            a('s_add_u32 s%d, s%d, 1' % (sSpin, sSpin)); a('s_cmp_ge_u32 s%d, %d' % (sSpin, OPT['spin'])); a('s_cbranch_scc1 L_rc%d_ok' % i)
            for x in recv(i): a(x)
            a('s_waitcnt vmcnt(0)')
            a('s_branch L_rc%d' % i)
            a.label('L_rc%d_ok' % i)
        for r in range(16): a('v_add_f32 v%d, v%d, v%d' % (ACC + r, ACC + r, b + r))
    for r in range(0, 16, 2): a('v_cvt_pk_bf16_f32 v%d, v%d, v%d' % (vQ + r // 2, ACC + r, ACC + r + 1))
    a('buffer_store_dwordx4 %s, v2, %s, s7 offen' % (vr(vQ, 4), sr(SOUT, 4)))
    a('buffer_store_dwordx4 %s, v2, %s, s39 offen' % (vr(vQ + 4, 4), sr(SOUT, 4)))
    if OPT['stamps']:
        a('s_waitcnt vmcnt(0)'); stamp(9)
    a.label('L_end')
    a('s_endpgm')
    for lab, S in rare:
        a.label(lab)
        a('s_nop 15')
        for qb in range(2):
            d, al = vDelta + qb, vAlpha + qb
            rowmax(S, qb, d)
            a('v_max_f32 v%d, 0, v%d' % (d, d))
            a('v_sub_f32 v%d, 0, v%d' % (vTmp, d))
            a('v_exp_f32 v%d, v%d' % (al, vTmp))
            for j in range(16): a('v_sub_f32 v%d, v%d, v%d' % (S + 16 * qb + j, S + 16 * qb + j, d))
            for j in range(4): a('v_sub_f32 v%d, v%d, v%d' % (vNegM + 4 * qb + j, vNegM + 4 * qb + j, d))
            for j in range(4): a('v_mul_f32 v%d, v%d, v%d' % (vLs + 4 * qb + j, vLs + 4 * qb + j, al))
            for db in range(8):
                for j in range(4): a('v_mul_f32 v%d, v%d, v%d' % (vO + 8 * db + 4 * qb + j, vO + 8 * db + 4 * qb + j, al))
        a('s_nop 3')
        a('s_branch %s_ret' % lab)
    return a

def padit(a, l0, l1, n, every):
    i0 = [k for k, i in enumerate(a.ins) if i.text.startswith(l0)][0]
    i1 = [k for k, i in enumerate(a.ins) if i.text.startswith(l1)][0]
    keep = []; c = 0
    for i in a.ins[i0:i1]:
        if i.kind == 'mfma':
            c += 1
            if c % every == 0: keep.append(Ins('s_nop %d' % (n - 1)))
        keep.append(i)
    a.ins[i0:i1] = keep

def main():
    a = gen()
    if OPT['opm']:
        i0 = [k for k, i in enumerate(a.ins) if i.text.startswith('L_st5:')][0]
        i1 = [k for k, i in enumerate(a.ins) if i.text.startswith('L_st6:')][0] - 12
        keep = []
        for i in a.ins[i0:i1]:
            if (OPT['opm'] & 1) and i.kind == 'vmem' and 'lds' in i.text: continue
            if (OPT['opm'] & 2) and i.op == 's_barrier': continue
            if (OPT['opm'] & 4) and i.kind == 'vmem' and 'store_dwordx4' in i.text: continue
            if (OPT['opm'] & 8) and i.kind == 'ds': continue
            keep.append(i)
        a.ins[i0:i1] = keep
    if OPT['pad']: padit(a, 'L_at:', 'L_at_last:', OPT['pad'], 2)
    if OPT['qpad']: padit(a, 'L_qp:', 'L_at:', OPT['qpad'], 2)
    if OPT['opad']: padit(a, 'L_poll1_out:', 'L_end:', OPT['opad'], 2)
    import io, contextlib
    buf = io.StringIO()
    with contextlib.redirect_stdout(buf):
        bad = check_program(a)
    sys.stderr.write(buf.getvalue())
    for b in bad: sys.stderr.write('BRANCH HAZARD %s\n' % (b,))
    print('; @launch grid=(256,1,1) block=(256,1,1) lds=163840')
    print('.amdgcn_target "amdgcn-amd-amdhsa--gfx950"\n.text')
    print(a.text())
    print('''.section .rodata,"a"
.p2align 6
.amdhsa_kernel %s
  .amdhsa_next_free_vgpr 512
  .amdhsa_next_free_sgpr 100
  .amdhsa_accum_offset 256
  .amdhsa_group_segment_fixed_size 0
  .amdhsa_kernarg_size 64
  .amdhsa_user_sgpr_count 2
  .amdhsa_user_sgpr_kernarg_segment_ptr 1
  .amdhsa_system_sgpr_workgroup_id_x 1
.end_amdhsa_kernel''' % NAME)
main()
```

```python
import sys, math, struct
from asmlib import *

OPT = dict(kpol='nt', vpol='nt', xwpol='-', wopol='-', stamps=0, la=14, qla=14, spin=0x8000, nokv=0, psleep=1, sigat=27,
           stagb=5, nowo=0, atm=0, pair=6, kv0at=9, dwg=0, lvalu=0, mx0=44, qpm=0, odep=2, ctouch=0, pad=0, qpad=0, opad=0, ptouch=0, ab=0, abbit=3, sent=0, ldat=28, opm=0, ostep=3, sig2=1, stg='', unr=0, nst=4, st0=4, stper=4, stp='', kvtouch=0, wabs=1, sfirst=0, abm=1, abx=0, lev='', sg=24, ebit=1)
for a_ in sys.argv[1:]:
    k, v = a_.split('=')
    assert k in OPT, k
    OPT[k] = v if not v.lstrip('-').isdigit() else int(v)
def pol(k): return str(OPT[k]).replace('+', ' ').replace('-', '')
def f32bits(x): return struct.unpack('<I', struct.pack('<f', x))[0]
QSCALE = f32bits(math.log2(math.e) / math.sqrt(128.0))
THRESH = f32bits(8.0)
def vr(b, n=1): return 'v%d' % b if n == 1 else 'v[%d:%d]' % (b, b + n - 1)
def ar(b, n=1): return 'a%d' % b if n == 1 else 'a[%d:%d]' % (b, b + n - 1)
def sr(b, n=1): return 's%d' % b if n == 1 else 's[%d:%d]' % (b, b + n - 1)
MFMA = 'v_mfma_f32_16x16x32_bf16'
NAME = 'standalone__mha_block_cached__near_ridge_kernel'

def is_valu(x): return x.startswith('v_') and not x.startswith('v_mfma')
def cost(x):
    if x.endswith(':'): return 0
    return 2 if x.startswith('v_exp') else 1

def sched(a, mf, reads, la, npre=0, fill=None, events=None, pair=2, evrange=None, maxrd=2):
    fill = fill or {}; events = events or {}
    st = dict(done=0, nxt=npre)
    def issue(cur, lim):
        n = 0
        while st['nxt'] < len(reads) and n < lim:
            k = st['nxt']; rd = reads[k]
            if rd['first'] > cur + la or rd.get('free', -1) > cur or k - st['done'] >= 15: break
            if k in events:
                if evrange is not None: assert evrange[0] <= cur <= evrange[1], ('event gap', cur, evrange)
                for x in events[k]: a(x)
            a(rd['t']); st['nxt'] += 1; n += 1
    def wait_for(i):
        us = mf[i]['uses']
        assert all(u < st['nxt'] for u in us), ('read not issued', i, mf[i], st)
        if us and max(us) + 1 > st['done']:
            pos = max(us) + 1
            for j in range(i + 1, min(i + pair, len(mf))):
                if mf[j]['uses'] and max(mf[j]['uses']) < st['nxt']: pos = max(pos, max(mf[j]['uses']) + 1)
            a('s_waitcnt lgkmcnt(%d)' % (st['nxt'] - pos)); st['done'] = pos
    def fillers(lst, cur, lim):
        if any(x.endswith(':') for x in lst):
            issue(cur, lim)
            for x in lst: a(x)
            return
        evgap = st['nxt'] in events
        if evgap: issue(cur, lim)
        for x in lst:
            if not is_valu(x): a(x)
        if not evgap: issue(cur, lim)
        for x in lst:
            if x.startswith('v_exp'): a(x)
        for x in lst:
            if is_valu(x) and not x.startswith('v_exp'): a(x)
    fillers(fill.get(-1, []), -1, 99)
    wait_for(0)
    for i, m in enumerate(mf):
        a(m['t'])
        if i + 1 < len(mf):
            if not all(u < st['nxt'] for u in mf[i + 1]['uses']): issue(i, 99)
            wait_for(i + 1)
        fillers(fill.get(i, []), i, maxrd if i + 1 < len(mf) else 99)
    assert st['nxt'] == len(reads), (st, len(reads))

def bsched(a, mf, reads, la, npre=0, events=None, fixed=None, streams=(), pair=2, evrange=None, cap=3):
    fixed = {k: list(v) for k, v in (fixed or {}).items()}
    n = len(mf)
    t = Asm(); sched(t, mf, reads, la, npre=npre, fill=fixed, events=events, pair=pair)
    load = {g: 0 for g in range(-1, n)}; g = -1
    for i in t.ins:
        if i.kind == 'mfma': g += 1
        elif i.kind != 'none': load[g] += cost(i.text)
    load[n - 1] += load[-1] + 1
    total = sum(load[g] for g in range(n)) + sum(cost(o[0]) for s_ in streams for o in s_)
    fill = {g: list(fixed.get(g, [])) for g in range(-1, n)}
    pos = [0] * len(streams); done = 0
    for g in range(n):
        done += load[g]; used = load[g]
        target = total * (g + 1.0) / n + 1.0
        while True:
            cand = sorted((streams[k][pos[k]][2], k) for k in range(len(streams)) if pos[k] < len(streams[k]) and streams[k][pos[k]][1] <= g)
            ok = False
            for dl, k in cand:
                c = cost(streams[k][pos[k]][0])
                if dl <= g or used + c <= 2 or (used + c <= cap and done + c <= target):
                    fill[g].append(streams[k][pos[k]][0]); used += c; done += c; pos[k] += 1; ok = True
                    break
            if not ok: break
    assert all(pos[k] == len(streams[k]) for k in range(len(streams))), pos
    sched(a, mf, reads, la, npre=npre, fill=fill, events=events, pair=pair, evrange=evrange)

STAMP_OFF = 496 * 1024 * 1024
NST = 24

def gen():
    a = Asm()
    a.raw('.globl %s\n.p2align 8\n.type %s,@function' % (NAME, NAME)); a.label(NAME)
    SX, SW, SK, SV, SWS, SWO, SOUT, SDBG, SST = 8, 12, 16, 20, 24, 56, 60, 64, 68
    sWave, sLdsW, sAoff, sBoff, sCnt, sH, sB, sT0, sT1, sOb, sKoff, sVoff, sThr = 29, 30, 31, 32, 33, 34, 35, 46, 47, 48, 49, 50, 51
    sQs, sJ, sKg, sPA, sPB = 52, 54, 55, 44, 45
    sWoP, sWoB, sF1, sF2, sSpin, sEx, sT2, sPb, sBlk = 72, 73, 74, 75, 76, 78, 80, 81, 83
    vKoff, vVoff, vWoOff, vOoff = 10, 12, 14, 15
    vKaddr, vTaddr, vWoAddr = 16, 20, 28
    vMax, vTmp, vTmp2, vDelta, vAlpha = 29, 30, 31, 32, 34
    vQ, vNegM, vLs, vS, vO = 40, 72, 80, [88, 120], 152
    POOL = [216 + 4 * i for i in range(8)]
    vOnes = 248
    STGAT = [int(x) for x in str(OPT['stg']).split('+') if x != '']
    AB = OPT['ab'] or len(STGAT) or (OPT['nst'] if OPT['unr'] else 0)
    STP = [int(x) for x in str(OPT['stp']).split('+') if x != ''] or list(range(AB))
    assert len(STP) == AB
    WABS = False
    eb = 1 << OPT['ebit']; same = [x for x in range(1, 8) if not x & eb]; other = [x for x in range(1, 8) if x & eb]
    nib = lambda l: sum(x << (4 * k) for k, x in enumerate(l))
    TE, TL = nib([0] + same + other), nib([0] + other + same)
    sTab, sNA, sNB, sSzA, sMA = 97, 98, 99, 38, 39
    sGrp, sLim1, sMv, sMk, vStg = 28, 77, 82, 96, 31
    vXoff, vWoff, vXaddr, vTw = vQ, vQ + 4, vQ + 22, vQ + 24
    vOaddr = vKaddr
    AUX, BB = 65536, 98304
    vs = lambda t: (t + 3) & 3
    WS_P, WS_F1, WS_F2 = 0x800000, 0x1800000, 0x1810000

    def stamp(idx, dyn=None):
        if not OPT['stamps']: return
        if OPT['stamps'] == 5 and idx not in (0, 9):
            if idx == 11: a.label('L_st11')
            return
        lab = 'L_st%d' % idx
        if OPT['stamps'] == 3:
            slot = {0: 0, 10: 1, 11: 2, 1: 3, 2: 4, 3: 5, 4: 6, 5: 7, 6: 8, 7: 9, 8: 10, 9: 11, 12: 12}[idx]
            a('s_cmp_lg_u32 s%d, 0' % sWave); a('s_cbranch_scc1 %s' % lab)
            a('s_cmp_lg_u32 s2, %d' % OPT['dwg']); a('s_cbranch_scc1 %s' % lab)
            if dyn is not None:
                a('s_cmp_gt_u32 s%d, 2' % dyn); a('s_cbranch_scc1 %s' % lab)
            if idx == 7: a('s_mov_b32 s84, s96')
            else:
                a('s_memrealtime s[84:85]'); a('s_waitcnt lgkmcnt(0)')
            a('v_mov_b32 v252, s84'); a('v_mov_b32 v254, 0')
            a('s_mov_b32 s86, %d' % (4 + 4 * slot))
            if dyn is not None:
                a('s_lshl_b32 s87, s%d, 2' % dyn); a('s_add_u32 s86, s86, s87')
            a('buffer_store_dword v252, v254, %s, s86 offen sc1' % sr(SDBG, 4))
            a.label(lab)
            return
        a('s_cmp_lg_u32 s%d, 0' % sWave); a('s_cbranch_scc1 %s' % lab)
        a('s_memtime s[84:85]' if OPT['stamps'] == 2 else 's_memrealtime s[84:85]')
        if OPT['stamps'] == 4:
            a('s_memtime s[86:87]'); a('s_waitcnt lgkmcnt(0)'); a('s_mov_b32 s85, s86')
        a('s_waitcnt lgkmcnt(0)')
        a('v_mov_b32 v252, s84'); a('v_mov_b32 v253, s85'); a('v_mov_b32 v254, 0')
        a('s_mul_i32 s86, s2, %d' % (NST * 8)); a('s_add_u32 s86, s86, %d' % (idx * 8))
        if dyn is not None:
            a('s_lshl_b32 s87, s%d, 3' % dyn); a('s_add_u32 s86, s86, s87')
        a('buffer_store_dwordx2 v[252:253], v254, %s, s86 offen' % sr(SST, 4))
        a.label(lab)
    def srd(d, lo, hi, off, size):
        if off is None:
            a('s_mov_b32 s%d, s%d' % (d, lo)); a('s_mov_b32 s%d, s%d' % (d + 1, hi))
        else:
            a('s_add_u32 s%d, s%d, %s' % (d, lo, off)); a('s_addc_u32 s%d, s%d, 0' % (d + 1, hi))
        if size is not None: a('s_mov_b32 s%d, %s' % (d + 2, size))
        a('s_mov_b32 s%d, 0x00020000' % (d + 3))

    if OPT['stamps'] == 3: a('s_memrealtime s[96:97]')
    a('s_cmp_ge_u32 s2, 256')
    a('s_cbranch_scc1 L_end')
    a('s_load_dwordx8 s[36:43], s[0:1], 0')
    a('s_load_dwordx8 s[88:95], s[0:1], 32')
    if OPT['ctouch']:
        a('s_getpc_b64 s[4:5]')
        a('s_and_b32 s4, s4, 0xffffff00')
        a('s_lshr_b32 s3, s2, 3'); a('s_lshl_b32 s3, s3, 10'); a('s_add_u32 s4, s4, s3'); a('s_addc_u32 s5, s5, 0')
        a('v_and_b32 v2, 7, v0'); a('v_lshlrev_b32 v2, 7, v2'); a('v_mov_b32 v3, s5'); a('v_add_co_u32 v2, vcc, s4, v2'); a('v_addc_co_u32 v3, vcc, 0, v3, vcc')
        a('global_load_dword v255, v[2:3], off')
    a('v_lshrrev_b32 v2, 6, v0')
    a('v_and_b32 v1, 63, v0')
    a('v_readfirstlane_b32 s%d, v2' % sWave)
    a('s_and_b32 s%d, s2, 3' % sKg); a('s_lshl_b32 s3, s%d, 3' % sKg); a('s_lshr_b32 s4, s2, 3'); a('s_and_b32 s%d, s4, 7' % sJ)
    a('s_add_u32 s%d, s3, s%d' % (sH, sJ)); a('s_and_b32 s3, s2, 4'); a('s_lshr_b32 s4, s4, 3'); a('s_add_u32 s%d, s3, s4' % sB)
    a('s_lshl_b32 s%d, s%d, 12' % (sLdsW, sWave))
    a('v_lshrrev_b32 v2, 4, v1')
    a('v_and_b32 v3, 15, v1')
    a('v_lshrrev_b32 v4, 3, v1')
    a('v_and_b32 v5, 7, v1')
    a('v_lshlrev_b32 v6, 1, v2'); a('v_xor_b32 v6, v6, v3'); a('v_lshlrev_b32 v6, 4, v6')
    a('v_xor_b32 v9, 0x80, v6')
    a('s_lshl_b32 s3, s%d, 17' % sWave)
    a('v_lshl_add_u32 v7, v2, 13, v6'); a('v_add_u32 v%d, s3, v7' % vWoff)
    a('v_add_u32 v%d, %d, v%d' % (vWoff + 1, 32768 - 1024, vWoff))
    a('v_lshl_add_u32 v7, v2, 13, v9'); a('v_add_u32 v7, s3, v7')
    a('v_add_u32 v%d, %d, v7' % (vWoff + 2, 2 * (32768 - 1024))); a('v_add_u32 v%d, %d, v7' % (vWoff + 3, 3 * (32768 - 1024)))
    a('s_lshl_b32 s3, s%d, 16' % sWave)
    a('v_xor_b32 v7, v2, v5'); a('v_xor_b32 v8, 4, v7')
    a('v_lshlrev_b32 v7, 4, v7'); a('v_lshlrev_b32 v8, 4, v8')
    a('v_lshl_add_u32 v7, v4, 11, v7'); a('v_lshl_add_u32 v8, v4, 11, v8')
    a('v_add_u32 v%d, s3, v7' % vXoff); a('v_add_u32 v8, s3, v8')
    a('v_add_u32 v%d, %d, v8' % (vXoff + 1, 1 * (16384 - 1024)))
    a('v_add_u32 v%d, %d, v%d' % (vXoff + 2, 2 * (16384 - 1024), vXoff))
    a('v_add_u32 v%d, %d, v8' % (vXoff + 3, 3 * (16384 - 1024)))
    a('s_lshl_b32 s3, s%d, 1' % sH); a('s_mul_i32 s4, s%d, %d' % (sB, OPT['stagb'])); a('s_add_u32 s3, s3, s4'); a('s_and_b32 s3, s3, 15')
    a('s_lshl_b32 s%d, s3, 7' % sAoff)
    a('s_lshl_b32 s5, s%d, 18' % sB); a('s_lshl_b32 s6, s%d, 8' % sH); a('s_sub_u32 s%d, 0x800000, s6' % (SW + 2))
    a('s_waitcnt lgkmcnt(0)')
    srd(SX, 36, 37, 's5', '0x40000'); srd(SW, 42, 43, 's6', None)

    XST = [16384, 32768, 49152, 65536]
    WST = [BB, BB + 16384, BB + 32768, BB - 16384]
    def dma_xw(st):
        out = ['s_add_u32 m0, s%d, %d' % (sLdsW, XST[st]), 's_lshl_b32 s%d, s%d, 12' % (sBoff, sAoff)]
        for i in range(4):
            out.append('buffer_load_dwordx4 v%d, %s, s%d offen offset:%d %s lds' % (vXoff + i, sr(SX, 4), sAoff, i * 1024, pol('xwpol')))
        out += ['s_add_u32 m0, s%d, %d' % (sLdsW, WST[st]), 's_add_u32 s%d, s%d, 128' % (sAoff, sAoff)]
        for i in range(4):
            out.append('buffer_load_dwordx4 v%d, %s, s%d offen offset:%d %s lds' % (vWoff + i, sr(SW, 4), sBoff, i * 1024, pol('xwpol')))
            if i == 0: out.append('s_and_b32 s%d, s%d, 0x7ff' % (sAoff, sAoff))
        return out
    def dma_kv(t, S, so, vo, base, p, sm0=None):
        out = ['s_add_u32 m0, s%d, %d' % (sLdsW, base), 's_cmp_lt_u32 s%d, 0x80000' % so, 's_cselect_b32 s%d, %s, 0' % (S + 2, '0' if OPT['nokv'] else '0x80000')]
        if sm0 is not None:
            out = ['s_mov_b32 m0, s%d' % sm0, 's_cmp_lt_u32 s%d, s%d' % (so, sLim1), out[2]]
        for i in range(4):
            out.append('buffer_load_dwordx4 v%d, %s, s%d offen offset:%d %s lds' % (vo + (i >> 1), sr(S, 4), so, i * 1024, pol(p)))
        out.append('s_add_u32 s%d, s%d, 0x4000' % (so, so))
        return out
    dma_k = lambda t, sm0=None: dma_kv(t, SK, sKoff, vKoff, (t & 3) * 16384, 'kpol', sm0)
    dma_v = lambda t, sm0=None: dma_kv(t, SV, sVoff, vVoff, BB + vs(t) * 16384, 'vpol', sm0)
    def kv_setup():
        a('s_lshl_b32 s3, s%d, 5' % sB); a('s_add_u32 s3, s3, s%d' % sH); a('s_lshl_b32 s3, s3, 19')
        srd(SK, 38, 39, 's3', '0x80000'); srd(SV, 40, 41, 's3', '0x80000')
        a('v_lshl_add_u32 v7, v2, 8, v6'); a('v_add_u32 v%d, s%d, v7' % (vVoff, sLdsW))
        a('v_lshl_add_u32 v7, v2, 8, v9'); a('v_add_u32 v%d, s%d, v7' % (vVoff + 1, sLdsW))
        a('s_lshl_b32 s3, s%d, 3' % sWave); a('s_and_b32 s3, s3, 8')
        a('v_xor_b32 v8, v2, v3'); a('v_xor_b32 v8, s3, v8')
        for i in range(2):
            a('v_xor_b32 v7, %d, v8' % (4 * i)); a('v_lshlrev_b32 v7, 4, v7'); a('v_lshl_add_u32 v7, v2, 8, v7')
            a('v_add_u32 v%d, s%d, v7' % (vKoff + i, sLdsW))
    def dma_wo():
        out = ['s_and_b32 s%d, s%d, 7' % (sT2, sWoP), 's_lshl_b32 s%d, s%d, 18' % (sT2, sT2), 's_add_u32 s%d, s%d, s%d' % (sT2, sT2, sWoB),
               's_lshl_b32 m0, s%d, 1' % sLdsW, 's_add_u32 m0, m0, %d' % AUX, 's_lshr_b32 s%d, s%d, 4' % (sWoP, sWoP)]
        for i in range(8):
            if i == 4: out.append('s_add_u32 m0, m0, 4096')
            if i: out.append('s_add_u32 s%d, s%d, %d' % (sT2, sT2, 8192 - 1024 + (4096 if i == 4 else 0)))
            out.append('buffer_load_dwordx4 v%d, %s, s%d offen offset:%d %s lds' % (vWoOff, sr(SWO, 4), sT2, (i & 3) * 1024, pol('wopol')))
        return out
    def groups(lst):
        gs = [[]]
        for x in lst:
            gs[-1].append(x)
            if x.startswith('buffer'): gs.append([])
        if gs[-1]: gs[-2] += gs[-1]
        return gs[:-1]
    def spread(fixed, lst, g0, step, per=2):
        g = g0
        for grp in groups(lst):
            pre = grp[:[x.startswith('buffer') for x in grp].index(True)]
            rest = grp[len(pre):]
            while len(pre) > 1:
                fixed.setdefault(g, []).extend(pre[:2]); pre = pre[2:]; g += 1
            fixed.setdefault(g, []).extend(pre + rest); g += step
        return g

    def stage_loads(p):
        p = STP[p]
        out = ['s_mov_b32 s3, %d' % ((4 * p + 4) * 16384), 's_mov_b32 s4, %d' % ((4 * p + 6) * 16384)]
        for i in range(4): out.append('buffer_load_dwordx4 %s, v%d, %s, s3 offen offset:%d %s' % (ar(32 * p + 4 * i, 4), vVoff + (i >> 1), sr(SV, 4), i * 1024, pol('vpol')))
        for i in range(4): out.append('buffer_load_dwordx4 %s, v%d, %s, s4 offen offset:%d %s' % (ar(32 * p + 16 + 4 * i, 4), vKoff + (i >> 1), sr(SK, 4), i * 1024, pol('kpol')))
        return out
    if OPT['ab']:
        a('s_mov_b32 s%d, 0' % sGrp)
        if OPT['lev']:
            tab = sum(int(ch, 16) << (4 * k) for k, ch in enumerate(str(OPT['lev'])[1:]))
            a('s_lshl_b32 s7, s%d, 2' % sJ); a('s_lshr_b32 s7, 0x%x, s7' % tab); a('s_and_b32 s7, s7, 15'); a('s_cbranch_scc0 L_grpa')
        else:
            a('s_lshr_b32 s7, s2, %d' % (3 + OPT['abbit'])); a('s_add_u32 s7, s7, %d' % OPT['abx']); a('s_and_b32 s7, s7, %d' % OPT['abm']); a('s_cbranch_scc0 L_grpa')
            a('s_mul_i32 s7, s7, %d' % (AB // OPT['abm']))
        kv_setup()
        for p in range(AB):
            if p:
                a('s_cmp_le_u32 s7, %d' % p); a('s_cbranch_scc1 L_grpa')
            for x in stage_loads(p): a(x)
            a('s_or_b32 s%d, s%d, %d' % (sGrp, sGrp, 1 << STP[p]))
        a.label('L_grpa')
    for x in dma_xw(0): a(x)
    if OPT['kvtouch']: kv_setup()
    if AB:
        if not OPT['ab']: a('s_mov_b32 s%d, %d' % (sGrp, sum(1 << p for p in STP)))
        a('v_lshlrev_b32 v7, 4, v1'); a('v_add_u32 v7, s%d, v7' % sLdsW); a('v_add_u32 v%d, %d, v7' % (vStg, BB))
    srd(SWS, 94, 95, None, '0x2000000'); srd(SWO, 88, 89, None, '0' if OPT['nowo'] else '0x800000'); srd(SOUT, 90, 91, None, '0x200000'); srd(SDBG, 92, 93, None, '256')
    if OPT['stamps']: srd(SST, 94, 95, str(STAMP_OFF), '0x100000')
    stamp(0)
    a('s_mov_b64 %s, exec' % sr(sEx, 2))
    a('s_lshl_b32 s3, s%d, 2' % sB); a('s_add_u32 s3, s3, s%d' % sKg); a('s_lshl_b32 s3, s3, 11'); a('s_lshl_b32 s4, s%d, 8' % sWave)
    a('s_add_u32 s%d, s3, 0x%x' % (sF1, WS_F1))
    a('s_lshl_b32 s3, s%d, 3' % sB); a('s_add_u32 s5, s3, s%d' % sJ); a('s_lshl_b32 s3, s5, 10')
    a('s_add_u32 s3, s3, s4'); a('s_add_u32 s%d, s3, 0x%x' % (sF2, WS_F2))
    a('s_lshl_b32 s3, s%d, 6' % sJ); a('s_add_u32 s3, s3, s%d' % sWave); a('s_lshl_b32 s3, s3, 2'); a('s_lshl_b32 s4, s%d, 2' % sKg)
    a('v_mov_b32 v36, s3'); a('v_mov_b32 v37, s4'); a('v_mov_b32 v38, 0'); a('v_mov_b32 v39, 0')
    a('s_lshl_b32 s3, s5, 18'); a('s_add_u32 s3, s3, s%d' % sLdsW); a('s_add_u32 s%d, s3, 0x%x' % (sPb, WS_P))
    a('s_mul_i32 s3, s%d, 0x14000' % sKg); a('s_add_u32 s3, s3, s%d' % sPb)
    a('s_lshl_b32 s4, s%d, 18' % sB)
    a('s_mov_b64 exec, 1')
    a('buffer_atomic_swap v38, v36, %s, s%d offen sc0 sc1' % (sr(SWS, 4), sF1))
    a('buffer_atomic_swap v39, v37, %s, s%d offen sc0 sc1' % (sr(SWS, 4), sF2))
    if OPT['kvtouch']:
        a('s_lshl_b32 s7, s%d, 21' % sKg)
        a('buffer_load_dword v255, v36, %s, 0 offen nt' % sr(SK, 4))
        a('buffer_load_dword v255, v36, %s, 0 offen nt' % sr(SV, 4))
        a('buffer_load_dword v255, v36, %s, s7 offen' % sr(SWO, 4))
    if OPT['ptouch']:
        a('buffer_load_dword v255, v36, %s, s3 offen sc1' % sr(SWS, 4))
        a('buffer_load_dword v255, v36, %s, s4 offen sc1' % sr(SOUT, 4))
    a('s_mov_b64 exec, %s' % sr(sEx, 2))
    if not OPT['kvtouch']: kv_setup()
    a('s_mov_b32 s%d, 0' % sKoff); a('s_mov_b32 s%d, 0' % sVoff); a('s_mov_b32 s3, 0x%x' % TE); a('s_bitcmp1_b32 s%d, %d' % (sJ, OPT['ebit'])); a('s_cselect_b32 s%d, 0x%x, s3' % (sTab, TL)); a('s_mul_i32 s3, s%d, 0x11111111' % sJ); a('s_xor_b32 s%d, s%d, s3' % (sTab, sTab)); a('s_mov_b32 s%d, s%d' % (sWoP, sTab))
    a('s_lshl_b32 s3, s%d, 21' % sKg); a('s_lshl_b32 s4, s%d, 16' % sWave); a('s_add_u32 s%d, s3, s4' % sWoB)
    a('s_lshr_b32 s3, s%d, 1' % sJ); a('s_and_b32 s4, s%d, 1' % sJ); a('s_lshl_b32 s4, s4, 2'); a('s_add_u32 s3, s3, s4')
    a('s_lshl_b32 s%d, s3, 7' % sPA)
    a('s_add_u32 s3, s3, 2'); a('s_and_b32 s3, s3, 7'); a('s_add_u32 s3, s3, 7'); a('s_lshl_b32 s%d, s3, 7' % sPB)
    a('v_lshlrev_b32 v6, 2, v2'); a('v_xor_b32 v6, v6, v3'); a('v_lshlrev_b32 v6, 4, v6')
    a('v_lshl_add_u32 v%d, v2, 11, v6' % vWoOff)
    a('v_mov_b32 v7, s%d' % sPA); a('v_mov_b32 v8, s%d' % sPB); a('v_cmp_gt_u32 vcc, 128, v6'); a('s_nop 1')
    a('v_cndmask_b32 v7, v8, v7, vcc'); a('v_add_u32 v%d, v7, v%d' % (vWoOff, vWoOff))
    a('v_and_b32 v4, 12, v3'); a('v_and_b32 v5, 3, v3'); a('v_lshl_add_u32 v4, v4, 1, v5')
    a('v_and_b32 v5, 1, v2'); a('v_lshlrev_b32 v5, 1, v5'); a('v_lshrrev_b32 v6, 1, v2'); a('v_or_b32 v5, v5, v6'); a('v_xor_b32 v5, v5, v3')
    for m in range(4):
        a('v_xor_b32 v6, %d, v5' % (4 * m)); a('v_lshlrev_b32 v6, 4, v6'); a('v_lshl_add_u32 v%d, v4, 8, v6' % (vKaddr + m))
    a('v_lshrrev_b32 v5, 1, v3'); a('v_xor_b32 v5, v5, v2')
    for ks in range(2):
        a('v_xor_b32 v6, %d, v5' % (4 * ks)); a('v_lshlrev_b32 v6, 4, v6'); a('v_lshl_add_u32 v6, v3, 7, v6')
        a('v_add_u32 v6, s%d, v6' % sLdsW); a('v_add_u32 v%d, 0x4000, v6' % (vXaddr + ks))
    a('v_lshrrev_b32 v4, 2, v3')
    a('v_lshl_add_u32 v5, v2, 3, v4'); a('v_lshlrev_b32 v5, 8, v5')
    a('v_and_b32 v6, 1, v1'); a('v_lshl_add_u32 v5, v6, 3, v5'); a('v_add_u32 v5, %d, v5' % BB)
    a('v_and_b32 v6, 1, v2'); a('v_lshl_add_u32 v6, v6, 2, v4'); a('v_lshlrev_b32 v6, 1, v6')
    a('v_lshrrev_b32 v7, 1, v1'); a('v_and_b32 v7, 1, v7'); a('v_or_b32 v6, v6, v7')
    for db in range(8):
        a('v_xor_b32 v7, %d, v6' % (2 * db)); a('v_lshl_add_u32 v%d, v7, 4, v5' % (vTaddr + db))
        a('v_add_u32 v%d, -16384, v%d' % (vTw + db, vTaddr + db))
    a('v_lshl_add_u32 v5, v2, 2, v4'); a('v_lshlrev_b32 v5, 8, v5'); a('v_add_u32 v5, 0x%x, v5' % AUX)
    a('s_lshl_b32 s3, s%d, 2' % sWave)
    a('v_xor_b32 v6, s3, v3')
    a('v_lshl_add_u32 v%d, v6, 4, v5' % vWoAddr)
    a('v_lshlrev_b32 v%d, 4, v1' % vOoff)
    for i in range(64): a('v_mov_b32 v%d, 0' % (vS[0] + i))
    a('s_mov_b32 s%d, 0x%08x' % (sQs, QSCALE)); a('s_mov_b32 s%d, 0x%08x' % (sQs + 1, QSCALE)); a('s_mov_b32 s%d, 0x%08x' % (sThr, THRESH))
    for k in range(4): a('v_mov_b32 v%d, 0x3f803f80' % (vOnes + k))
    a('s_mov_b32 s%d, 0' % sCnt)

    LA = OPT['la']
    def tr2(buf, addr, off, first, free):
        return [dict(t='ds_read_b64_tr_b16 %s, v%d offset:%d' % (vr(buf, 2), addr, off), first=first, free=free),
                dict(t='ds_read_b64_tr_b16 %s, v%d offset:%d' % (vr(buf + 2, 2), addr, off + 1024), first=first + 1, free=free)]
    def qk_parts(slot, S, first, mbase=0, rbase=0):
        reads = []; mf = []
        for n in range(16):
            blk, m = n >> 2, n & 3; u, kb2 = blk >> 1, blk & 1
            buf = POOL[n & 7]
            reads.append(dict(t='ds_read_b128 %s, v%d offset:%d' % (vr(buf, 4), vKaddr + m, slot * 16384 + u * 8192 + kb2 * 1024), first=mbase + 2 * n, free=mbase + 2 * n - 15))
            for qb in range(2):
                acc = vr(S + 16 * qb + 4 * blk, 4)
                c = acc if m else ('0' if first else vr(vNegM + 4 * qb, 4))
                mf.append(dict(t='%s %s, %s, %s, %s' % (MFMA, acc, vr(buf, 4), vr(vQ + 8 * m + 4 * qb, 4), c), uses=[rbase + n]))
        return reads, mf
    def lsum(S, u, qb):
        return dict(t='%s %s, %s, %s, %s' % (MFMA, vr(vLs + 4 * qb, 4), vr(vOnes, 4), vr(S + 16 * qb + 8 * u, 4), vr(vLs + 4 * qb, 4)), uses=[])
    def pv_parts(t, S, mbase=0, rbase=0, prev=None):
        reads = []; mf = []; last = dict(prev or {})
        for n in range(16):
            u, db = n >> 3, n & 7
            buf = POOL[n & 7]
            i = mbase + len(mf)
            reads += tr2(buf, vTaddr + db, vs(t) * 16384 + u * 8192, i, last.get(n & 7, -1))
            for qb in range(2):
                acc = vr(vO + 8 * db + 4 * qb, 4)
                mf.append(dict(t='%s %s, %s, %s, %s' % (MFMA, acc, vr(buf, 4), vr(S + 16 * qb + 8 * u, 4), acc), uses=[rbase + 2 * n, rbase + 2 * n + 1]))
            last[n & 7] = i + 1
            if db in (2, 5) and not OPT['lvalu']: mf.append(lsum(S, u, 0 if db == 2 else 1))
        return reads, mf, last
    def softmax_ops(S):
        ops = []
        for u in range(2):
            for qb in range(2):
                b = S + 16 * qb + 8 * u
                for h4 in range(2):
                    q = b + 4 * h4
                    for j in range(4): ops.append(('v_exp_f32 v%d, v%d' % (q + j, q + j), u))
                    for j in range(2):
                        if OPT['lvalu']:
                            ops.append(('v_add_f32 v%d, v%d, v%d' % (vLs + 4 * qb, vLs + 4 * qb, q + 2 * j), u))
                            ops.append(('v_add_f32 v%d, v%d, v%d' % (vLs + 4 * qb, vLs + 4 * qb, q + 2 * j + 1), u))
                        ops.append(('v_cvt_pk_bf16_f32 v%d, v%d, v%d' % (b + 2 * h4 + j, q + 2 * j, q + 2 * j + 1), u))
        return ops
    def max_ops(S):
        regs = [(S + 16 * qb + 4 * blk + r, blk) for blk in range(4) for qb in range(2) for r in range(4)]
        ops = [('v_max3_f32 v%d, v%d, v%d, v%d' % (vMax, regs[0][0], regs[1][0], regs[2][0]), 0)]
        for j in range(3, 31, 2): ops.append(('v_max3_f32 v%d, v%d, v%d, v%d' % (vMax, vMax, regs[j][0], regs[j + 1][0]), regs[j + 1][1]))
        ops.append(('v_max_f32 v%d, v%d, v%d' % (vMax, vMax, regs[31][0]), 3))
        return ops
    def allgroups(v, op):
        for sw in ('v_permlane32_swap_b32', 'v_permlane16_swap_b32'):
            a('v_mov_b32 v%d, v%d' % (vTmp, v)); a('s_nop 1'); a('%s v%d, v%d' % (sw, v, vTmp)); a('s_nop 1'); a('%s v%d, v%d, v%d' % (op, v, v, vTmp))
    def rowmax(S, qb, d):
        b = S + 16 * qb
        a('v_max3_f32 v%d, v%d, v%d, v%d' % (d, b, b + 1, b + 2))
        for j in range(3, 15, 2): a('v_max3_f32 v%d, v%d, v%d, v%d' % (d, d, b + j, b + j + 1))
        a('v_max_f32 v%d, v%d, v%d' % (d, d, b + 15))
        allgroups(d, 'v_max_f32')
    def emit_reads(rs):
        for rd in rs: a(rd['t'])
    def npre_of(r, base, la): return min(13, len([x for x in r if x['first'] - base <= la - 1]))

    WP = [vO + 4 * i for i in range(16)]
    QLA = OPT['qla']
    def qp_reads(st, mbase=0, rbase=0, dbmajor=False):
        reads = []; mf = []; xi = {}
        XP = [vNegM + 4 * k for k in range(4)] if dbmajor else POOL[4 * (st & 1): 4 * (st & 1) + 4]
        order = [(ks, db) for db in range(8) for ks in range(2)] if dbmajor else [(ks, db) for ks in range(2) for db in range(8)]
        for n, (ks, db) in enumerate(order):
            i = mbase + 2 * n
            if ks not in xi:
                xi[ks] = rbase + len(reads)
                for qb in range(2):
                    reads.append(dict(t='ds_read_b128 %s, v%d offset:%d' % (vr(XP[2 * ks + qb], 4), vXaddr + ks, XST[st] - 16384 + qb * 2048), first=i))
            wi = rbase + len(reads)
            reads += tr2(WP[n], vTw + db, WST[st] - (BB - 16384) + ks * 8192, i, i - 31)
            for qb in range(2):
                acc = vr(vS[0] + 8 * db + 4 * qb, 4)
                mf.append(dict(t='%s %s, %s, %s, %s' % (MFMA, acc, vr(WP[n], 4), vr(XP[2 * ks + qb], 4), acc), uses=[wi, wi + 1, xi[ks], xi[ks] + 1]))
        return reads, mf
    gkv = lambda t: groups(dma_k(t) + dma_v(t))
    gxw = lambda c: groups(dma_xw(c & 3))
    EXTRA = {OPT['kv0at']: None}
    for p_, q in enumerate(STGAT): assert q not in EXTRA and q < 12; EXTRA[q] = p_
    def qp_body(c, early, late, tail=()):
        r0, mf = qp_reads(c & 3); r1, _ = qp_reads((c + 1) & 3, 32, dbmajor=(c == 14))
        fill = {}
        for k, g in enumerate(early): fill[4 * k] = list(g)
        for k, g in enumerate(late): fill[22 + 4 * k] = list(g)
        fill.setdefault(31, []); fill[31] += list(tail)
        ev = ['s_waitcnt vmcnt(8)', 's_barrier']
        nxt8 = [q + 1 for q in EXTRA]
        if c >= 12:
            if c in nxt8: ev = ['s_waitcnt vmcnt(16)', 's_barrier']
        else:
            ps = [q >> 2 for q in nxt8 if q < 12 and (q & 3) == c]
            if ps:
                ev = []
                for p_ in ps: ev += ['s_cmp_eq_u32 s%d, %d' % (sCnt, p_), 's_cbranch_scc1 L_kvw%d' % c]
                ev += ['s_waitcnt vmcnt(8)', 'L_kvw%d:' % c, 's_waitcnt vmcnt(16)', 's_barrier']
        sched(a, mf, r0 + r1[:npre_of(r1, 32, QLA)], QLA, npre=npre_of(r0, 0, QLA), fill=fill, events={len(r0): ev}, evrange=(17, 22), pair=4)
    r0, _ = qp_reads(0)
    for g in groups(dma_xw(1)):
        for x in g: a(x + (' ; T:i1' if x.startswith('buffer') else ''))
    for g in groups(dma_xw(2))[:3]:
        for x in g: a(x)
    a('s_waitcnt vmcnt(11)')
    a('s_barrier')
    stamp(10)
    emit_reads(r0[:npre_of(r0, 0, QLA)])
    if OPT['unr']:
        tag = lambda gs, t: [[x + ' ; T:%s' % t if x.startswith('buffer') else x for x in g] for g in gs]
        item = lambda k: tag(gxw(k), 'i%d' % k) if k < 16 else tag(gkv(k - 15), 'i%d' % k)
        extra = []
        for p_ in range(AB):
            sl = stage_loads(p_)
            extra += groups([sl[0].replace('s3', 's6')] + [x.replace(', s3 ', ', s6 ') for x in sl[2:6]] + [sl[1].replace('s4', 's6')] + [x.replace(', s4 ', ', s6 ') for x in sl[6:]])
        a.label('L_qp')
        n_start = len(a.ins)
        for c in range(15):
            if c == 8: stamp(11)
            r0, mf = qp_reads(c & 3); r1, _ = qp_reads((c + 1) & 3, 32, dbmajor=(c == 14))
            fill = {}
            for k, g in enumerate(item(c + 2)[3:]): fill[4 * k] = list(g)
            for k, g in enumerate(item(c + 3)[:3]): fill[22 + 4 * k] = list(g)
            if c in (OPT['kv0at'], OPT['kv0at'] + 1):
                for k, g in enumerate(groups(dma_k(0) if c == OPT['kv0at'] else dma_v(0))): fill[17 + k] = list(g)
            elif c >= OPT['st0']:
                for gp in (2, 10, 24, 6, 14, 28, 18, 20)[:OPT['stper']][::1]:
                    pass
                for gp in sorted((2, 10, 24, 18, 6, 14, 28, 20)[:OPT['stper']]):
                    if extra: fill[gp] = extra.pop(0)
            sched(a, mf, r0 + r1[:npre_of(r1, 32, QLA)], QLA, npre=npre_of(r0, 0, QLA), fill=fill, events={len(r0): ['s_waitcnt vmcnt(0) ; W:i%d' % (c + 1), 's_barrier']}, evrange=(17, 22), pair=4)
            if c == 2:
                a('s_cmp_lg_u32 s%d, 0' % sWave); a('s_cbranch_scc1 L_noinit')
                a('v_mov_b32 v38, 1'); a('v_mov_b32 v39, 0')
                a('s_mov_b64 exec, 1')
                a('buffer_atomic_add v38, v39, %s, 0 offen sc1' % sr(SDBG, 4))
                a('s_mov_b64 exec, %s' % sr(sEx, 2))
                a.label('L_noinit')
        assert not extra
        for k in range(n_start, len(a.ins)):
            t = a.ins[k].text
            if '; W:' in t:
                want = 'T:' + t.split('W:')[1].strip(); n = 0; j = k - 1
                while j >= 0 and not a.ins[j].text.endswith(want):
                    if a.ins[j].op.startswith('buffer_load'): n += 1
                    j -= 1
                assert j >= 0 and n < 60, (t, n)
                a.ins[k] = Ins('s_waitcnt vmcnt(%d)' % n)
    else:
        a.label('L_qp')
        if OPT['stamps']:
            a('s_cmp_lg_u32 s%d, 2' % sCnt); a('s_cbranch_scc1 L_st11')
            stamp(11)
        for c in range(4):
            qp_body(c, gxw(c + 2)[3:], gxw(c + 3)[:3], ['s_add_u32 s%d, s%d, 1' % (sCnt, sCnt), 's_cmp_lt_u32 s%d, 3' % sCnt] if c == 3 else [])
            if c == 2:
                a('s_or_b32 s3, s%d, s%d' % (sWave, sCnt)); a('s_cbranch_scc1 L_noinit')
                a('v_mov_b32 v38, 1'); a('v_mov_b32 v39, 0')
                a('s_mov_b64 exec, 1')
                a('buffer_atomic_add v38, v39, %s, 0 offen sc1' % sr(SDBG, 4))
                a('s_mov_b64 exec, %s' % sr(sEx, 2))
                a.label('L_noinit')
            for q in sorted(EXTRA):
                if (q & 3) != c: continue
                a('s_cmp_lg_u32 s%d, %d' % (sCnt, (q >> 2) + (1 if c == 3 else 0))); a('s_cbranch_scc1 L_nox%d' % q)
                if EXTRA[q] is None:
                    for x in dma_k(0) + dma_v(0): a(x)
                    a('s_add_u32 m0, s%d, %d' % (sLdsW, XST[(c + 3) & 3]))
                else:
                    for x in stage_loads(EXTRA[q]): a(x)
                a.label('L_nox%d' % q)
            if c == 3 and any((q & 3) == 3 for q in EXTRA): a('s_cmp_lt_u32 s%d, 3' % sCnt)
        a('s_cbranch_scc1 L_qp')
        if OPT['qpm']:
            n0 = [k for k, i in enumerate(a.ins) if i.text.startswith('L_qp:')][0]
            keep = []
            for i in a.ins[n0:]:
                if (OPT['qpm'] & 1) and i.kind == 'mfma': continue
                if (OPT['qpm'] & 2) and i.kind == 'ds': continue
                if (OPT['qpm'] & 4) and i.kind == 'vmem' and 'lds' in i.text: continue
                if (OPT['qpm'] & 16) and i.op == 's_barrier': continue
                keep.append(i)
            a.ins[n0:] = keep
        qp_body(12, gxw(14)[3:], gxw(15)[:3])
        qp_body(13, gxw(15)[3:], gkv(1)[:3])
        qp_body(14, gkv(1)[3:], gkv(2)[:3])
    def pack(m):
        out = []
        t = vS[0] + 16 * m
        for r in range(0, 16, 2): out.append('v_pk_mul_f32 %s, %s, %s' % (vr(t + r, 2), vr(t + r, 2), sr(sQs, 2)))
        for qb in range(2):
            for h in range(2):
                for k in range(2):
                    s_ = t + 8 * h + 4 * qb + 2 * k
                    out.append('v_cvt_pk_bf16_f32 v%d, v%d, v%d' % (vQ + 8 * m + 4 * qb + 2 * h + k, s_, s_ + 1))
        return out
    def qswap(m):
        return ['v_permlane16_swap_b32 v%d, v%d' % (vQ + 8 * m + 4 * qb + k, vQ + 8 * m + 4 * qb + 2 + k) for qb in range(2) for k in range(2)]
    r0, mf = qp_reads(3, dbmajor=True)
    rq, mq = qk_parts(0, vS[0], True)
    rq32, _ = qk_parts(0, vS[0], True, mbase=32)
    for x in rq32: x['free'] = -1
    NPK = npre_of(rq, 0, LA)
    gk3 = groups(dma_k(3))
    fill = {}
    for k, g in enumerate(gkv(2)[3:]): fill[4 * k] = list(g)
    for k in range(3): fill[22 + 4 * k] = list(gk3[k])
    st = [(x, 12, 31) for x in pack(0)] + [(x, 20, 31) for x in pack(1)[:8]]
    bsched(a, mf, r0 + rq32[:NPK], QLA, npre=npre_of(r0, 0, QLA), fixed=fill, events={len(r0): ['s_barrier']}, evrange=(17, 22), streams=[st], pair=4)
    stamp(1)
    for x in gk3[3]: a(x)
    for x in pack(1)[8:] + qswap(0) + pack(2) + qswap(1) + pack(3) + qswap(2) + ['s_nop 0'] + qswap(3): a(x)
    rn, _ = qk_parts(1, vS[1], False, mbase=32)
    zero = ['v_mov_b32 v%d, 0' % (vO + i) for i in range(64)]
    fill = {i: zero[2 * i: 2 * i + 2] for i in range(32)}
    sched(a, mq, rq + rn[:NPK], LA, npre=NPK, fill=fill, events={16: ['s_waitcnt vmcnt(16)', 's_barrier']}, pair=OPT['pair'])
    a('s_barrier')
    gk4 = groups(dma_k(4))
    for k in range(8): a('v_mov_b32 v%d, 0' % (vLs + k))
    for qb in range(2):
        for x in gk4[2 * qb]: a(x)
        rowmax(vS[0], qb, vDelta + qb)
        for x in gk4[2 * qb + 1]: a(x)
        for j in range(4): a('v_sub_f32 v%d, 0, v%d' % (vNegM + 4 * qb + j, vDelta + qb))
        for j in range(16): a('v_sub_f32 v%d, v%d, v%d' % (vS[0] + 16 * qb + j, vS[0] + 16 * qb + j, vDelta + qb))
    stamp(2)

    rare = []
    def iteration(j, vm, kind='mid', tag='', hook=None):
        cur, nxt = vS[j & 1], vS[(j + 1) & 1]
        sm = softmax_ops(cur)
        if kind != 'last':
            r1, m1 = qk_parts((j + 1) & 3, nxt, False)
            r2, m2, last = pv_parts(j, cur, 32, 16, prev={b: 2 * (8 + b) + 1 for b in range(8)})
            n = len(m1) + len(m2)
            if kind == 'mid':
                r3, _ = qk_parts((j + 2) & 3, cur, False, mbase=n)
                for k in range(8): r3[k]['free'] = last[k]
                r3 = r3[:NPK]
            else:
                r3, _, _ = pv_parts(j + 1, nxt, n, prev=last); r3 = r3[:NPV]
            reads, mf = r1 + r2 + r3, m1 + m2
            u1 = 32 + len(m2) // 2
            st1 = []; ne = 0
            for x, u in sm:
                if x.startswith('v_exp'): ne += 1
                st1.append((x, 0, min(29 if u == 0 else u1 - 3, (ne * (u1 - 4)) // 32 + (0 if x.startswith('v_exp') else 1))))
            st2 = [(x, max(8 * blk + 12, OPT['mx0']), n - 1) for x, blk in max_ops(nxt)] + [('v_cmp_lt_f32 vcc, s%d, v%d' % (sThr, vMax), 40, n - 1)]
            fixed = {}
            ev0 = n - LA
            if hook: hook(fixed, ev0)
            if kind == 'mid':
                if j == 0: g = spread(fixed, dma_wo(), ev0 - 28, 3); assert g <= ev0 + 2, g
                g = spread(fixed, (dma_v(j + 3, sMv) + dma_k(j + 1, sMk)) if (AB and j == 1) else (dma_v(j + 3) + dma_k(j + 1)), ev0 + 2, 1); assert g - 1 < n, g
            bsched(a, mf, reads, LA, npre=NPK, events={len(r1) + len(r2): ['s_waitcnt vmcnt(%d)' % vm, 's_barrier']}, fixed=fixed, streams=[st1, st2],
                   pair=OPT['pair'], evrange=(ev0, ev0 + 2))
            lab = 'L_rare%d%s' % (j, tag)
            a('s_cbranch_vccnz %s' % lab)
            a.label(lab + '_ret')
            rare.append((lab, nxt))
        else:
            reads, mf, _ = pv_parts(j, cur)
            u1 = len(mf) // 2
            for x, u in sm:
                if u == 0: a(x)
            st1 = [(x, 0, u1 - 3) for x, u in sm if u == 1]
            fixed = {}
            if hook: hook(fixed, len(mf))
            bsched(a, mf, reads, LA, npre=NPV, streams=[st1], pair=OPT['pair'], cap=5, fixed=fixed)
    NPV = npre_of(pv_parts(0, vS[0])[0], 0, LA)

    def wo_block(p):
        for m in range(4):
            for nb in range(2):
                for h in range(2):
                    a('ds_read_b64_tr_b16 %s, v%d offset:%d' % (ar(32 * p + 8 * m + 4 * nb + 2 * h, 2), vWoAddr, m * 8192 + h * 4096 + nb * 8))
        a('s_waitcnt lgkmcnt(0)')
    def wo_chain(tag):
        if WABS:
            a('s_sub_u32 s%d, s%d, s%d' % (sBlk, sCnt, sJ)); a('s_and_b32 s%d, s%d, 7' % (sBlk, sBlk))
            for p in range(8):
                if p < 7:
                    a('s_cmp_lg_u32 s%d, %d' % (sBlk, p)); a('s_cbranch_scc1 L_wb%s%d' % (tag, p + 1))
                wo_block(p)
                if p < 7: a('s_branch L_wbdone%s' % tag)
                a.label('L_wb%s%d' % (tag, p + 1) if p < 7 else 'L_wbdone%s' % tag)
            return
        if tag == 'b': return wo_block(7)
        for p in range(7):
            if p < 6:
                a('s_cmp_lg_u32 s%d, %d' % (sCnt, p)); a('s_cbranch_scc1 L_wb%s%d' % (tag, p + 1))
            wo_block(p)
            if p < 6: a('s_branch L_wbdone%s' % tag)
            a.label('L_wb%s%d' % (tag, p + 1) if p < 6 else 'L_wbdone%s' % tag)
    def stage_sel():
        a('s_mov_b32 s5, 0x30000')
        a('s_bitcmp1_b32 s%d, s%d' % (sGrp, sCnt))
        a('s_cselect_b32 s%d, 0, 0x80000' % sLim1); a('s_cselect_b32 s3, s5, %d' % (BB + 49152)); a('s_cselect_b32 s4, s5, 32768')
        a('s_add_u32 s%d, s%d, s3' % (sMv, sLdsW)); a('s_add_u32 s%d, s%d, s4' % (sMk, sLdsW))
    def stage_chain():
        a('s_cmp_lg_u32 s%d, 0' % sLim1); a('s_cbranch_scc1 L_sgdone')
        for k, p in enumerate(STP):
            if k < AB - 1:
                a('s_cmp_lg_u32 s%d, %d' % (sCnt, p)); a('s_cbranch_scc1 L_sg%d' % (k + 1))
            for i in range(4):
                a('ds_write_b128 v%d, %s offset:%d' % (vStg, ar(32 * p + 4 * i, 4), 49152 + i * 1024))
            a('v_add_u32 v%d, %d, v%d' % (vTmp, 32768 - BB, vStg))
            for i in range(4):
                a('ds_write_b128 v%d, %s offset:%d' % (vTmp, ar(32 * p + 16 + 4 * i, 4), i * 1024))
            a('s_waitcnt lgkmcnt(0)')
            if k < AB - 1: a('s_branch L_sgdone')
            a.label('L_sg%d' % (k + 1) if k < AB - 1 else 'L_sgdone')
    a('s_mov_b32 s%d, 0' % sCnt)
    a.label('L_at')
    stamp(12, sCnt)
    a('s_cmp_lg_u32 s%d, 6' % sCnt); a('s_cbranch_scc1 L_nocnt')
    a('v_mov_b32 v39, 0'); a('buffer_load_dword v38, v39, %s, 0 offen sc1' % sr(SDBG, 4))
    a.label('L_nocnt')
    iteration(0, 20)
    if AB: stage_sel()
    iteration(1, 20)
    if AB: stage_chain()
    a('s_cmp_eq_u32 s%d, 7' % sCnt)
    a('s_cbranch_scc1 L_at_last')
    iteration(2, 12)
    wo_chain('a')
    iteration(3, 12)
    a('s_add_u32 s%d, s%d, 1' % (sCnt, sCnt))
    a('s_branch L_at')
    if OPT['atm']:
        n0 = [k for k, i in enumerate(a.ins) if i.text.startswith('L_at:')][0]
        keep = []; m = OPT['atm']; c = 0
        for i in a.ins[n0:]:
            if (m & 1) and i.op == 'v_exp_f32': continue
            if (m & 2) and i.kind == 'ds':
                c += 1
                if (m & 256) == 0 or (c & 1): continue
            if (m & 32) and i.op.startswith('v_max'): continue
            if (m & 64) and i.op.startswith('v_cvt'): continue
            if (m & 128) and i.op == 's_waitcnt' and 'lgkm' in i.text and 'lgkmcnt(0)' not in i.text: continue
            if (m & 512) and i.kind == 'mfma' and min(x[1] for x in i.d) >= vO + 32: continue
            keep.append(i)
        a.ins[n0:] = keep
    a.label('L_at_last')
    sHd, SA, SB_ = 36, 40, 8
    STG = [None, (1, 0), (2, 0), (3, 0), (1, 1), (2, 1), (3, 1), (0, 0), (0, 1)]
    OSLOT = [1, 0, 2, 3, 4, 1, 0, 2, 3]
    for x in ['s_mov_b32 s%d, 0' % sSpin, 'L_init:', 'v_readfirstlane_b32 s3, v38', 's_add_u32 s%d, s%d, 1' % (sSpin, sSpin),
              's_cmp_ge_u32 s3, 256', 's_cbranch_scc1 L_init_ok', 's_cmp_ge_u32 s%d, %d' % (sSpin, OPT['spin']), 's_cbranch_scc1 L_init_ok',
              'v_mov_b32 v39, 0', 'buffer_load_dword v38, v39, %s, 0 offen sc1' % sr(SDBG, 4), 's_waitcnt vmcnt(0)', 's_branch L_init', 'L_init_ok:']: a(x)
    a('s_lshl_b32 s3, s%d, 20' % sB); a('s_lshl_b32 s4, s%d, 16' % sKg); a('s_add_u32 s7, s3, s4')
    a('s_lshl_b32 s3, s%d, 2' % sWave); a('s_lshr_b32 s3, s%d, s3' % sTab)
    a('s_bfe_u32 s4, s3, 0x30004'); a('s_bfe_u32 s6, s3, 0x30010')
    a('v_mov_b32 v2, s4'); a('v_mov_b32 v3, s6'); a('v_cmp_gt_u32 vcc, 4, v1')
    a('s_lshl_b32 s4, s4, 13'); a('s_add_u32 s%d, s4, s7' % sHd); a('s_lshl_b32 s6, s6, 13'); a('s_add_u32 s%d, s6, s7' % (sHd + 1))
    a('v_cndmask_b32 v3, v3, v2, vcc'); a('v_and_b32 v2, 3, v1'); a('v_lshlrev_b32 v2, 2, v2'); a('v_lshl_add_u32 v3, v3, 8, v2')
    a('v_add_u32 v4, s%d, v1' % sKg); a('v_and_b32 v4, 3, v4'); a('v_lshlrev_b32 v4, 2, v4')
    srd(SA, SWS, SWS + 1, None, '0'); srd(SB_, SWS, SWS + 1, None, '0')
    a('s_cmp_eq_u32 s%d, 3' % sWave); a('s_cselect_b32 s%d, 0, 0x2000000' % sSzA); a('s_cselect_b32 s%d, 0, 15' % sMA)
    a('s_lshl_b32 s5, s%d, 1' % sLdsW)
    a('s_lshl_b32 s6, s%d, 14' % sKg); a('s_add_u32 s6, s6, s%d' % sPb)
    a('s_lshl_b32 s3, s%d, 18' % sWave); a('s_add_u32 s3, s3, s7'); a('s_lshl_b32 s4, s%d, 13' % sJ); a('s_add_u32 s%d, s3, s4' % sOb)
    def dma_o(s_):
        i, hf = STG[s_]
        out = ['s_add_u32 s3, s%d, %d' % (sKg, i), 's_and_b32 s3, s3, 3', 's_lshl_b32 s3, s3, 18', 's_add_u32 s%d, s3, s%d' % (sT0, sHd + hf),
               's_add_u32 m0, s5, %d' % (OSLOT[s_] * 32768), 's_add_u32 s%d, s%d, 4096' % (sT1, sT0)]
        S_ = SB_ if hf else SA
        for m in range(4): out.append('buffer_load_dwordx4 v%d, %s, s%d offen offset:%d sc1 lds' % (vOoff, sr(S_, 4), sT0, m * 1024))
        out += ['s_add_u32 m0, m0, 4096', 's_nop 0']
        for m in range(4): out.append('buffer_load_dwordx4 v%d, %s, s%d offen offset:%d sc1 lds' % (vOoff, sr(S_, 4), sT1, m * 1024))
        return out
    def preq(sF, vp, ex): return ['s_mov_b64 exec, %d' % ex, 'buffer_load_dword v39, v%d, %s, s%d offen sc1' % (vp, sr(SWS, 4), sF), 's_mov_b64 exec, %s' % sr(sEx, 2)]
    def ptest(mask, sN): return ['s_waitcnt vmcnt(0)', 'v_cmp_ne_u32 vcc, 1, v39', 's_nop 1', 's_and_b32 s%d, vcc_lo, %s' % (sN, mask)]
    def pblock(n, sF, vp, ex, mask, sN):
        return ['s_mov_b32 s%d, 0' % sSpin, 'L_pb%d:' % n] + preq(sF, vp, ex) + ptest(mask, sN) + \
               ['s_cbranch_scc0 L_pb%d_out' % n, 's_add_u32 s%d, s%d, 1' % (sSpin, sSpin), 's_cmp_ge_u32 s%d, %d' % (sSpin, OPT['spin']), 's_cbranch_scc1 L_pb%d_out' % n,
                's_sleep %d' % OPT['psleep'], 's_branch L_pb%d' % n, 'L_pb%d_out:' % n]
    def signal(sF, vown): return ['v_mov_b32 v38, 1', 's_mov_b64 exec, 1', 'buffer_store_dword v38, v%d, %s, s%d offen sc1' % (vown, sr(SWS, 4), sF), 's_mov_b64 exec, %s' % sr(sEx, 2)]
    def hook_pen(fixed, ev0): fixed[ev0 + 3] = ['L_pq0:'] + preq(sF1, 3, 255)
    def hook_last(fixed, n):
        fixed[14] = ['L_pt0:'] + ptest('s%d' % sMA, sNA) + ['s_cselect_b32 s%d, 0, s%d' % (SA + 2, sSzA)]
        g = spread(fixed, dma_o(1), 15, 2); assert g - 2 < n, g
    iteration(2, 0, kind='pen', tag='p', hook=hook_pen)
    wo_chain('b')
    iteration(3, 0, kind='last', hook=hook_last)
    stamp(3)

    a('s_add_u32 s%d, s%d, 4096' % (sT2, sOb))
    a('v_add_u32 v2, s5, v%d' % vOoff); a('v_add_u32 v2, 0x8000, v2')
    for qb in range(2): a('v_rcp_f32 v%d, v%d' % (6 + 2 * qb, vLs + 4 * qb))
    a('s_nop 0')
    for qb in range(2): a('v_mov_b32 v%d, v%d' % (7 + 2 * qb, 6 + 2 * qb))
    for m in range(4):
        for qb in range(2):
            f = vQ + 16 * qb + 4 * m
            for h in range(2):
                t = vO + 8 * (2 * m + h) + 4 * qb
                for k in range(2): a('v_pk_mul_f32 %s, %s, %s' % (vr(t + 2 * k, 2), vr(t + 2 * k, 2), vr(6 + 2 * qb, 2)))
            for h in range(2):
                t = vO + 8 * (2 * m + h) + 4 * qb
                for k in range(2): a('v_cvt_pk_bf16_f32 v%d, v%d, v%d' % (f + 2 * h + k, t + 2 * k, t + 2 * k + 1))
            a('buffer_store_dwordx4 %s, v%d, %s, s%d offen offset:%d sc1' % (vr(f, 4), vOoff, sr(SWS, 4), sT2 if qb else sOb, m * 1024))
    for m in range(4):
        for qb in range(2): a('ds_write_b128 v2, %s offset:%d' % (vr(vQ + 16 * qb + 4 * m, 4), qb * 4096 + m * 1024))
    for i in range(4):
        a('s_add_u32 s3, s%d, %d' % (sKg, i)); a('s_and_b32 s3, s3, 3'); a('s_lshl_b32 s3, s3, 13')
        a('v_add_u32 v%d, s3, v%d' % (vOaddr + i, vOoff))
    a('v_add_u32 v%d, 0x10000, v%d' % (vOaddr + 4, vOoff)); a('v_add_u32 v%d, 0x20000, v%d' % (vOaddr + 5, vOoff))
    SADDR = [vOoff, vOaddr + 4, vOaddr + 5]
    ACC = vS[0]
    def op_parts(s_, mbase=0):
        slot = OSLOT[s_]
        reads = []; mf = []
        if s_ == 0: order = [(0, 0, m, i, qb) for m in range(4) for i in range(4) for qb in range(2)]
        else:
            i, hf = STG[s_]
            order = [(1 + 3 * hf + u, u, m, i, qb) for u in range(3 + hf) for m in range(4) for qb in range(2)]
        for n, (p, u, m, i, qb) in enumerate(order):
            buf = POOL[n & 7]
            if s_ == 0: ad, off = vOaddr + i, 32768
            else: ad, off = SADDR[slot >> 1], (slot & 1) * 32768 + u * 8192
            reads.append(dict(t='ds_read_b128 %s, v%d offset:%d' % (vr(buf, 4), ad, off + qb * 4096 + m * 1024), first=mbase + 2 * n, free=mbase + 2 * n - 15))
            for nb in range(2):
                acc = vr(ACC + 16 * i + 8 * qb + 4 * nb, 4)
                mf.append(dict(t='%s %s, %s, %s, %s' % (MFMA, acc, ar(32 * p + 8 * m + 4 * nb, 4), vr(buf, 4), '0' if (p == 0 and m == 0) else acc), uses=[n]))
        return reads, mf
    a('s_waitcnt lgkmcnt(0)')
    a('s_barrier')
    stamp(4)
    r, _ = op_parts(0)
    emit_reads(r[:NPK])
    def send(i):
        out = ['s_add_u32 s3, s%d, %d' % (sKg, i), 's_and_b32 s3, s3, 3', 's_lshl_b32 s3, s3, 16', 's_add_u32 s%d, s3, s6' % sT2]
        for g in range(4):
            out.append('buffer_store_dwordx4 %s, v%d, %s, s%d offen offset:%d sc1' % (vr(ACC + 16 * i + 4 * g, 4), vOoff, sr(SWS, 4), sT2, g * 1024))
        return out
    SENT = OPT['sent']
    sRc = 36
    def recv(i, S_=SWS):
        return ['buffer_load_dwordx4 %s, v%d, %s, s%d offen offset:%d sc1' % (vr(vO + 16 * i + 4 * g, 4), vOoff, sr(S_, 4), sRc + i - 1, g * 1024) for g in range(4)]
    rsetup = ['s_lshl_b32 s4, s%d, 16' % sKg, 's_add_u32 s4, s4, s%d' % sPb]
    for i in range(1, 4):
        rsetup += ['s_add_u32 s3, s%d, %d' % (sKg, i), 's_and_b32 s3, s3, 3', 's_lshl_b32 s3, s3, 14', 's_add_u32 s%d, s3, s4' % (sRc + i - 1)]
    osetup = ['v_and_b32 v2, 15, v1', 'v_lshrrev_b32 v5, 4, v1', 'v_lshlrev_b32 v2, 11, v2', 'v_lshl_add_u32 v2, v5, 4, v2',
              's_lshl_b32 s3, s%d, 18' % sB, 's_lshl_b32 s4, s%d, 16' % sKg, 's_add_u32 s7, s3, s4',
              's_cmp_lt_u32 s%d, 2' % sWave, 's_cselect_b32 s4, s%d, s%d' % (sPA, sPB),
              's_add_u32 s7, s7, s4', 's_lshl_b32 s4, s%d, 6' % sWave, 's_add_u32 s7, s7, s4', 's_add_u32 s39, s7, 0x8000']
    fifo = [1] * 8
    for s_ in range(9):
        r, m = op_parts(s_)
        n = len(m)
        fill = {}
        g = 0; ev = []
        if s_ == 0:
            fill[OPT['sg']] = ['s_waitcnt vmcnt(0)'] + signal(sF1, 36) + ['s_cmp_eq_u32 s%d, 0' % sNA, 's_cbranch_scc1 L_a_ok'] + \
                pblock(1, sF1, 3, 255, 's%d' % sMA, sNA) + ['s_mov_b32 s%d, s%d' % (SA + 2, sSzA)] + dma_o(1) + ['L_a_ok:']
            g = OPT['sg'] + 1
        if s_ == 1: fill[n - 6] = ['L_pq1:'] + preq(sF1, 3, 255)
        if s_ == 2:
            fill[10] = ['L_pt1:'] + ptest('0xf0', sNB) + ['s_cselect_b32 s%d, 0, 0x2000000' % (SB_ + 2)]
            g = 11
        if s_ == 3:
            ev = ['s_cmp_eq_u32 s%d, 0' % sNB, 's_cbranch_scc1 L_b_ok'] + pblock(2, sF1, 3, 255, '0xf0', sNB) + \
                 ['s_mov_b32 s%d, 0x2000000' % (SB_ + 2)] + dma_o(4) + dma_o(5) + ['L_b_ok:']
        if s_ == 4: stamp(5)
        if s_ + 2 <= 8:
            g = spread(fill, dma_o(s_ + 2), g, 2 if s_ in (0, 2) else 3); fifo += [s_ + 2] * 8
        if s_ in (5, 6, 7):
            g = spread(fill, send(STG[s_ - 1][0]), max(g, 3), 2); fifo += [0] * 4
        assert g - 3 < n - LA, (s_, g)
        if s_ < 8:
            rn, _ = op_parts(s_ + 1, n)
            vm = len(fifo) - 1 - max(k for k, x in enumerate(fifo) if x == s_ + 1)
            sched(a, m, r + rn[:NPK], LA, npre=NPK, fill=fill, events={len(r): ev + ['s_waitcnt vmcnt(%d)' % vm, 's_barrier']}, evrange=(n - LA, n - 1), pair=4)
        else:
            for k, x in enumerate(rsetup + osetup): fill.setdefault(12 + k // 2, []).append(x)
            fill[OPT['sig2']] = ['L_sig2:', 's_waitcnt vmcnt(0)'] + signal(sF2, 37)
            sched(a, m, r, LA, npre=NPK, fill=fill, pair=4)
    stamp(6)
    stamp(7)
    for x in pblock(3, sF2, 4, 14, '14', sNA): a(x)
    for i in (3, 2, 1):
        for x in recv(i): a(x)
    a.label('L_have'); a('s_nop 3')
    stamp(8)
    a('s_mov_b32 s%d, 0' % sSpin)
    for i in (3, 2, 1):
        b = vO + 16 * i
        a('s_waitcnt vmcnt(%d)' % (4 * (i - 1)))
        if SENT and i == 1:
            a.label('L_rc%d' % i)
            a('v_max3_u32 v6, v%d, v%d, v%d' % (b, b + 1, b + 2))
            for k in range(3, 15, 2): a('v_max3_u32 v6, v6, v%d, v%d' % (b + k, b + k + 1))
            a('v_max_u32 v6, v6, v%d' % (b + 15))
            a('v_cmp_eq_u32 vcc, -1, v6')
            a('s_cbranch_vccz L_rc%d_ok' % i)
            a('s_add_u32 s%d, s%d, 1' % (sSpin, sSpin)); a('s_cmp_ge_u32 s%d, %d' % (sSpin, OPT['spin'])); a('s_cbranch_scc1 L_rc%d_ok' % i)
            for x in recv(i): a(x)
            a('s_waitcnt vmcnt(0)')
            a('s_branch L_rc%d' % i)
            a.label('L_rc%d_ok' % i)
        for r in range(16): a('v_add_f32 v%d, v%d, v%d' % (ACC + r, ACC + r, b + r))
    for r in range(0, 16, 2): a('v_cvt_pk_bf16_f32 v%d, v%d, v%d' % (vQ + r // 2, ACC + r, ACC + r + 1))
    a('buffer_store_dwordx4 %s, v2, %s, s7 offen' % (vr(vQ, 4), sr(SOUT, 4)))
    a('buffer_store_dwordx4 %s, v2, %s, s39 offen' % (vr(vQ + 4, 4), sr(SOUT, 4)))
    if OPT['stamps']:
        a('s_waitcnt vmcnt(0)'); stamp(9)
    a.label('L_end')
    a('s_endpgm')
    for lab, S in rare:
        a.label(lab)
        a('s_nop 15')
        for qb in range(2):
            d, al = vDelta + qb, vAlpha + qb
            rowmax(S, qb, d)
            a('v_max_f32 v%d, 0, v%d' % (d, d))
            a('v_sub_f32 v%d, 0, v%d' % (vTmp, d))
            a('v_exp_f32 v%d, v%d' % (al, vTmp))
            for j in range(16): a('v_sub_f32 v%d, v%d, v%d' % (S + 16 * qb + j, S + 16 * qb + j, d))
            for j in range(4): a('v_sub_f32 v%d, v%d, v%d' % (vNegM + 4 * qb + j, vNegM + 4 * qb + j, d))
            for j in range(4): a('v_mul_f32 v%d, v%d, v%d' % (vLs + 4 * qb + j, vLs + 4 * qb + j, al))
            for db in range(8):
                for j in range(4): a('v_mul_f32 v%d, v%d, v%d' % (vO + 8 * db + 4 * qb + j, vO + 8 * db + 4 * qb + j, al))
        a('s_nop 3')
        a('s_branch %s_ret' % lab)
    return a

def padit(a, l0, l1, n, every):
    i0 = [k for k, i in enumerate(a.ins) if i.text.startswith(l0)][0]
    i1 = [k for k, i in enumerate(a.ins) if i.text.startswith(l1)][0]
    keep = []; c = 0
    for i in a.ins[i0:i1]:
        if i.kind == 'mfma':
            c += 1
            if c % every == 0: keep.append(Ins('s_nop %d' % (n - 1)))
        keep.append(i)
    a.ins[i0:i1] = keep

def main():
    a = gen()
    if OPT['opm']:
        i0 = [k for k, i in enumerate(a.ins) if i.text.startswith('L_st5:')][0]
        i1 = [k for k, i in enumerate(a.ins) if i.text.startswith('L_st6:')][0] - 12
        keep = []
        for i in a.ins[i0:i1]:
            if (OPT['opm'] & 1) and i.kind == 'vmem' and 'lds' in i.text: continue
            if (OPT['opm'] & 2) and i.op == 's_barrier': continue
            if (OPT['opm'] & 4) and i.kind == 'vmem' and 'store_dwordx4' in i.text: continue
            if (OPT['opm'] & 8) and i.kind == 'ds': continue
            keep.append(i)
        a.ins[i0:i1] = keep
    if OPT['pad']: padit(a, 'L_at:', 'L_at_last:', OPT['pad'], 2)
    if OPT['qpad']: padit(a, 'L_qp:', 'L_at:', OPT['qpad'], 2)
    if OPT['opad']: padit(a, 'L_poll1_out:', 'L_end:', OPT['opad'], 2)
    import io, contextlib
    buf = io.StringIO()
    with contextlib.redirect_stdout(buf):
        bad = check_program(a)
    sys.stderr.write(buf.getvalue())
    for b in bad: sys.stderr.write('BRANCH HAZARD %s\n' % (b,))
    print('; @launch grid=(256,1,1) block=(256,1,1) lds=163840')
    print('.amdgcn_target "amdgcn-amd-amdhsa--gfx950"\n.text')
    print(a.text())
    print('''.section .rodata,"a"
.p2align 6
.amdhsa_kernel %s
  .amdhsa_next_free_vgpr 512
  .amdhsa_next_free_sgpr 102
  .amdhsa_accum_offset 256
  .amdhsa_group_segment_fixed_size 0
  .amdhsa_kernarg_size 64
  .amdhsa_user_sgpr_count 2
  .amdhsa_user_sgpr_kernarg_segment_ptr 1
  .amdhsa_system_sgpr_workgroup_id_x 1
.end_amdhsa_kernel''' % NAME)
main()
```

```python
import sys, math, struct
from asmlib import *

OPT = dict(kpol='nt', vpol='nt', xwpol='-', wopol='-', stamps=0, la=14, qla=14, spin=0x8000, nokv=0, psleep=1, sigat=27,
           stagb=5, nowo=0, atm=0, pair=6, kv0at=9, dwg=0, lvalu=0, mx0=44, qpm=0, odep=2, ctouch=0, pad=0, qpad=0, opad=0, ptouch=0, ab=0, abbit=3, sent=0, ldat=28, opm=0, ostep=3, sig2=1, stg='', unr=0, nst=4, st0=4, stper=4, stp='', kvtouch=0, wabs=1, sfirst=0, abm=1, abx=0, lev='', sg=24, ebit=1, late=0, split=1)
for a_ in sys.argv[1:]:
    k, v = a_.split('=')
    assert k in OPT, k
    OPT[k] = v if not v.lstrip('-').isdigit() else int(v)
def pol(k): return str(OPT[k]).replace('+', ' ').replace('-', '')
def f32bits(x): return struct.unpack('<I', struct.pack('<f', x))[0]
QSCALE = f32bits(math.log2(math.e) / math.sqrt(128.0))
THRESH = f32bits(8.0)
def vr(b, n=1): return 'v%d' % b if n == 1 else 'v[%d:%d]' % (b, b + n - 1)
def ar(b, n=1): return 'a%d' % b if n == 1 else 'a[%d:%d]' % (b, b + n - 1)
def sr(b, n=1): return 's%d' % b if n == 1 else 's[%d:%d]' % (b, b + n - 1)
MFMA = 'v_mfma_f32_16x16x32_bf16'
NAME = 'standalone__mha_block_cached__near_ridge_kernel'

def is_valu(x): return x.startswith('v_') and not x.startswith('v_mfma')
def cost(x):
    if x.endswith(':'): return 0
    return 2 if x.startswith('v_exp') else 1

def sched(a, mf, reads, la, npre=0, fill=None, events=None, pair=2, evrange=None, maxrd=2):
    fill = fill or {}; events = events or {}
    st = dict(done=0, nxt=npre)
    def issue(cur, lim):
        n = 0
        while st['nxt'] < len(reads) and n < lim:
            k = st['nxt']; rd = reads[k]
            if rd['first'] > cur + la or rd.get('free', -1) > cur or k - st['done'] >= 15: break
            if k in events:
                if evrange is not None: assert evrange[0] <= cur <= evrange[1], ('event gap', cur, evrange)
                for x in events[k]: a(x)
            a(rd['t']); st['nxt'] += 1; n += 1
    def wait_for(i):
        us = mf[i]['uses']
        assert all(u < st['nxt'] for u in us), ('read not issued', i, mf[i], st)
        if us and max(us) + 1 > st['done']:
            pos = max(us) + 1
            for j in range(i + 1, min(i + pair, len(mf))):
                if mf[j]['uses'] and max(mf[j]['uses']) < st['nxt']: pos = max(pos, max(mf[j]['uses']) + 1)
            a('s_waitcnt lgkmcnt(%d)' % (st['nxt'] - pos)); st['done'] = pos
    def fillers(lst, cur, lim):
        if any(x.endswith(':') for x in lst):
            issue(cur, lim)
            for x in lst: a(x)
            return
        evgap = st['nxt'] in events
        if evgap: issue(cur, lim)
        for x in lst:
            if not is_valu(x): a(x)
        if not evgap: issue(cur, lim)
        for x in lst:
            if x.startswith('v_exp'): a(x)
        for x in lst:
            if is_valu(x) and not x.startswith('v_exp'): a(x)
    fillers(fill.get(-1, []), -1, 99)
    wait_for(0)
    for i, m in enumerate(mf):
        a(m['t'])
        if i + 1 < len(mf):
            if not all(u < st['nxt'] for u in mf[i + 1]['uses']): issue(i, 99)
            wait_for(i + 1)
        fillers(fill.get(i, []), i, maxrd if i + 1 < len(mf) else 99)
    assert st['nxt'] == len(reads), (st, len(reads))

def bsched(a, mf, reads, la, npre=0, events=None, fixed=None, streams=(), pair=2, evrange=None, cap=3):
    fixed = {k: list(v) for k, v in (fixed or {}).items()}
    n = len(mf)
    t = Asm(); sched(t, mf, reads, la, npre=npre, fill=fixed, events=events, pair=pair)
    load = {g: 0 for g in range(-1, n)}; g = -1
    for i in t.ins:
        if i.kind == 'mfma': g += 1
        elif i.kind != 'none': load[g] += cost(i.text)
    load[n - 1] += load[-1] + 1
    total = sum(load[g] for g in range(n)) + sum(cost(o[0]) for s_ in streams for o in s_)
    fill = {g: list(fixed.get(g, [])) for g in range(-1, n)}
    pos = [0] * len(streams); done = 0
    for g in range(n):
        done += load[g]; used = load[g]
        target = total * (g + 1.0) / n + 1.0
        while True:
            cand = sorted((streams[k][pos[k]][2], k) for k in range(len(streams)) if pos[k] < len(streams[k]) and streams[k][pos[k]][1] <= g)
            ok = False
            for dl, k in cand:
                c = cost(streams[k][pos[k]][0])
                if dl <= g or used + c <= 2 or (used + c <= cap and done + c <= target):
                    fill[g].append(streams[k][pos[k]][0]); used += c; done += c; pos[k] += 1; ok = True
                    break
            if not ok: break
    assert all(pos[k] == len(streams[k]) for k in range(len(streams))), pos
    sched(a, mf, reads, la, npre=npre, fill=fill, events=events, pair=pair, evrange=evrange)

STAMP_OFF = 496 * 1024 * 1024
NST = 24

def gen():
    a = Asm()
    a.raw('.globl %s\n.p2align 8\n.type %s,@function' % (NAME, NAME)); a.label(NAME)
    SX, SW, SK, SV, SWS, SWO, SOUT, SDBG, SST = 8, 12, 16, 20, 24, 56, 60, 64, 68
    sWave, sLdsW, sAoff, sBoff, sCnt, sH, sB, sT0, sT1, sOb, sKoff, sVoff, sThr = 29, 30, 31, 32, 33, 34, 35, 46, 47, 48, 49, 50, 51
    sQs, sJ, sKg, sPA, sPB = 52, 54, 55, 44, 45
    sWoP, sWoB, sF1, sF2, sSpin, sEx, sT2, sPb, sBlk = 72, 73, 74, 75, 76, 78, 80, 81, 83
    vKoff, vVoff, vWoOff, vOoff = 10, 12, 14, 15
    vKaddr, vTaddr, vWoAddr = 16, 20, 28
    vMax, vTmp, vTmp2, vDelta, vAlpha = 29, 30, 31, 32, 34
    vQ, vNegM, vLs, vS, vO = 40, 72, 80, [88, 120], 152
    POOL = [216 + 4 * i for i in range(8)]
    vOnes = 248
    STGAT = [int(x) for x in str(OPT['stg']).split('+') if x != '']
    AB = OPT['ab'] or len(STGAT) or (OPT['nst'] if OPT['unr'] else 0)
    STP = [int(x) for x in str(OPT['stp']).split('+') if x != ''] or list(range(AB))
    assert len(STP) == AB
    WABS = False
    eb = 1 << OPT['ebit']; same = [x for x in range(1, 8) if not x & eb]; other = [x for x in range(1, 8) if x & eb]
    nib = lambda l: sum(x << (4 * k) for k, x in enumerate(l))
    TE, TL = nib([0] + same + other), nib([0] + other + same)
    sTab, sNA, sNB, sSzA, sMA = 97, 98, 99, 38, 39
    sGrp, sLim1, sMv, sMk, vStg = 28, 77, 82, 96, 31
    vXoff, vWoff, vXaddr, vTw = vQ, vQ + 4, vQ + 22, vQ + 24
    vOaddr = vKaddr
    AUX, BB = 65536, 98304
    vs = lambda t: (t + 3) & 3
    WS_P, WS_F1, WS_F2 = 0x800000, 0x1800000, 0x1810000

    def stamp(idx, dyn=None):
        if not OPT['stamps']: return
        if OPT['stamps'] == 5 and idx not in (0, 9):
            if idx == 11: a.label('L_st11')
            return
        lab = 'L_st%d' % idx
        if OPT['stamps'] == 3:
            slot = {0: 0, 10: 1, 11: 2, 1: 3, 2: 4, 3: 5, 4: 6, 5: 7, 6: 8, 7: 9, 8: 10, 9: 11, 12: 12}[idx]
            a('s_cmp_lg_u32 s%d, 0' % sWave); a('s_cbranch_scc1 %s' % lab)
            a('s_cmp_lg_u32 s2, %d' % OPT['dwg']); a('s_cbranch_scc1 %s' % lab)
            if dyn is not None:
                a('s_cmp_gt_u32 s%d, 2' % dyn); a('s_cbranch_scc1 %s' % lab)
            if idx == 7: a('s_mov_b32 s84, s96')
            else:
                a('s_memrealtime s[84:85]'); a('s_waitcnt lgkmcnt(0)')
            a('v_mov_b32 v252, s84'); a('v_mov_b32 v254, 0')
            a('s_mov_b32 s86, %d' % (4 + 4 * slot))
            if dyn is not None:
                a('s_lshl_b32 s87, s%d, 2' % dyn); a('s_add_u32 s86, s86, s87')
            a('buffer_store_dword v252, v254, %s, s86 offen sc1' % sr(SDBG, 4))
            a.label(lab)
            return
        a('s_cmp_lg_u32 s%d, 0' % sWave); a('s_cbranch_scc1 %s' % lab)
        a('s_memtime s[84:85]' if OPT['stamps'] == 2 else 's_memrealtime s[84:85]')
        if OPT['stamps'] == 4:
            a('s_memtime s[86:87]'); a('s_waitcnt lgkmcnt(0)'); a('s_mov_b32 s85, s86')
        a('s_waitcnt lgkmcnt(0)')
        a('v_mov_b32 v252, s84'); a('v_mov_b32 v253, s85'); a('v_mov_b32 v254, 0')
        a('s_mul_i32 s86, s2, %d' % (NST * 8)); a('s_add_u32 s86, s86, %d' % (idx * 8))
        if dyn is not None:
            a('s_lshl_b32 s87, s%d, 3' % dyn); a('s_add_u32 s86, s86, s87')
        a('buffer_store_dwordx2 v[252:253], v254, %s, s86 offen' % sr(SST, 4))
        a.label(lab)
    def srd(d, lo, hi, off, size):
        if off is None:
            a('s_mov_b32 s%d, s%d' % (d, lo)); a('s_mov_b32 s%d, s%d' % (d + 1, hi))
        else:
            a('s_add_u32 s%d, s%d, %s' % (d, lo, off)); a('s_addc_u32 s%d, s%d, 0' % (d + 1, hi))
        if size is not None: a('s_mov_b32 s%d, %s' % (d + 2, size))
        a('s_mov_b32 s%d, 0x00020000' % (d + 3))

    if OPT['stamps'] == 3: a('s_memrealtime s[96:97]')
    a('s_cmp_ge_u32 s2, 256')
    a('s_cbranch_scc1 L_end')
    a('s_load_dwordx8 s[36:43], s[0:1], 0')
    a('s_load_dwordx8 s[88:95], s[0:1], 32')
    if OPT['ctouch']:
        a('s_getpc_b64 s[4:5]')
        a('s_and_b32 s4, s4, 0xffffff00')
        a('s_lshr_b32 s3, s2, 3'); a('s_lshl_b32 s3, s3, 10'); a('s_add_u32 s4, s4, s3'); a('s_addc_u32 s5, s5, 0')
        a('v_and_b32 v2, 7, v0'); a('v_lshlrev_b32 v2, 7, v2'); a('v_mov_b32 v3, s5'); a('v_add_co_u32 v2, vcc, s4, v2'); a('v_addc_co_u32 v3, vcc, 0, v3, vcc')
        a('global_load_dword v255, v[2:3], off')
    a('v_lshrrev_b32 v2, 6, v0')
    a('v_and_b32 v1, 63, v0')
    a('v_readfirstlane_b32 s%d, v2' % sWave)
    a('s_and_b32 s%d, s2, 3' % sKg); a('s_lshl_b32 s3, s%d, 3' % sKg); a('s_lshr_b32 s4, s2, 3'); a('s_and_b32 s%d, s4, 7' % sJ)
    a('s_add_u32 s%d, s3, s%d' % (sH, sJ)); a('s_and_b32 s3, s2, 4'); a('s_lshr_b32 s4, s4, 3'); a('s_add_u32 s%d, s3, s4' % sB)
    a('s_lshl_b32 s%d, s%d, 12' % (sLdsW, sWave))
    a('v_lshrrev_b32 v2, 4, v1')
    a('v_and_b32 v3, 15, v1')
    a('v_lshrrev_b32 v4, 3, v1')
    a('v_and_b32 v5, 7, v1')
    a('v_lshlrev_b32 v6, 1, v2'); a('v_xor_b32 v6, v6, v3'); a('v_lshlrev_b32 v6, 4, v6')
    a('v_xor_b32 v9, 0x80, v6')
    a('s_lshl_b32 s3, s%d, 17' % sWave)
    a('v_lshl_add_u32 v7, v2, 13, v6'); a('v_add_u32 v%d, s3, v7' % vWoff)
    a('v_add_u32 v%d, %d, v%d' % (vWoff + 1, 32768 - 1024, vWoff))
    a('v_lshl_add_u32 v7, v2, 13, v9'); a('v_add_u32 v7, s3, v7')
    a('v_add_u32 v%d, %d, v7' % (vWoff + 2, 2 * (32768 - 1024))); a('v_add_u32 v%d, %d, v7' % (vWoff + 3, 3 * (32768 - 1024)))
    a('s_lshl_b32 s3, s%d, 16' % sWave)
    a('v_xor_b32 v7, v2, v5'); a('v_xor_b32 v8, 4, v7')
    a('v_lshlrev_b32 v7, 4, v7'); a('v_lshlrev_b32 v8, 4, v8')
    a('v_lshl_add_u32 v7, v4, 11, v7'); a('v_lshl_add_u32 v8, v4, 11, v8')
    a('v_add_u32 v%d, s3, v7' % vXoff); a('v_add_u32 v8, s3, v8')
    a('v_add_u32 v%d, %d, v8' % (vXoff + 1, 1 * (16384 - 1024)))
    a('v_add_u32 v%d, %d, v%d' % (vXoff + 2, 2 * (16384 - 1024), vXoff))
    a('v_add_u32 v%d, %d, v8' % (vXoff + 3, 3 * (16384 - 1024)))
    a('s_lshl_b32 s3, s%d, 1' % sH); a('s_mul_i32 s4, s%d, %d' % (sB, OPT['stagb'])); a('s_add_u32 s3, s3, s4'); a('s_and_b32 s3, s3, 15')
    a('s_lshl_b32 s%d, s3, 7' % sAoff)
    a('s_lshl_b32 s5, s%d, 18' % sB); a('s_lshl_b32 s6, s%d, 8' % sH); a('s_sub_u32 s%d, 0x800000, s6' % (SW + 2))
    a('s_waitcnt lgkmcnt(0)')
    srd(SX, 36, 37, 's5', '0x40000'); srd(SW, 42, 43, 's6', None)

    XST = [16384, 32768, 49152, 65536]
    WST = [BB, BB + 16384, BB + 32768, BB - 16384]
    def dma_xw(st):
        out = ['s_add_u32 m0, s%d, %d' % (sLdsW, XST[st]), 's_lshl_b32 s%d, s%d, 12' % (sBoff, sAoff)]
        for i in range(4):
            out.append('buffer_load_dwordx4 v%d, %s, s%d offen offset:%d %s lds' % (vXoff + i, sr(SX, 4), sAoff, i * 1024, pol('xwpol')))
        out += ['s_add_u32 m0, s%d, %d' % (sLdsW, WST[st]), 's_add_u32 s%d, s%d, 128' % (sAoff, sAoff)]
        for i in range(4):
            out.append('buffer_load_dwordx4 v%d, %s, s%d offen offset:%d %s lds' % (vWoff + i, sr(SW, 4), sBoff, i * 1024, pol('xwpol')))
            if i == 0: out.append('s_and_b32 s%d, s%d, 0x7ff' % (sAoff, sAoff))
        return out
    def dma_kv(t, S, so, vo, base, p, sm0=None):
        out = ['s_add_u32 m0, s%d, %d' % (sLdsW, base), 's_cmp_lt_u32 s%d, 0x80000' % so, 's_cselect_b32 s%d, %s, 0' % (S + 2, '0' if OPT['nokv'] else '0x80000')]
        if sm0 is not None:
            out = ['s_mov_b32 m0, s%d' % sm0, 's_cmp_lt_u32 s%d, s%d' % (so, sLim1), out[2]]
        for i in range(4):
            out.append('buffer_load_dwordx4 v%d, %s, s%d offen offset:%d %s lds' % (vo + (i >> 1), sr(S, 4), so, i * 1024, pol(p)))
        out.append('s_add_u32 s%d, s%d, 0x4000' % (so, so))
        return out
    dma_k = lambda t, sm0=None: dma_kv(t, SK, sKoff, vKoff, (t & 3) * 16384, 'kpol', sm0)
    dma_v = lambda t, sm0=None: dma_kv(t, SV, sVoff, vVoff, BB + vs(t) * 16384, 'vpol', sm0)
    def kv_setup():
        a('s_lshl_b32 s3, s%d, 5' % sB); a('s_add_u32 s3, s3, s%d' % sH); a('s_lshl_b32 s3, s3, 19')
        srd(SK, 38, 39, 's3', '0x80000'); srd(SV, 40, 41, 's3', '0x80000')
        a('v_lshl_add_u32 v7, v2, 8, v6'); a('v_add_u32 v%d, s%d, v7' % (vVoff, sLdsW))
        a('v_lshl_add_u32 v7, v2, 8, v9'); a('v_add_u32 v%d, s%d, v7' % (vVoff + 1, sLdsW))
        a('s_lshl_b32 s3, s%d, 3' % sWave); a('s_and_b32 s3, s3, 8')
        a('v_xor_b32 v8, v2, v3'); a('v_xor_b32 v8, s3, v8')
        for i in range(2):
            a('v_xor_b32 v7, %d, v8' % (4 * i)); a('v_lshlrev_b32 v7, 4, v7'); a('v_lshl_add_u32 v7, v2, 8, v7')
            a('v_add_u32 v%d, s%d, v7' % (vKoff + i, sLdsW))
    def dma_wo():
        out = ['s_and_b32 s%d, s%d, 7' % (sT2, sWoP), 's_lshl_b32 s%d, s%d, 18' % (sT2, sT2), 's_add_u32 s%d, s%d, s%d' % (sT2, sT2, sWoB),
               's_lshl_b32 m0, s%d, 1' % sLdsW, 's_add_u32 m0, m0, %d' % AUX, 's_lshr_b32 s%d, s%d, 4' % (sWoP, sWoP)]
        for i in range(8):
            if i == 4: out.append('s_add_u32 m0, m0, 4096')
            if i: out.append('s_add_u32 s%d, s%d, %d' % (sT2, sT2, 8192 - 1024 + (4096 if i == 4 else 0)))
            out.append('buffer_load_dwordx4 v%d, %s, s%d offen offset:%d %s lds' % (vWoOff, sr(SWO, 4), sT2, (i & 3) * 1024, pol('wopol')))
        return out
    def groups(lst):
        gs = [[]]
        for x in lst:
            gs[-1].append(x)
            if x.startswith('buffer'): gs.append([])
        if gs[-1]: gs[-2] += gs[-1]
        return gs[:-1]
    def spread(fixed, lst, g0, step, per=2):
        g = g0
        for grp in groups(lst):
            pre = grp[:[x.startswith('buffer') for x in grp].index(True)]
            rest = grp[len(pre):]
            while len(pre) > 1:
                fixed.setdefault(g, []).extend(pre[:2]); pre = pre[2:]; g += 1
            fixed.setdefault(g, []).extend(pre + rest); g += step
        return g

    def stage_loads(p):
        p = STP[p]
        out = ['s_mov_b32 s3, %d' % ((4 * p + 4) * 16384), 's_mov_b32 s4, %d' % ((4 * p + (4 if OPT['split'] else 6)) * 16384)]
        for i in range(4): out.append('buffer_load_dwordx4 %s, v%d, %s, s3 offen offset:%d %s' % (ar(32 * p + 4 * i, 4), vVoff + (i >> 1), sr(SV, 4), i * 1024, pol('vpol')))
        for i in range(4): out.append('buffer_load_dwordx4 %s, v%d, %s, s4 offen offset:%d %s' % (ar(32 * p + 16 + 4 * i, 4), vKoff + (i >> 1), sr(SK, 4), i * 1024, pol('kpol')))
        return out
    def stage_block(setup):
        a('s_mov_b32 s%d, 0' % sGrp)
        if OPT['lev']:
            tab = sum(int(ch, 16) << (4 * k) for k, ch in enumerate(str(OPT['lev'])[1:]))
            a('s_lshl_b32 s7, s%d, 2' % sJ); a('s_lshr_b32 s7, 0x%x, s7' % tab); a('s_and_b32 s7, s7, 15'); a('s_cbranch_scc0 L_grpa')
        else:
            a('s_lshr_b32 s7, s2, %d' % (3 + OPT['abbit'])); a('s_add_u32 s7, s7, %d' % OPT['abx']); a('s_and_b32 s7, s7, %d' % OPT['abm']); a('s_cbranch_scc0 L_grpa')
            a('s_mul_i32 s7, s7, %d' % (AB // OPT['abm']))
        if setup: kv_setup()
        for p in range(AB):
            if p:
                a('s_cmp_le_u32 s7, %d' % p); a('s_cbranch_scc1 L_grpa')
            for x in stage_loads(p): a(x)
            a('s_or_b32 s%d, s%d, %d' % (sGrp, sGrp, 1 << STP[p]))
        a.label('L_grpa')
    if OPT['ab'] and not OPT['late']: stage_block(True)
    for x in dma_xw(0): a(x)
    if OPT['kvtouch']: kv_setup()
    if AB:
        if not OPT['ab']: a('s_mov_b32 s%d, %d' % (sGrp, sum(1 << p for p in STP)))
        a('v_lshlrev_b32 v7, 4, v1'); a('v_add_u32 v7, s%d, v7' % sLdsW); a('v_add_u32 v%d, %d, v7' % (vStg, BB))
    srd(SWS, 94, 95, None, '0x2000000'); srd(SWO, 88, 89, None, '0' if OPT['nowo'] else '0x800000'); srd(SOUT, 90, 91, None, '0x200000'); srd(SDBG, 92, 93, None, '256')
    if OPT['stamps']: srd(SST, 94, 95, str(STAMP_OFF), '0x100000')
    stamp(0)
    a('s_mov_b64 %s, exec' % sr(sEx, 2))
    a('s_lshl_b32 s3, s%d, 2' % sB); a('s_add_u32 s3, s3, s%d' % sKg); a('s_lshl_b32 s3, s3, 11'); a('s_lshl_b32 s4, s%d, 8' % sWave)
    a('s_add_u32 s%d, s3, 0x%x' % (sF1, WS_F1))
    a('s_lshl_b32 s3, s%d, 3' % sB); a('s_add_u32 s5, s3, s%d' % sJ); a('s_lshl_b32 s3, s5, 10')
    a('s_add_u32 s3, s3, s4'); a('s_add_u32 s%d, s3, 0x%x' % (sF2, WS_F2))
    a('s_lshl_b32 s3, s%d, 6' % sJ); a('s_add_u32 s3, s3, s%d' % sWave); a('s_lshl_b32 s3, s3, 2'); a('s_lshl_b32 s4, s%d, 2' % sKg)
    a('v_mov_b32 v36, s3'); a('v_mov_b32 v37, s4'); a('v_mov_b32 v38, 0'); a('v_mov_b32 v39, 0')
    a('s_lshl_b32 s3, s5, 18'); a('s_add_u32 s3, s3, s%d' % sLdsW); a('s_add_u32 s%d, s3, 0x%x' % (sPb, WS_P))
    a('s_mul_i32 s3, s%d, 0x14000' % sKg); a('s_add_u32 s3, s3, s%d' % sPb)
    a('s_lshl_b32 s4, s%d, 18' % sB)
    a('s_mov_b64 exec, 1')
    a('buffer_atomic_swap v38, v36, %s, s%d offen sc0 sc1' % (sr(SWS, 4), sF1))
    a('buffer_atomic_swap v39, v37, %s, s%d offen sc0 sc1' % (sr(SWS, 4), sF2))
    if OPT['kvtouch']:
        a('s_lshl_b32 s7, s%d, 21' % sKg)
        a('buffer_load_dword v255, v36, %s, 0 offen nt' % sr(SK, 4))
        a('buffer_load_dword v255, v36, %s, 0 offen nt' % sr(SV, 4))
        a('buffer_load_dword v255, v36, %s, s7 offen' % sr(SWO, 4))
    if OPT['ptouch']:
        a('buffer_load_dword v255, v36, %s, s3 offen sc1' % sr(SWS, 4))
        a('buffer_load_dword v255, v36, %s, s4 offen sc1' % sr(SOUT, 4))
    a('s_mov_b64 exec, %s' % sr(sEx, 2))
    if not OPT['kvtouch']: kv_setup()
    a('s_mov_b32 s%d, 0' % sKoff); a('s_mov_b32 s%d, 0' % sVoff); a('s_mov_b32 s3, 0x%x' % TE); a('s_bitcmp1_b32 s%d, %d' % (sJ, OPT['ebit'])); a('s_cselect_b32 s%d, 0x%x, s3' % (sTab, TL)); a('s_mul_i32 s3, s%d, 0x11111111' % sJ); a('s_xor_b32 s%d, s%d, s3' % (sTab, sTab)); a('s_mov_b32 s%d, s%d' % (sWoP, sTab))
    a('s_lshl_b32 s3, s%d, 21' % sKg); a('s_lshl_b32 s4, s%d, 16' % sWave); a('s_add_u32 s%d, s3, s4' % sWoB)
    a('s_lshr_b32 s3, s%d, 1' % sJ); a('s_and_b32 s4, s%d, 1' % sJ); a('s_lshl_b32 s4, s4, 2'); a('s_add_u32 s3, s3, s4')
    a('s_lshl_b32 s%d, s3, 7' % sPA)
    a('s_add_u32 s3, s3, 2'); a('s_and_b32 s3, s3, 7'); a('s_add_u32 s3, s3, 7'); a('s_lshl_b32 s%d, s3, 7' % sPB)
    a('v_lshlrev_b32 v6, 2, v2'); a('v_xor_b32 v6, v6, v3'); a('v_lshlrev_b32 v6, 4, v6')
    a('v_lshl_add_u32 v%d, v2, 11, v6' % vWoOff)
    a('v_mov_b32 v7, s%d' % sPA); a('v_mov_b32 v8, s%d' % sPB); a('v_cmp_gt_u32 vcc, 128, v6'); a('s_nop 1')
    a('v_cndmask_b32 v7, v8, v7, vcc'); a('v_add_u32 v%d, v7, v%d' % (vWoOff, vWoOff))
    a('v_and_b32 v4, 12, v3'); a('v_and_b32 v5, 3, v3'); a('v_lshl_add_u32 v4, v4, 1, v5')
    a('v_and_b32 v5, 1, v2'); a('v_lshlrev_b32 v5, 1, v5'); a('v_lshrrev_b32 v6, 1, v2'); a('v_or_b32 v5, v5, v6'); a('v_xor_b32 v5, v5, v3')
    for m in range(4):
        a('v_xor_b32 v6, %d, v5' % (4 * m)); a('v_lshlrev_b32 v6, 4, v6'); a('v_lshl_add_u32 v%d, v4, 8, v6' % (vKaddr + m))
    a('v_lshrrev_b32 v5, 1, v3'); a('v_xor_b32 v5, v5, v2')
    for ks in range(2):
        a('v_xor_b32 v6, %d, v5' % (4 * ks)); a('v_lshlrev_b32 v6, 4, v6'); a('v_lshl_add_u32 v6, v3, 7, v6')
        a('v_add_u32 v6, s%d, v6' % sLdsW); a('v_add_u32 v%d, 0x4000, v6' % (vXaddr + ks))
    a('v_lshrrev_b32 v4, 2, v3')
    a('v_lshl_add_u32 v5, v2, 3, v4'); a('v_lshlrev_b32 v5, 8, v5')
    a('v_and_b32 v6, 1, v1'); a('v_lshl_add_u32 v5, v6, 3, v5'); a('v_add_u32 v5, %d, v5' % BB)
    a('v_and_b32 v6, 1, v2'); a('v_lshl_add_u32 v6, v6, 2, v4'); a('v_lshlrev_b32 v6, 1, v6')
    a('v_lshrrev_b32 v7, 1, v1'); a('v_and_b32 v7, 1, v7'); a('v_or_b32 v6, v6, v7')
    for db in range(8):
        a('v_xor_b32 v7, %d, v6' % (2 * db)); a('v_lshl_add_u32 v%d, v7, 4, v5' % (vTaddr + db))
        a('v_add_u32 v%d, -16384, v%d' % (vTw + db, vTaddr + db))
    a('v_lshl_add_u32 v5, v2, 2, v4'); a('v_lshlrev_b32 v5, 8, v5'); a('v_add_u32 v5, 0x%x, v5' % AUX)
    a('s_lshl_b32 s3, s%d, 2' % sWave)
    a('v_xor_b32 v6, s3, v3')
    a('v_lshl_add_u32 v%d, v6, 4, v5' % vWoAddr)
    a('v_lshlrev_b32 v%d, 4, v1' % vOoff)
    for i in range(64): a('v_mov_b32 v%d, 0' % (vS[0] + i))
    a('s_mov_b32 s%d, 0x%08x' % (sQs, QSCALE)); a('s_mov_b32 s%d, 0x%08x' % (sQs + 1, QSCALE)); a('s_mov_b32 s%d, 0x%08x' % (sThr, THRESH))
    for k in range(4): a('v_mov_b32 v%d, 0x3f803f80' % (vOnes + k))
    a('s_mov_b32 s%d, 0' % sCnt)

    LA = OPT['la']
    def tr2(buf, addr, off, first, free):
        return [dict(t='ds_read_b64_tr_b16 %s, v%d offset:%d' % (vr(buf, 2), addr, off), first=first, free=free),
                dict(t='ds_read_b64_tr_b16 %s, v%d offset:%d' % (vr(buf + 2, 2), addr, off + 1024), first=first + 1, free=free)]
    def qk_parts(slot, S, first, mbase=0, rbase=0):
        reads = []; mf = []
        for n in range(16):
            blk, m = n >> 2, n & 3; u, kb2 = blk >> 1, blk & 1
            buf = POOL[n & 7]
            reads.append(dict(t='ds_read_b128 %s, v%d offset:%d' % (vr(buf, 4), vKaddr + m, slot * 16384 + u * 8192 + kb2 * 1024), first=mbase + 2 * n, free=mbase + 2 * n - 15))
            for qb in range(2):
                acc = vr(S + 16 * qb + 4 * blk, 4)
                c = acc if m else ('0' if first else vr(vNegM + 4 * qb, 4))
                mf.append(dict(t='%s %s, %s, %s, %s' % (MFMA, acc, vr(buf, 4), vr(vQ + 8 * m + 4 * qb, 4), c), uses=[rbase + n]))
        return reads, mf
    def lsum(S, u, qb):
        return dict(t='%s %s, %s, %s, %s' % (MFMA, vr(vLs + 4 * qb, 4), vr(vOnes, 4), vr(S + 16 * qb + 8 * u, 4), vr(vLs + 4 * qb, 4)), uses=[])
    def pv_parts(t, S, mbase=0, rbase=0, prev=None):
        reads = []; mf = []; last = dict(prev or {})
        for n in range(16):
            u, db = n >> 3, n & 7
            buf = POOL[n & 7]
            i = mbase + len(mf)
            reads += tr2(buf, vTaddr + db, vs(t) * 16384 + u * 8192, i, last.get(n & 7, -1))
            for qb in range(2):
                acc = vr(vO + 8 * db + 4 * qb, 4)
                mf.append(dict(t='%s %s, %s, %s, %s' % (MFMA, acc, vr(buf, 4), vr(S + 16 * qb + 8 * u, 4), acc), uses=[rbase + 2 * n, rbase + 2 * n + 1]))
            last[n & 7] = i + 1
            if db in (2, 5) and not OPT['lvalu']: mf.append(lsum(S, u, 0 if db == 2 else 1))
        return reads, mf, last
    def softmax_ops(S):
        ops = []
        for u in range(2):
            for qb in range(2):
                b = S + 16 * qb + 8 * u
                for h4 in range(2):
                    q = b + 4 * h4
                    for j in range(4): ops.append(('v_exp_f32 v%d, v%d' % (q + j, q + j), u))
                    for j in range(2):
                        if OPT['lvalu']:
                            ops.append(('v_add_f32 v%d, v%d, v%d' % (vLs + 4 * qb, vLs + 4 * qb, q + 2 * j), u))
                            ops.append(('v_add_f32 v%d, v%d, v%d' % (vLs + 4 * qb, vLs + 4 * qb, q + 2 * j + 1), u))
                        ops.append(('v_cvt_pk_bf16_f32 v%d, v%d, v%d' % (b + 2 * h4 + j, q + 2 * j, q + 2 * j + 1), u))
        return ops
    def max_ops(S):
        regs = [(S + 16 * qb + 4 * blk + r, blk) for blk in range(4) for qb in range(2) for r in range(4)]
        ops = [('v_max3_f32 v%d, v%d, v%d, v%d' % (vMax, regs[0][0], regs[1][0], regs[2][0]), 0)]
        for j in range(3, 31, 2): ops.append(('v_max3_f32 v%d, v%d, v%d, v%d' % (vMax, vMax, regs[j][0], regs[j + 1][0]), regs[j + 1][1]))
        ops.append(('v_max_f32 v%d, v%d, v%d' % (vMax, vMax, regs[31][0]), 3))
        return ops
    def allgroups(v, op):
        for sw in ('v_permlane32_swap_b32', 'v_permlane16_swap_b32'):
            a('v_mov_b32 v%d, v%d' % (vTmp, v)); a('s_nop 1'); a('%s v%d, v%d' % (sw, v, vTmp)); a('s_nop 1'); a('%s v%d, v%d, v%d' % (op, v, v, vTmp))
    def rowmax(S, qb, d):
        b = S + 16 * qb
        a('v_max3_f32 v%d, v%d, v%d, v%d' % (d, b, b + 1, b + 2))
        for j in range(3, 15, 2): a('v_max3_f32 v%d, v%d, v%d, v%d' % (d, d, b + j, b + j + 1))
        a('v_max_f32 v%d, v%d, v%d' % (d, d, b + 15))
        allgroups(d, 'v_max_f32')
    def emit_reads(rs):
        for rd in rs: a(rd['t'])
    def npre_of(r, base, la): return min(13, len([x for x in r if x['first'] - base <= la - 1]))

    WP = [vO + 4 * i for i in range(16)]
    QLA = OPT['qla']
    def qp_reads(st, mbase=0, rbase=0, dbmajor=False):
        reads = []; mf = []; xi = {}
        XP = [vNegM + 4 * k for k in range(4)] if dbmajor else POOL[4 * (st & 1): 4 * (st & 1) + 4]
        order = [(ks, db) for db in range(8) for ks in range(2)] if dbmajor else [(ks, db) for ks in range(2) for db in range(8)]
        for n, (ks, db) in enumerate(order):
            i = mbase + 2 * n
            if ks not in xi:
                xi[ks] = rbase + len(reads)
                for qb in range(2):
                    reads.append(dict(t='ds_read_b128 %s, v%d offset:%d' % (vr(XP[2 * ks + qb], 4), vXaddr + ks, XST[st] - 16384 + qb * 2048), first=i))
            wi = rbase + len(reads)
            reads += tr2(WP[n], vTw + db, WST[st] - (BB - 16384) + ks * 8192, i, i - 31)
            for qb in range(2):
                acc = vr(vS[0] + 8 * db + 4 * qb, 4)
                mf.append(dict(t='%s %s, %s, %s, %s' % (MFMA, acc, vr(WP[n], 4), vr(XP[2 * ks + qb], 4), acc), uses=[wi, wi + 1, xi[ks], xi[ks] + 1]))
        return reads, mf
    gkv = lambda t: groups(dma_k(t) + dma_v(t))
    gxw = lambda c: groups(dma_xw(c & 3))
    EXTRA = {OPT['kv0at']: None}
    for p_, q in enumerate(STGAT): assert q not in EXTRA and q < 12; EXTRA[q] = p_
    def qp_body(c, early, late, tail=()):
        r0, mf = qp_reads(c & 3); r1, _ = qp_reads((c + 1) & 3, 32, dbmajor=(c == 14))
        fill = {}
        for k, g in enumerate(early): fill[4 * k] = list(g)
        for k, g in enumerate(late): fill[22 + 4 * k] = list(g)
        fill.setdefault(31, []); fill[31] += list(tail)
        ev = ['s_waitcnt vmcnt(8)', 's_barrier']
        nxt8 = [q + 1 for q in EXTRA]
        if c >= 12:
            if c in nxt8: ev = ['s_waitcnt vmcnt(16)', 's_barrier']
        else:
            ps = [q >> 2 for q in nxt8 if q < 12 and (q & 3) == c]
            if ps:
                ev = []
                for p_ in ps: ev += ['s_cmp_eq_u32 s%d, %d' % (sCnt, p_), 's_cbranch_scc1 L_kvw%d' % c]
                ev += ['s_waitcnt vmcnt(8)', 'L_kvw%d:' % c, 's_waitcnt vmcnt(16)', 's_barrier']
        sched(a, mf, r0 + r1[:npre_of(r1, 32, QLA)], QLA, npre=npre_of(r0, 0, QLA), fill=fill, events={len(r0): ev}, evrange=(17, 22), pair=4)
    r0, _ = qp_reads(0)
    if OPT['ab'] and OPT['late'] == 1: stage_block(False)
    for g in groups(dma_xw(1)):
        for x in g: a(x + (' ; T:i1' if x.startswith('buffer') else ''))
    if OPT['ab'] and OPT['late'] == 2: stage_block(False)
    for g in groups(dma_xw(2))[:3]:
        for x in g: a(x)
    a('s_waitcnt vmcnt(11)')
    a('s_barrier')
    stamp(10)
    emit_reads(r0[:npre_of(r0, 0, QLA)])
    if OPT['unr']:
        tag = lambda gs, t: [[x + ' ; T:%s' % t if x.startswith('buffer') else x for x in g] for g in gs]
        item = lambda k: tag(gxw(k), 'i%d' % k) if k < 16 else tag(gkv(k - 15), 'i%d' % k)
        extra = []
        for p_ in range(AB):
            sl = stage_loads(p_)
            extra += groups([sl[0].replace('s3', 's6')] + [x.replace(', s3 ', ', s6 ') for x in sl[2:6]] + [sl[1].replace('s4', 's6')] + [x.replace(', s4 ', ', s6 ') for x in sl[6:]])
        a.label('L_qp')
        n_start = len(a.ins)
        for c in range(15):
            if c == 8: stamp(11)
            r0, mf = qp_reads(c & 3); r1, _ = qp_reads((c + 1) & 3, 32, dbmajor=(c == 14))
            fill = {}
            for k, g in enumerate(item(c + 2)[3:]): fill[4 * k] = list(g)
            for k, g in enumerate(item(c + 3)[:3]): fill[22 + 4 * k] = list(g)
            if c in (OPT['kv0at'], OPT['kv0at'] + 1):
                for k, g in enumerate(groups(dma_k(0) if c == OPT['kv0at'] else dma_v(0))): fill[17 + k] = list(g)
            elif c >= OPT['st0']:
                for gp in (2, 10, 24, 6, 14, 28, 18, 20)[:OPT['stper']][::1]:
                    pass
                for gp in sorted((2, 10, 24, 18, 6, 14, 28, 20)[:OPT['stper']]):
                    if extra: fill[gp] = extra.pop(0)
            sched(a, mf, r0 + r1[:npre_of(r1, 32, QLA)], QLA, npre=npre_of(r0, 0, QLA), fill=fill, events={len(r0): ['s_waitcnt vmcnt(0) ; W:i%d' % (c + 1), 's_barrier']}, evrange=(17, 22), pair=4)
            if c == 2:
                a('s_cmp_lg_u32 s%d, 0' % sWave); a('s_cbranch_scc1 L_noinit')
                a('v_mov_b32 v38, 1'); a('v_mov_b32 v39, 0')
                a('s_mov_b64 exec, 1')
                a('buffer_atomic_add v38, v39, %s, 0 offen sc1' % sr(SDBG, 4))
                a('s_mov_b64 exec, %s' % sr(sEx, 2))
                a.label('L_noinit')
        assert not extra
        for k in range(n_start, len(a.ins)):
            t = a.ins[k].text
            if '; W:' in t:
                want = 'T:' + t.split('W:')[1].strip(); n = 0; j = k - 1
                while j >= 0 and not a.ins[j].text.endswith(want):
                    if a.ins[j].op.startswith('buffer_load'): n += 1
                    j -= 1
                assert j >= 0 and n < 60, (t, n)
                a.ins[k] = Ins('s_waitcnt vmcnt(%d)' % n)
    else:
        a.label('L_qp')
        if OPT['stamps']:
            a('s_cmp_lg_u32 s%d, 2' % sCnt); a('s_cbranch_scc1 L_st11')
            stamp(11)
        for c in range(4):
            qp_body(c, gxw(c + 2)[3:], gxw(c + 3)[:3], ['s_add_u32 s%d, s%d, 1' % (sCnt, sCnt), 's_cmp_lt_u32 s%d, 3' % sCnt] if c == 3 else [])
            if c == 2:
                a('s_or_b32 s3, s%d, s%d' % (sWave, sCnt)); a('s_cbranch_scc1 L_noinit')
                a('v_mov_b32 v38, 1'); a('v_mov_b32 v39, 0')
                a('s_mov_b64 exec, 1')
                a('buffer_atomic_add v38, v39, %s, 0 offen sc1' % sr(SDBG, 4))
                a('s_mov_b64 exec, %s' % sr(sEx, 2))
                a.label('L_noinit')
            for q in sorted(EXTRA):
                if (q & 3) != c: continue
                a('s_cmp_lg_u32 s%d, %d' % (sCnt, (q >> 2) + (1 if c == 3 else 0))); a('s_cbranch_scc1 L_nox%d' % q)
                if EXTRA[q] is None:
                    for x in dma_k(0) + dma_v(0): a(x)
                    a('s_add_u32 m0, s%d, %d' % (sLdsW, XST[(c + 3) & 3]))
                else:
                    for x in stage_loads(EXTRA[q]): a(x)
                a.label('L_nox%d' % q)
            if c == 3 and any((q & 3) == 3 for q in EXTRA): a('s_cmp_lt_u32 s%d, 3' % sCnt)
        a('s_cbranch_scc1 L_qp')
        if OPT['qpm']:
            n0 = [k for k, i in enumerate(a.ins) if i.text.startswith('L_qp:')][0]
            keep = []
            for i in a.ins[n0:]:
                if (OPT['qpm'] & 1) and i.kind == 'mfma': continue
                if (OPT['qpm'] & 2) and i.kind == 'ds': continue
                if (OPT['qpm'] & 4) and i.kind == 'vmem' and 'lds' in i.text: continue
                if (OPT['qpm'] & 16) and i.op == 's_barrier': continue
                keep.append(i)
            a.ins[n0:] = keep
        qp_body(12, gxw(14)[3:], gxw(15)[:3])
        qp_body(13, gxw(15)[3:], gkv(1)[:3])
        qp_body(14, gkv(1)[3:], gkv(2)[:3])
    def pack(m):
        out = []
        t = vS[0] + 16 * m
        for r in range(0, 16, 2): out.append('v_pk_mul_f32 %s, %s, %s' % (vr(t + r, 2), vr(t + r, 2), sr(sQs, 2)))
        for qb in range(2):
            for h in range(2):
                for k in range(2):
                    s_ = t + 8 * h + 4 * qb + 2 * k
                    out.append('v_cvt_pk_bf16_f32 v%d, v%d, v%d' % (vQ + 8 * m + 4 * qb + 2 * h + k, s_, s_ + 1))
        return out
    def qswap(m):
        return ['v_permlane16_swap_b32 v%d, v%d' % (vQ + 8 * m + 4 * qb + k, vQ + 8 * m + 4 * qb + 2 + k) for qb in range(2) for k in range(2)]
    r0, mf = qp_reads(3, dbmajor=True)
    rq, mq = qk_parts(0, vS[0], True)
    rq32, _ = qk_parts(0, vS[0], True, mbase=32)
    for x in rq32: x['free'] = -1
    NPK = npre_of(rq, 0, LA)
    gk3 = groups(dma_k(3))
    fill = {}
    for k, g in enumerate(gkv(2)[3:]): fill[4 * k] = list(g)
    for k in range(3): fill[22 + 4 * k] = list(gk3[k])
    st = [(x, 12, 31) for x in pack(0)] + [(x, 20, 31) for x in pack(1)[:8]]
    bsched(a, mf, r0 + rq32[:NPK], QLA, npre=npre_of(r0, 0, QLA), fixed=fill, events={len(r0): ['s_barrier']}, evrange=(17, 22), streams=[st], pair=4)
    stamp(1)
    for x in gk3[3]: a(x)
    for x in pack(1)[8:] + qswap(0) + pack(2) + qswap(1) + pack(3) + qswap(2) + ['s_nop 0'] + qswap(3): a(x)
    rn, _ = qk_parts(1, vS[1], False, mbase=32)
    zero = ['v_mov_b32 v%d, 0' % (vO + i) for i in range(64)]
    fill = {i: zero[2 * i: 2 * i + 2] for i in range(32)}
    sched(a, mq, rq + rn[:NPK], LA, npre=NPK, fill=fill, events={16: ['s_waitcnt vmcnt(16)', 's_barrier']}, pair=OPT['pair'])
    a('s_barrier')
    gk4 = groups(dma_k(4))
    for k in range(8): a('v_mov_b32 v%d, 0' % (vLs + k))
    for qb in range(2):
        for x in gk4[2 * qb]: a(x)
        rowmax(vS[0], qb, vDelta + qb)
        for x in gk4[2 * qb + 1]: a(x)
        for j in range(4): a('v_sub_f32 v%d, 0, v%d' % (vNegM + 4 * qb + j, vDelta + qb))
        for j in range(16): a('v_sub_f32 v%d, v%d, v%d' % (vS[0] + 16 * qb + j, vS[0] + 16 * qb + j, vDelta + qb))
    stamp(2)

    rare = []
    def iteration(j, vm, kind='mid', tag='', hook=None):
        cur, nxt = vS[j & 1], vS[(j + 1) & 1]
        sm = softmax_ops(cur)
        if kind != 'last':
            r1, m1 = qk_parts((j + 1) & 3, nxt, False)
            r2, m2, last = pv_parts(j, cur, 32, 16, prev={b: 2 * (8 + b) + 1 for b in range(8)})
            n = len(m1) + len(m2)
            if kind == 'mid':
                r3, _ = qk_parts((j + 2) & 3, cur, False, mbase=n)
                for k in range(8): r3[k]['free'] = last[k]
                r3 = r3[:NPK]
            else:
                r3, _, _ = pv_parts(j + 1, nxt, n, prev=last); r3 = r3[:NPV]
            reads, mf = r1 + r2 + r3, m1 + m2
            u1 = 32 + len(m2) // 2
            st1 = []; ne = 0
            for x, u in sm:
                if x.startswith('v_exp'): ne += 1
                st1.append((x, 0, min(29 if u == 0 else u1 - 3, (ne * (u1 - 4)) // 32 + (0 if x.startswith('v_exp') else 1))))
            st2 = [(x, max(8 * blk + 12, OPT['mx0']), n - 1) for x, blk in max_ops(nxt)] + [('v_cmp_lt_f32 vcc, s%d, v%d' % (sThr, vMax), 40, n - 1)]
            fixed = {}
            ev0 = n - LA
            if hook: hook(fixed, ev0)
            if kind == 'mid':
                if j == 0: g = spread(fixed, dma_wo(), ev0 - 28, 3); assert g <= ev0 + 2, g
                if AB and OPT['split']: dd = dma_v(j + 3, sMv if j == 1 else None) + dma_k(j + 1, sMv if j == 3 else None)
                elif AB and j == 1: dd = dma_v(j + 3, sMv) + dma_k(j + 1, sMk)
                else: dd = dma_v(j + 3) + dma_k(j + 1)
                g = spread(fixed, dd, ev0 + 2, 1); assert g - 1 < n, g
            bsched(a, mf, reads, LA, npre=NPK, events={len(r1) + len(r2): ['s_waitcnt vmcnt(%d)' % vm, 's_barrier']}, fixed=fixed, streams=[st1, st2],
                   pair=OPT['pair'], evrange=(ev0, ev0 + 2))
            lab = 'L_rare%d%s' % (j, tag)
            a('s_cbranch_vccnz %s' % lab)
            a.label(lab + '_ret')
            rare.append((lab, nxt))
        else:
            reads, mf, _ = pv_parts(j, cur)
            u1 = len(mf) // 2
            for x, u in sm:
                if u == 0: a(x)
            st1 = [(x, 0, u1 - 3) for x, u in sm if u == 1]
            fixed = {}
            if hook: hook(fixed, len(mf))
            bsched(a, mf, reads, LA, npre=NPV, streams=[st1], pair=OPT['pair'], cap=5, fixed=fixed)
    NPV = npre_of(pv_parts(0, vS[0])[0], 0, LA)

    def wo_block(p):
        for m in range(4):
            for nb in range(2):
                for h in range(2):
                    a('ds_read_b64_tr_b16 %s, v%d offset:%d' % (ar(32 * p + 8 * m + 4 * nb + 2 * h, 2), vWoAddr, m * 8192 + h * 4096 + nb * 8))
        a('s_waitcnt lgkmcnt(0)')
    def wo_chain(tag):
        if WABS:
            a('s_sub_u32 s%d, s%d, s%d' % (sBlk, sCnt, sJ)); a('s_and_b32 s%d, s%d, 7' % (sBlk, sBlk))
            for p in range(8):
                if p < 7:
                    a('s_cmp_lg_u32 s%d, %d' % (sBlk, p)); a('s_cbranch_scc1 L_wb%s%d' % (tag, p + 1))
                wo_block(p)
                if p < 7: a('s_branch L_wbdone%s' % tag)
                a.label('L_wb%s%d' % (tag, p + 1) if p < 7 else 'L_wbdone%s' % tag)
            return
        if tag == 'b': return wo_block(7)
        for p in range(7):
            if p < 6:
                a('s_cmp_lg_u32 s%d, %d' % (sCnt, p)); a('s_cbranch_scc1 L_wb%s%d' % (tag, p + 1))
            wo_block(p)
            if p < 6: a('s_branch L_wbdone%s' % tag)
            a.label('L_wb%s%d' % (tag, p + 1) if p < 6 else 'L_wbdone%s' % tag)
    def stage_sel():
        a('s_mov_b32 s5, 0x30000')
        a('s_bitcmp1_b32 s%d, s%d' % (sGrp, sCnt))
        a('s_cselect_b32 s%d, 0, 0x80000' % sLim1); a('s_cselect_b32 s3, s5, %d' % (BB + 49152)); a('s_cselect_b32 s4, s5, 32768')
        a('s_add_u32 s%d, s%d, s3' % (sMv, sLdsW)); a('s_add_u32 s%d, s%d, s4' % (sMk, sLdsW))
    def stage_chain():
        a('s_cmp_lg_u32 s%d, 0' % sLim1); a('s_cbranch_scc1 L_sgdone')
        for k, p in enumerate(STP):
            if k < AB - 1:
                a('s_cmp_lg_u32 s%d, %d' % (sCnt, p)); a('s_cbranch_scc1 L_sg%d' % (k + 1))
            for i in range(4):
                a('ds_write_b128 v%d, %s offset:%d' % (vStg, ar(32 * p + 4 * i, 4), 49152 + i * 1024))
            a('v_add_u32 v%d, %d, v%d' % (vTmp, 32768 - BB, vStg))
            for i in range(4):
                a('ds_write_b128 v%d, %s offset:%d' % (vTmp, ar(32 * p + 16 + 4 * i, 4), i * 1024))
            a('s_waitcnt lgkmcnt(0)')
            if k < AB - 1: a('s_branch L_sgdone')
            a.label('L_sg%d' % (k + 1) if k < AB - 1 else 'L_sgdone')
    def half_sel(isk):
        a('s_mov_b32 s5, 0x30000')
        if isk: a('s_add_u32 s3, s%d, 1' % sCnt)
        a('s_bitcmp1_b32 s%d, s%d' % (sGrp, 3 if isk else sCnt))
        a('s_cselect_b32 s%d, 0, 0x80000' % sLim1); a('s_cselect_b32 s3, s5, %d' % (0 if isk else BB + 49152))
        a('s_add_u32 s%d, s%d, s3' % (sMv, sLdsW))
    def half_chain(isk):
        t = 'k' if isk else 'v'
        a('s_cmp_lg_u32 s%d, 0' % sLim1); a('s_cbranch_scc1 L_sg%sdone' % t)
        if isk: a('v_add_u32 v%d, %d, v%d' % (vTmp, -BB, vStg))
        for k, p in enumerate(STP):
            if k < AB - 1:
                a('s_cmp_lg_u32 s%d, %d' % (sCnt, p - 1 if isk else p)); a('s_cbranch_scc1 L_sg%s%d' % (t, k + 1))
            for i in range(4):
                if isk: a('ds_write_b128 v%d, %s offset:%d' % (vTmp, ar(32 * p + 16 + 4 * i, 4), i * 1024))
                else: a('ds_write_b128 v%d, %s offset:%d' % (vStg, ar(32 * p + 4 * i, 4), 49152 + i * 1024))
            a('s_waitcnt lgkmcnt(0)')
            if k < AB - 1: a('s_branch L_sg%sdone' % t)
            a.label('L_sg%s%d' % (t, k + 1) if k < AB - 1 else 'L_sg%sdone' % t)
    a('s_mov_b32 s%d, 0' % sCnt)
    a.label('L_at')
    stamp(12, sCnt)
    a('s_cmp_lg_u32 s%d, 6' % sCnt); a('s_cbranch_scc1 L_nocnt')
    a('v_mov_b32 v39, 0'); a('buffer_load_dword v38, v39, %s, 0 offen sc1' % sr(SDBG, 4))
    a.label('L_nocnt')
    iteration(0, 20)
    if AB: (half_sel(False) if OPT['split'] else stage_sel())
    iteration(1, 20)
    if AB: (half_chain(False) if OPT['split'] else stage_chain())
    a('s_cmp_eq_u32 s%d, 7' % sCnt)
    a('s_cbranch_scc1 L_at_last')
    iteration(2, 12)
    wo_chain('a')
    if AB and OPT['split']: half_sel(True); assert 0 not in STP
    iteration(3, 12)
    if AB and OPT['split']: half_chain(True)
    a('s_add_u32 s%d, s%d, 1' % (sCnt, sCnt))
    a('s_branch L_at')
    if OPT['atm']:
        n0 = [k for k, i in enumerate(a.ins) if i.text.startswith('L_at:')][0]
        keep = []; m = OPT['atm']; c = 0
        for i in a.ins[n0:]:
            if (m & 1) and i.op == 'v_exp_f32': continue
            if (m & 2) and i.kind == 'ds':
                c += 1
                if (m & 256) == 0 or (c & 1): continue
            if (m & 32) and i.op.startswith('v_max'): continue
            if (m & 64) and i.op.startswith('v_cvt'): continue
            if (m & 128) and i.op == 's_waitcnt' and 'lgkm' in i.text and 'lgkmcnt(0)' not in i.text: continue
            if (m & 512) and i.kind == 'mfma' and min(x[1] for x in i.d) >= vO + 32: continue
            keep.append(i)
        a.ins[n0:] = keep
    a.label('L_at_last')
    sHd, SA, SB_ = 36, 40, 8
    STG = [None, (1, 0), (2, 0), (3, 0), (1, 1), (2, 1), (3, 1), (0, 0), (0, 1)]
    OSLOT = [1, 0, 2, 3, 4, 1, 0, 2, 3]
    for x in ['s_mov_b32 s%d, 0' % sSpin, 'L_init:', 'v_readfirstlane_b32 s3, v38', 's_add_u32 s%d, s%d, 1' % (sSpin, sSpin),
              's_cmp_ge_u32 s3, 256', 's_cbranch_scc1 L_init_ok', 's_cmp_ge_u32 s%d, %d' % (sSpin, OPT['spin']), 's_cbranch_scc1 L_init_ok',
              'v_mov_b32 v39, 0', 'buffer_load_dword v38, v39, %s, 0 offen sc1' % sr(SDBG, 4), 's_waitcnt vmcnt(0)', 's_branch L_init', 'L_init_ok:']: a(x)
    a('s_lshl_b32 s3, s%d, 20' % sB); a('s_lshl_b32 s4, s%d, 16' % sKg); a('s_add_u32 s7, s3, s4')
    a('s_lshl_b32 s3, s%d, 2' % sWave); a('s_lshr_b32 s3, s%d, s3' % sTab)
    a('s_bfe_u32 s4, s3, 0x30004'); a('s_bfe_u32 s6, s3, 0x30010')
    a('v_mov_b32 v2, s4'); a('v_mov_b32 v3, s6'); a('v_cmp_gt_u32 vcc, 4, v1')
    a('s_lshl_b32 s4, s4, 13'); a('s_add_u32 s%d, s4, s7' % sHd); a('s_lshl_b32 s6, s6, 13'); a('s_add_u32 s%d, s6, s7' % (sHd + 1))
    a('v_cndmask_b32 v3, v3, v2, vcc'); a('v_and_b32 v2, 3, v1'); a('v_lshlrev_b32 v2, 2, v2'); a('v_lshl_add_u32 v3, v3, 8, v2')
    a('v_add_u32 v4, s%d, v1' % sKg); a('v_and_b32 v4, 3, v4'); a('v_lshlrev_b32 v4, 2, v4')
    srd(SA, SWS, SWS + 1, None, '0'); srd(SB_, SWS, SWS + 1, None, '0')
    a('s_cmp_eq_u32 s%d, 3' % sWave); a('s_cselect_b32 s%d, 0, 0x2000000' % sSzA); a('s_cselect_b32 s%d, 0, 15' % sMA)
    a('s_lshl_b32 s5, s%d, 1' % sLdsW)
    a('s_lshl_b32 s6, s%d, 14' % sKg); a('s_add_u32 s6, s6, s%d' % sPb)
    a('s_lshl_b32 s3, s%d, 18' % sWave); a('s_add_u32 s3, s3, s7'); a('s_lshl_b32 s4, s%d, 13' % sJ); a('s_add_u32 s%d, s3, s4' % sOb)
    def dma_o(s_):
        i, hf = STG[s_]
        out = ['s_add_u32 s3, s%d, %d' % (sKg, i), 's_and_b32 s3, s3, 3', 's_lshl_b32 s3, s3, 18', 's_add_u32 s%d, s3, s%d' % (sT0, sHd + hf),
               's_add_u32 m0, s5, %d' % (OSLOT[s_] * 32768), 's_add_u32 s%d, s%d, 4096' % (sT1, sT0)]
        S_ = SB_ if hf else SA
        for m in range(4): out.append('buffer_load_dwordx4 v%d, %s, s%d offen offset:%d sc1 lds' % (vOoff, sr(S_, 4), sT0, m * 1024))
        out += ['s_add_u32 m0, m0, 4096', 's_nop 0']
        for m in range(4): out.append('buffer_load_dwordx4 v%d, %s, s%d offen offset:%d sc1 lds' % (vOoff, sr(S_, 4), sT1, m * 1024))
        return out
    def preq(sF, vp, ex): return ['s_mov_b64 exec, %d' % ex, 'buffer_load_dword v39, v%d, %s, s%d offen sc1' % (vp, sr(SWS, 4), sF), 's_mov_b64 exec, %s' % sr(sEx, 2)]
    def ptest(mask, sN): return ['s_waitcnt vmcnt(0)', 'v_cmp_ne_u32 vcc, 1, v39', 's_nop 1', 's_and_b32 s%d, vcc_lo, %s' % (sN, mask)]
    def pblock(n, sF, vp, ex, mask, sN):
        return ['s_mov_b32 s%d, 0' % sSpin, 'L_pb%d:' % n] + preq(sF, vp, ex) + ptest(mask, sN) + \
               ['s_cbranch_scc0 L_pb%d_out' % n, 's_add_u32 s%d, s%d, 1' % (sSpin, sSpin), 's_cmp_ge_u32 s%d, %d' % (sSpin, OPT['spin']), 's_cbranch_scc1 L_pb%d_out' % n,
                's_sleep %d' % OPT['psleep'], 's_branch L_pb%d' % n, 'L_pb%d_out:' % n]
    def signal(sF, vown): return ['v_mov_b32 v38, 1', 's_mov_b64 exec, 1', 'buffer_store_dword v38, v%d, %s, s%d offen sc1' % (vown, sr(SWS, 4), sF), 's_mov_b64 exec, %s' % sr(sEx, 2)]
    def hook_pen(fixed, ev0): fixed[ev0 + 3] = ['L_pq0:'] + preq(sF1, 3, 255)
    def hook_last(fixed, n):
        fixed[14] = ['L_pt0:'] + ptest('s%d' % sMA, sNA) + ['s_cselect_b32 s%d, 0, s%d' % (SA + 2, sSzA)]
        g = spread(fixed, dma_o(1), 15, 2); assert g - 2 < n, g
    SENT = OPT['sent']
    iteration(2, 0, kind='pen', tag='p', hook=hook_pen)
    wo_chain('b')
    iteration(3, 0, kind='last', hook=hook_last)
    stamp(3)

    a('s_add_u32 s%d, s%d, 4096' % (sT2, sOb))
    a('v_add_u32 v2, s5, v%d' % vOoff); a('v_add_u32 v2, 0x8000, v2')
    for qb in range(2): a('v_rcp_f32 v%d, v%d' % (6 + 2 * qb, vLs + 4 * qb))
    a('s_nop 0')
    for qb in range(2): a('v_mov_b32 v%d, v%d' % (7 + 2 * qb, 6 + 2 * qb))
    for m in range(4):
        for qb in range(2):
            f = vQ + 16 * qb + 4 * m
            for h in range(2):
                t = vO + 8 * (2 * m + h) + 4 * qb
                for k in range(2): a('v_pk_mul_f32 %s, %s, %s' % (vr(t + 2 * k, 2), vr(t + 2 * k, 2), vr(6 + 2 * qb, 2)))
            for h in range(2):
                t = vO + 8 * (2 * m + h) + 4 * qb
                for k in range(2): a('v_cvt_pk_bf16_f32 v%d, v%d, v%d' % (f + 2 * h + k, t + 2 * k, t + 2 * k + 1))
            a('buffer_store_dwordx4 %s, v%d, %s, s%d offen offset:%d sc1' % (vr(f, 4), vOoff, sr(SWS, 4), sT2 if qb else sOb, m * 1024))
    for m in range(4):
        for qb in range(2): a('ds_write_b128 v2, %s offset:%d' % (vr(vQ + 16 * qb + 4 * m, 4), qb * 4096 + m * 1024))
    for i in range(4):
        a('s_add_u32 s3, s%d, %d' % (sKg, i)); a('s_and_b32 s3, s3, 3'); a('s_lshl_b32 s3, s3, 13')
        a('v_add_u32 v%d, s3, v%d' % (vOaddr + i, vOoff))
    a('v_add_u32 v%d, 0x10000, v%d' % (vOaddr + 4, vOoff)); a('v_add_u32 v%d, 0x20000, v%d' % (vOaddr + 5, vOoff))
    SADDR = [vOoff, vOaddr + 4, vOaddr + 5]
    ACC = vS[0]
    def op_parts(s_, mbase=0):
        slot = OSLOT[s_]
        reads = []; mf = []
        if s_ == 0: order = [(0, 0, m, i, qb) for m in range(4) for i in range(4) for qb in range(2)]
        else:
            i, hf = STG[s_]
            order = [(1 + 3 * hf + u, u, m, i, qb) for u in range(3 + hf) for m in range(4) for qb in range(2)]
        for n, (p, u, m, i, qb) in enumerate(order):
            buf = POOL[n & 7]
            if s_ == 0: ad, off = vOaddr + i, 32768
            else: ad, off = SADDR[slot >> 1], (slot & 1) * 32768 + u * 8192
            reads.append(dict(t='ds_read_b128 %s, v%d offset:%d' % (vr(buf, 4), ad, off + qb * 4096 + m * 1024), first=mbase + 2 * n, free=mbase + 2 * n - 15))
            for nb in range(2):
                acc = vr(ACC + 16 * i + 8 * qb + 4 * nb, 4)
                mf.append(dict(t='%s %s, %s, %s, %s' % (MFMA, acc, ar(32 * p + 8 * m + 4 * nb, 4), vr(buf, 4), '0' if (p == 0 and m == 0) else acc), uses=[n]))
        return reads, mf
    a('s_waitcnt lgkmcnt(0)')
    a('s_barrier')
    stamp(4)
    r, _ = op_parts(0)
    emit_reads(r[:NPK])
    def send(i):
        out = ['s_add_u32 s3, s%d, %d' % (sKg, i), 's_and_b32 s3, s3, 3', 's_lshl_b32 s3, s3, 16', 's_add_u32 s%d, s3, s6' % sT2]
        for g in range(4):
            out.append('buffer_store_dwordx4 %s, v%d, %s, s%d offen offset:%d sc1' % (vr(ACC + 16 * i + 4 * g, 4), vOoff, sr(SWS, 4), sT2, g * 1024))
        return out
    SENT = OPT['sent']
    sRc = 36
    def recv(i, S_=SWS):
        return ['buffer_load_dwordx4 %s, v%d, %s, s%d offen offset:%d sc1' % (vr(vO + 16 * i + 4 * g, 4), vOoff, sr(S_, 4), sRc + i - 1, g * 1024) for g in range(4)]
    rsetup = ['s_lshl_b32 s4, s%d, 16' % sKg, 's_add_u32 s4, s4, s%d' % sPb]
    for i in range(1, 4):
        rsetup += ['s_add_u32 s3, s%d, %d' % (sKg, i), 's_and_b32 s3, s3, 3', 's_lshl_b32 s3, s3, 14', 's_add_u32 s%d, s3, s4' % (sRc + i - 1)]
    osetup = ['v_and_b32 v2, 15, v1', 'v_lshrrev_b32 v5, 4, v1', 'v_lshlrev_b32 v2, 11, v2', 'v_lshl_add_u32 v2, v5, 4, v2',
              's_lshl_b32 s3, s%d, 18' % sB, 's_lshl_b32 s4, s%d, 16' % sKg, 's_add_u32 s7, s3, s4',
              's_cmp_lt_u32 s%d, 2' % sWave, 's_cselect_b32 s4, s%d, s%d' % (sPA, sPB),
              's_add_u32 s7, s7, s4', 's_lshl_b32 s4, s%d, 6' % sWave, 's_add_u32 s7, s7, s4', 's_add_u32 s39, s7, 0x8000']
    fifo = [1] * 8
    for s_ in range(9):
        r, m = op_parts(s_)
        n = len(m)
        fill = {}
        g = 0; ev = []
        if s_ == 0:
            fill[OPT['sg']] = ['s_waitcnt vmcnt(0)'] + signal(sF1, 36) + ['s_cmp_eq_u32 s%d, 0' % sNA, 's_cbranch_scc1 L_a_ok'] + \
                pblock(1, sF1, 3, 255, 's%d' % sMA, sNA) + ['s_mov_b32 s%d, s%d' % (SA + 2, sSzA)] + dma_o(1) + ['L_a_ok:']
            g = OPT['sg'] + 1
        if s_ == 1: fill[n - 6] = ['L_pq1:'] + preq(sF1, 3, 255)
        if s_ == 0 and SENT:
            for k in range(4): fill.setdefault(k, []).append('v_mov_b32 v%d, -1' % (6 + k))
        if s_ == 2:
            fill[10] = ['L_pt1:'] + ptest('0xf0', sNB) + ['s_cselect_b32 s%d, 0, 0x2000000' % (SB_ + 2)] + (signal(sF2, 37) if SENT else [])
            g = 11
        if s_ == 3:
            ev = ['s_cmp_eq_u32 s%d, 0' % sNB, 's_cbranch_scc1 L_b_ok'] + pblock(2, sF1, 3, 255, '0xf0', sNB) + \
                 ['s_mov_b32 s%d, 0x2000000' % (SB_ + 2)] + dma_o(4) + dma_o(5) + ['L_b_ok:']
        if s_ == 4: stamp(5)
        if s_ + 2 <= 8:
            g = spread(fill, dma_o(s_ + 2), g, 2 if s_ in (0, 2) else 3); fifo += [s_ + 2] * 8
        if s_ == 0 and SENT:
            mk = []
            for i in range(1, 4): mk += [x.replace(vr(ACC + 16 * i, 4), 'v[6:9]').replace(vr(ACC + 16 * i + 4, 4), 'v[6:9]').replace(vr(ACC + 16 * i + 8, 4), 'v[6:9]').replace(vr(ACC + 16 * i + 12, 4), 'v[6:9]') for x in send(i)]
            g = spread(fill, mk, g - 1, 1); fifo += [0] * 12
        if s_ in (5, 6, 7):
            i = STG[s_ - 1][0]
            if SENT:
                for k in range(16): fill.setdefault(4 + k // 2, []).append('v_min_u32 v%d, -2, v%d' % (ACC + 16 * i + k, ACC + 16 * i + k))
            g = spread(fill, send(i), max(g, 8 if SENT else 3), 2); fifo += [0] * 4
        assert g - 3 < n - LA, (s_, g)
        if SENT and s_ == 7: fill[1] = ['L_pq2:'] + preq(sF2, 4, 14)
        if s_ < 8:
            rn, _ = op_parts(s_ + 1, n)
            vm = len(fifo) - 1 - max(k for k, x in enumerate(fifo) if x == s_ + 1)
            sched(a, m, r + rn[:NPK], LA, npre=NPK, fill=fill, events={len(r): ev + ['s_waitcnt vmcnt(%d)' % vm, 's_barrier']}, evrange=(n - LA, n - 1), pair=4)
        else:
            for k, x in enumerate(rsetup + osetup): fill.setdefault((2 if SENT else 12) + k // 2, []).append(x)
            if SENT:
                L0 = OPT['ldat']
                fill[L0] = ['L_pc:', 's_waitcnt vmcnt(4)'] + ptest('14', sNA)[1:] + ['s_cselect_b32 s%d, 0, 0x2000000' % (SA + 2)]
                for k, x in enumerate(recv(3, SA) + recv(2, SA) + recv(1, SA)): fill.setdefault(L0 + 1 + 2 * k, []).append(x)
            else: fill[OPT['sig2']] = ['L_sig2:', 's_waitcnt vmcnt(0)'] + signal(sF2, 37)
            sched(a, m, r, LA, npre=NPK, fill=fill, pair=4)
    stamp(6)
    stamp(7)
    if SENT:
        a('s_cmp_eq_u32 s%d, 0' % sNA); a('s_cbranch_scc1 L_have')
    for x in pblock(3, sF2, 4, 14, '14', sNA): a(x)
    for i in (3, 2, 1):
        for x in recv(i): a(x)
    a.label('L_have'); a('s_nop 3')
    stamp(8)
    a('s_mov_b32 s%d, 0' % sSpin)
    for i in (3, 2, 1):
        b = vO + 16 * i
        a('s_waitcnt vmcnt(%d)' % (4 * (i - 1)))
        if SENT:
            a.label('L_rc%d' % i)
            a('v_max3_u32 v6, v%d, v%d, v%d' % (b, b + 1, b + 2))
            for k in range(3, 15, 2): a('v_max3_u32 v6, v6, v%d, v%d' % (b + k, b + k + 1))
            a('v_max_u32 v6, v6, v%d' % (b + 15))
            a('v_cmp_eq_u32 vcc, -1, v6')
            a('s_cbranch_vccz L_rc%d_ok' % i)
            a('s_add_u32 s%d, s%d, 1' % (sSpin, sSpin)); a('s_cmp_ge_u32 s%d, %d' % (sSpin, OPT['spin'])); a('s_cbranch_scc1 L_rc%d_ok' % i)
            for x in recv(i): a(x)
            a('s_waitcnt vmcnt(0)')
            a('s_branch L_rc%d' % i)
            a.label('L_rc%d_ok' % i)
        for r in range(16): a('v_add_f32 v%d, v%d, v%d' % (ACC + r, ACC + r, b + r))
    for r in range(0, 16, 2): a('v_cvt_pk_bf16_f32 v%d, v%d, v%d' % (vQ + r // 2, ACC + r, ACC + r + 1))
    a('buffer_store_dwordx4 %s, v2, %s, s7 offen' % (vr(vQ, 4), sr(SOUT, 4)))
    a('buffer_store_dwordx4 %s, v2, %s, s39 offen' % (vr(vQ + 4, 4), sr(SOUT, 4)))
    if OPT['stamps']:
        a('s_waitcnt vmcnt(0)'); stamp(9)
    a.label('L_end')
    a('s_endpgm')
    for lab, S in rare:
        a.label(lab)
        a('s_nop 15')
        for qb in range(2):
            d, al = vDelta + qb, vAlpha + qb
            rowmax(S, qb, d)
            a('v_max_f32 v%d, 0, v%d' % (d, d))
            a('v_sub_f32 v%d, 0, v%d' % (vTmp, d))
            a('v_exp_f32 v%d, v%d' % (al, vTmp))
            for j in range(16): a('v_sub_f32 v%d, v%d, v%d' % (S + 16 * qb + j, S + 16 * qb + j, d))
            for j in range(4): a('v_sub_f32 v%d, v%d, v%d' % (vNegM + 4 * qb + j, vNegM + 4 * qb + j, d))
            for j in range(4): a('v_mul_f32 v%d, v%d, v%d' % (vLs + 4 * qb + j, vLs + 4 * qb + j, al))
            for db in range(8):
                for j in range(4): a('v_mul_f32 v%d, v%d, v%d' % (vO + 8 * db + 4 * qb + j, vO + 8 * db + 4 * qb + j, al))
        a('s_nop 3')
        a('s_branch %s_ret' % lab)
    return a

def padit(a, l0, l1, n, every):
    i0 = [k for k, i in enumerate(a.ins) if i.text.startswith(l0)][0]
    i1 = [k for k, i in enumerate(a.ins) if i.text.startswith(l1)][0]
    keep = []; c = 0
    for i in a.ins[i0:i1]:
        if i.kind == 'mfma':
            c += 1
            if c % every == 0: keep.append(Ins('s_nop %d' % (n - 1)))
        keep.append(i)
    a.ins[i0:i1] = keep

def main():
    a = gen()
    if OPT['opm']:
        i0 = [k for k, i in enumerate(a.ins) if i.text.startswith('L_st5:')][0]
        i1 = [k for k, i in enumerate(a.ins) if i.text.startswith('L_st6:')][0] - 12
        keep = []
        for i in a.ins[i0:i1]:
            if (OPT['opm'] & 1) and i.kind == 'vmem' and 'lds' in i.text: continue
            if (OPT['opm'] & 2) and i.op == 's_barrier': continue
            if (OPT['opm'] & 4) and i.kind == 'vmem' and 'store_dwordx4' in i.text: continue
            if (OPT['opm'] & 8) and i.kind == 'ds': continue
            keep.append(i)
        a.ins[i0:i1] = keep
    if OPT['pad']: padit(a, 'L_at:', 'L_at_last:', OPT['pad'], 2)
    if OPT['qpad']: padit(a, 'L_qp:', 'L_at:', OPT['qpad'], 2)
    if OPT['opad']: padit(a, 'L_poll1_out:', 'L_end:', OPT['opad'], 2)
    import io, contextlib
    buf = io.StringIO()
    with contextlib.redirect_stdout(buf):
        bad = check_program(a)
    sys.stderr.write(buf.getvalue())
    for b in bad: sys.stderr.write('BRANCH HAZARD %s\n' % (b,))
    print('; @launch grid=(256,1,1) block=(256,1,1) lds=163840')
    print('.amdgcn_target "amdgcn-amd-amdhsa--gfx950"\n.text')
    print(a.text())
    print('''.section .rodata,"a"
.p2align 6
.amdhsa_kernel %s
  .amdhsa_next_free_vgpr 512
  .amdhsa_next_free_sgpr 102
  .amdhsa_accum_offset 256
  .amdhsa_group_segment_fixed_size 0
  .amdhsa_kernarg_size 64
  .amdhsa_user_sgpr_count 2
  .amdhsa_user_sgpr_kernarg_segment_ptr 1
  .amdhsa_system_sgpr_workgroup_id_x 1
.end_amdhsa_kernel''' % NAME)
main()
```
